```python
import torch

def _softmax(x, axis=-1):
    return torch.softmax(x, dim=axis)
def _gelu(x):
    return torch.nn.functional.gelu(x, approximate="tanh")
def _silu(x):
    return torch.nn.functional.silu(x)
def _sigmoid(x):
    return torch.sigmoid(x)
def _layernorm(x, axis=-1, eps=1e-5):
    m = x.mean(dim=axis, keepdim=True)
    v = x.var(dim=axis, keepdim=True, unbiased=False)
    return (x - m) / torch.sqrt(v + eps)
def _scatter_add(tgt, idx, src, axis=0):
    return tgt.clone().index_add_(axis, idx, src)
def _segment_sum(src, seg, n):
    out = torch.zeros((n,) + src.shape[1:], dtype=src.dtype)
    return out.index_add_(0, seg, src)
def _pad(x, pw):
    flat = tuple(v for pair in reversed(pw) for v in pair)
    return torch.nn.functional.pad(x, flat)

kernel_name = 'gated_mix__ssm_conv_s4__glu_gated_swiglu__prompt'

def setup_inputs():

    _w = (lambda a: (lambda t: t.to(torch.bfloat16) if t.is_floating_point() else t)(torch.as_tensor(a)))
    def _A_setup():
        B, L, D, N = 1, 2048, 512, 128
        A_re = -(lambda _x: torch.exp(torch.as_tensor(_x)))((lambda *s: torch.randn(*s, dtype=torch.bfloat16) * 3.2)(D, N))
        A_im = torch.pi * (lambda *s: torch.randn(*s, dtype=torch.bfloat16) * 0.05)(D, N)
        B_re = (lambda *s: torch.randn(*s, dtype=torch.bfloat16) * 0.1)(D, N)
        B_im = (lambda *s: torch.randn(*s, dtype=torch.bfloat16) * 0.1)(D, N)
        C_re = (lambda *s: torch.randn(*s, dtype=torch.bfloat16) * 0.1)(D, N)
        C_im = (lambda *s: torch.randn(*s, dtype=torch.bfloat16) * 0.1)(D, N)
        log_dt = (lambda *s: torch.randn(*s, dtype=torch.bfloat16) * 0.05)(D) * 0.5 - 4.0
        Dskip = (lambda *s: torch.randn(*s, dtype=torch.bfloat16) * 0.05)(D)
        return {
            "u": _w((lambda *s: torch.randn(*s, dtype=torch.bfloat16) * 0.05)(B, L, D)),
            "A_re": _w(A_re),
            "A_im": _w(A_im),
            "B_re": _w(B_re),
            "B_im": _w(B_im),
            "C_re": _w(C_re),
            "C_im": _w(C_im),
            "log_dt": _w(log_dt),
            "Dskip": _w(Dskip),
        }
    _A_in = _A_setup()

    def _B_setup():
        B, S, D, F = 1, 2048, 512, 1792
        return {
            "x": _w((lambda *s: torch.randn(*s, dtype=torch.bfloat16) * 0.05)(B, S, D)),
            "w1": _w((lambda *s: torch.randn(*s, dtype=torch.bfloat16) * 0.8)(D, F) * (2.0 / D) ** 0.5),
            "w3": _w((lambda *s: torch.randn(*s, dtype=torch.bfloat16) * 0.8)(D, F) * (2.0 / D) ** 0.5),
            "w2": _w((lambda *s: torch.randn(*s, dtype=torch.bfloat16) * 0.8)(F, D) * (2.0 / F) ** 0.5),
        }
    _B_in = _B_setup()

    return {
        "A_u": _A_in["u"],
        "A_A_re": _A_in["A_re"],
        "A_A_im": _A_in["A_im"],
        "A_B_re": _A_in["B_re"],
        "A_B_im": _A_in["B_im"],
        "A_C_re": _A_in["C_re"],
        "A_C_im": _A_in["C_im"],
        "A_log_dt": _A_in["log_dt"],
        "A_Dskip": _A_in["Dskip"],
        "B_x": _B_in["x"],
        "B_w1": _B_in["w1"],
        "B_w3": _B_in["w3"],
        "B_w2": _B_in["w2"],
        "gate_w": _w((lambda *s: torch.randn(*s, dtype=torch.bfloat16) * 0.05)(512) * 16.0),
    }

def reference(A_u, A_A_re, A_A_im, A_B_re, A_B_im, A_C_re, A_C_im, A_log_dt, A_Dskip, B_x, B_w1, B_w3, B_w2, gate_w):
    def _A_ref(u, A_re, A_im, B_re, B_im, C_re, C_im, log_dt, Dskip):
        Bsz, L, D = u.shape
        dt = torch.exp(log_dt)[:, None]
        A = A_re + 1j * A_im
        Bc = B_re + 1j * B_im
        Cc = C_re + 1j * C_im
        logdA = dt * A
        dB = dt * Bc
        l = (lambda x, dt: x.to(dt))(torch.arange(L), A_re.dtype)
        P = torch.exp(logdA[:, :, None] * l[None, None, :])
        K = torch.einsum("dn,dnl,dn->dl", Cc, P, dB).real
        L2 = 2 * L
        Kp = _pad(K, ((0, 0), (0, L)))
        up = (lambda x, *d: x.permute(*d))(u, 0, 2, 1)
        up = _pad(up, ((0, 0), (0, 0), (0, L)))
        Kf = (lambda x, axes=(-2,-1): torch.fft.rfft2(x.float(), dim=axes))(Kp[:, None, :], axes=(-2, -1))
        Uf = (lambda x, axes=(-2,-1): torch.fft.rfft2(x.float(), dim=axes))(up[:, :, None, :], axes=(-2, -1))
        Yf = Uf * Kf[None, :, :, :]
        y = (lambda x, s, axes=(-2,-1): torch.fft.irfft2(x, s=s, dim=axes).to(torch.bfloat16))(Yf, (1, L2), axes=(-2, -1))[:, :, 0, :L]
        y = (lambda x, *d: x.permute(*d))(y, 0, 2, 1) + u * Dskip[None, None, :]
        return y

    def _B_ref(x, w1, w3, w2):
        gate = torch.einsum("bsd,df->bsf", x, w1)
        up = torch.einsum("bsd,df->bsf", x, w3)
        h = _silu(gate) * up
        out = torch.einsum("bsf,fd->bsd", h, w2)
        return out

    x = A_u
    g = _sigmoid((x * gate_w).sum(-1, keepdims=True))
    a = _A_ref(x, A_A_re, A_A_im, A_B_re, A_B_im, A_C_re, A_C_im, A_log_dt, A_Dskip)
    b = _B_ref(x, B_w1, B_w3, B_w2)
    return g * a + (1 - g) * b
```

```python
import sys, struct, math

KNAME = "gated_mix__ssm_conv_s4__glu_gated_swiglu__prompt_kernel"

def f2u(x):
    return struct.unpack("<I", struct.pack("<f", x))[0]

class Asm:
    def __init__(self):
        self.L = []
    def __call__(self, s):
        self.L.append("    " + s)
    def label(self, s):
        self.L.append(s + ":")
        if any(t in s for t in ("spin", "wait", "poll", "valid", "L_w4_", "L_g1_w0", "w2w")):
            self.L.append("    s_sub_u32 s0, s0, 1")
            self.L.append("    s_cbranch_scc1 L_end")
    def raw(self, s):
        self.L.append(s)
    def text(self):
        return "\n".join(self.L) + "\n"

def vr(b, n):
    return f"v[{b}:{b+n-1}]" if n > 1 else f"v{b}"

WS_H    = 0x000000
WS_UT   = 0x800000
WS_G    = 0xA00000
WS_A    = 0xB00000
WS_FH   = 0xE00000
WS_FA   = 0xE02000
WS_FEND = 0xE03000
WS_DBG  = 0x1000000
WS_STAMP = 0x1300000
WS_SIZE = 0x1400000

LOG2E = 1.4426950408889634

S_WG, S_WAVE, S_RT, S_FT = 2, 3, 4, 5
SRD_X, SRD_W, SRD_W2, SRD_WS, SRD_OUT = 8, 12, 16, 20, 24
P0 = 36
def ptr(i): return P0 + 2*i
(I_U, I_ARE, I_AIM, I_BRE, I_BIM, I_CRE, I_CIM, I_LDT, I_DSK, I_X, I_W1, I_W3, I_W2, I_GW, I_OUT, I_DBG, I_WS) = range(17)
ST0 = 70

OPT = set()
def stamp(a, idx):
    if "stamps" not in OPT: return
    a(f"s_memtime s[{ST0+4*idx}:{ST0+1+4*idx}]")
    a(f"s_memrealtime s[{ST0+2+4*idx}:{ST0+3+4*idx}]")
DBGN = [0]
def stamp_flush(a, n):
    if "stamps" not in OPT: return
    if "dbgst" in OPT:
        DBGN[0] += 1
        lab = f"L_dbgskip{DBGN[0]}"
        wv, base = {8: (0, 2), 4: (6, 9), 5: (4, 12)}[n]
        a("s_waitcnt lgkmcnt(0)")
        a("s_cmp_lg_u32 s2, 100")
        a(f"s_cbranch_scc1 {lab}")
        a(f"s_cmp_lg_u32 s3, {wv}")
        a(f"s_cbranch_scc1 {lab}")
        a("v_mov_b32 v1, 0")
        for i in range(1, n):
            a(f"s_sub_u32 s34, s{ST0+2+4*i}, s{ST0+2}")
            a("v_mov_b32 v2, s34")
            a(f"global_store_dword v1, v2, s[{ptr(I_DBG)}:{ptr(I_DBG)+1}] offset:{4*(base+i-1)}")
            a("s_nop 1")
        a.raw(lab + ":")
        return
    a("s_waitcnt lgkmcnt(0)")
    a("s_lshl_b32 s34, s2, 3")
    a("s_add_u32 s34, s34, s3")
    a("s_lshl_b32 s34, s34, 6")
    a(f"s_add_u32 s34, s34, {WS_STAMP}")
    a("v_mov_b32 v1, 0")
    for i in range(n):
        a(f"v_mov_b32 v2, s{ST0+4*i}")
        a(f"v_mov_b32 v3, s{ST0+2+4*i}")
        a(f"buffer_store_dwordx2 v[2:3], v1, s[{SRD_WS}:{SRD_WS+3}], s34 offen offset:{8*i}")
        a("s_nop 1")

SLOT = 49152
L_SIDE = 3*SLOT
SIDE_U = 0
SIDE_C = 4608
SIDE_F = 6144
LDS_SIZE = 163840
FLB = L_SIDE + SIDE_F
FL_FULL = FLB + 0
FL_FREE = FLB + 16
FL_EO = FLB + 32
FL_W2 = FLB + 40
FL_TR = FLB + 48
FL_TR2 = FLB + 64
L2_W2 = 0
L2_EO = 114688
L2_AT = 131328
EO_O = 4160

def srd(a, d, base, nbytes):
    a(f"s_mov_b32 s{d}, s{base}")
    a(f"s_and_b32 s{d+1}, s{base+1}, 0xffff")
    a(f"s_mov_b32 s{d+2}, {nbytes}")
    a(f"s_mov_b32 s{d+3}, 0x00020000")

def gen_g1(a):
    ACC = 128
    XF = 32; WF = 64; XA = 8; WA = 12
    def acc(mat, nu, m): return ACC + 4*((mat*4+nu)*4+m)
    def xf(sig, m): return XF + 16*(sig & 1) + 4*m
    def wf(sig, mat, nu): return WF + 32*(sig & 1) + 4*(mat*4+nu)
    a("v_and_b32 v1, 63, v0")
    a("v_and_b32 v2, 15, v1")
    a("v_lshrrev_b32 v3, 4, v1")
    a("v_bfe_u32 v4, v2, 1, 3")
    a("s_lshl_b32 s6, s3, 13")
    a("v_lshlrev_b32 v5, 7, v2")
    a("v_add_u32 v5, s6, v5")
    for sig in range(2):
        a(f"v_add_u32 v6, {4*sig}, v3")
        a("v_xor_b32 v6, v6, v4")
        a(f"v_lshl_add_u32 v{XA+sig}, v6, 4, v5")
    a("v_bfe_u32 v2, v1, 2, 2")
    a("v_and_b32 v3, 3, v1")
    a("v_lshrrev_b32 v4, 4, v1")
    a("v_lshl_add_u32 v6, v4, 3, v2")
    a("v_lshlrev_b32 v6, 7, v6")
    a("v_lshl_add_u32 v6, v3, 3, v6")
    a("v_add_u32 v6, 32768, v6")
    a("v_lshrrev_b32 v7, 1, v2")
    a("v_and_b32 v4, 1, v4")
    a("v_lshl_or_b32 v7, v4, 1, v7")
    for nu in range(4):
        a(f"v_xor_b32 v5, {nu}, v7")
        a(f"v_lshl_add_u32 v{WA+nu}, v5, 5, v6")
    for i in range(0, 128, 2):
        a(f"v_pk_mul_f32 {vr(ACC+i,2)}, 0, 0")
    def reads(sig):
        r = []
        for m in range(4):
            r.append(f"ds_read_b128 {vr(xf(sig,m),4)}, v{XA+sig} offset:{m*2048}")
        for mat in range(2):
            for nu in range(4):
                for h in range(2):
                    r.append(f"ds_read_b64_tr_b16 {vr(wf(sig,mat,nu)+2*h,2)}, v{WA+nu} offset:{mat*8192+sig*4096+h*512}")
        return r
    def mfmas(sig):
        r = []
        for mat in range(2):
            for nu in range(4):
                for m in range(4):
                    d = acc(mat, nu, m)
                    r.append(f"v_mfma_f32_16x16x32_bf16 {vr(d,4)}, {vr(wf(sig,mat,nu),4)}, {vr(xf(sig,m),4)}, {vr(d,4)}")
        return r
    FV = 16
    a(f"v_mov_b32 v18, {FL_FULL}")
    a("s_lshl_b32 s7, s3, 2")
    a(f"s_add_u32 s7, s7, {FL_FREE}")
    a("v_mov_b32 v19, s7")
    a("v_mov_b32 v20, 0")
    a("s_mov_b32 s7, 0")
    a("s_mov_b32 s28, 1")
    a(f"s_mov_b32 s30, {SLOT}")
    a("s_barrier")
    stamp(a, 1)
    a.label("L_g1_w0")
    a(f"ds_read_b64 v[{FV}:{FV+1}], v18")
    a("s_waitcnt lgkmcnt(0)")
    a(f"v_min_u32 v{FV}, v{FV}, v{FV+1}")
    a("s_nop 0")
    a(f"v_readfirstlane_b32 s31, v{FV}")
    a("s_cmp_lt_u32 s31, s28")
    a("s_cbranch_scc1 L_g1_w0")
    stamp(a, 2)
    if "stamps" in OPT: a("s_waitcnt lgkmcnt(0)")
    for r in reads(0): a(r)
    a.label("L_g1_loop")
    a("s_add_u32 s7, s7, 1")
    a("s_cmp_eq_u32 s7, 3")
    a(f"s_cselect_b32 s29, {(-2*SLOT) & 0xffffffff}, s30")
    a("s_cselect_b32 s7, 0, s7")
    a("s_add_u32 s28, s28, 1")
    a("v_add_u32 v20, 1, v20")
    M = mfmas(0); R = reads(1)
    issued = 0
    for i in range(32):
        if i % 4 == 0:
            need = 4 + 2*(i//4 + 1)
            n = (20 - need) + issued
            a(f"s_waitcnt lgkmcnt({min(n,15)})")
        a(M[i])
        if issued < 20 and i >= 2:
            a(R[issued]); issued += 1
        if i == 28:
            a(f"ds_read_b64 v[{FV}:{FV+1}], v18")
    assert issued == 20
    a(f"v_add_u32 v{XA}, s29, v{XA}")
    a(f"v_add_u32 v{XA+1}, s29, v{XA+1}")
    for nu in range(4):
        a(f"v_add_u32 v{WA+nu}, s29, v{WA+nu}")
    M = mfmas(1); R = reads(0)
    a("s_waitcnt lgkmcnt(0)")
    a("ds_write_b32 v19, v20")
    a(M[0])
    a(f"v_min_u32 v{FV}, v{FV}, v{FV+1}")
    a(M[1])
    a(f"v_readfirstlane_b32 s31, v{FV}")
    a(M[2])
    a("s_cmp_eq_u32 s28, 9")
    a("s_cbranch_scc1 L_g1_last")
    a("s_cmp_ge_u32 s31, s28")
    a("s_cbranch_scc1 L_g1_go")
    a.label("L_g1_spin")
    a(f"ds_read_b64 v[{FV}:{FV+1}], v18")
    a("s_waitcnt lgkmcnt(0)")
    a(f"v_min_u32 v{FV}, v{FV}, v{FV+1}")
    a("s_nop 0")
    a(f"v_readfirstlane_b32 s31, v{FV}")
    a("s_cmp_lt_u32 s31, s28")
    a("s_cbranch_scc1 L_g1_spin")
    a.label("L_g1_go")
    issued = 0
    for i in range(3, 32):
        if issued < 20:
            a(R[issued]); issued += 1
        a(M[i])
    assert issued == 20
    a("s_branch L_g1_loop")
    a.label("L_g1_last")
    for i in range(3, 32):
        a(M[i])
    stamp(a, 3)
    a(f"s_mov_b32 s6, {f2u(-LOG2E)}")
    a(f"s_mov_b32 s7, {f2u(-LOG2E)}")
    a("s_lshl_b32 s28, s4, 4")
    a("s_lshl_b32 s29, s3, 2")
    a("s_add_u32 s28, s28, s29")
    a("s_mul_i32 s28, s28, 56")
    a("s_lshl_b32 s29, s5, 1")
    a("s_add_u32 s28, s28, s29")
    a("s_lshl_b32 s28, s28, 10")
    for m in range(1, 4):
        a(f"s_add_u32 s{28+m}, s28, {m*56*1024}")
    a("v_lshlrev_b32 v2, 4, v1")
    T = 32
    cnt = 0
    for np_ in range(2):
        for m in range(4):
            E = T + 16*(cnt & 1)
            O = E + 8
            gs = [acc(0, 2*np_, m), acc(0, 2*np_, m)+2, acc(0, 2*np_+1, m), acc(0, 2*np_+1, m)+2]
            us = [acc(1, 2*np_, m), acc(1, 2*np_, m)+2, acc(1, 2*np_+1, m), acc(1, 2*np_+1, m)+2]
            for p in range(4):
                a(f"v_pk_mul_f32 {vr(E+2*p,2)}, {vr(gs[p],2)}, s[6:7]")
            for p in range(8):
                a(f"v_exp_f32 v{E+p}, v{E+p}")
            for p in range(4):
                a(f"v_pk_mul_f32 {vr(us[p],2)}, {vr(gs[p],2)}, {vr(us[p],2)}")
            for p in range(4):
                a(f"v_pk_add_f32 {vr(E+2*p,2)}, {vr(E+2*p,2)}, 1.0 op_sel_hi:[1,0]")
            for p in range(8):
                a(f"v_rcp_f32 v{E+p}, v{E+p}")
            a("s_nop 0")
            for p in range(4):
                a(f"v_pk_mul_f32 {vr(us[p],2)}, {vr(us[p],2)}, {vr(E+2*p,2)}")
            for p in range(4):
                a(f"v_cvt_pk_bf16_f32 v{O+p}, v{us[p]}, v{us[p]+1}")
            a(f"buffer_store_dwordx4 {vr(O,4)}, v2, s[{SRD_WS}:{SRD_WS+3}], s{28+m} offen offset:{np_*1024} sc1")
            cnt += 1
    stamp(a, 4)
    wait_valid(a, "g1")
    a("s_lshl_b32 s28, s4, 2")
    a("s_add_u32 s28, s28, s3")
    a("s_lshl_b32 s28, s28, 5")
    a("s_add_u32 s28, s28, s5")
    a("s_lshl_b32 s28, s28, 2")
    a(f"s_add_u32 s28, s28, {WS_FH}")
    a("v_mov_b32 v3, 1")
    a("v_mov_b32 v4, 0")
    a("s_waitcnt vmcnt(0)")
    a("s_mov_b64 exec, 1")
    a(f"buffer_store_dword v3, v4, s[{SRD_WS}:{SRD_WS+3}], s28 offen sc1")
    a("s_mov_b64 exec, -1")
    stamp(a, 5)

def lds_wait4(a, addr, val, tag):
    a(f"v_mov_b32 v12, {addr}")
    a.label(f"L_w4_{tag}")
    a("ds_read_b128 v[28:31], v12")
    a("s_waitcnt lgkmcnt(0)")
    a("v_min_u32 v28, v28, v29")
    a("v_min3_u32 v28, v28, v30, v31")
    a("s_nop 0")
    a("v_readfirstlane_b32 s33, v28")
    a(f"s_cmp_lt_u32 s33, {val}")
    a(f"s_cbranch_scc1 L_w4_{tag}")

def wait_valid(a, tag):
    a("v_mov_b32 v4, 0")
    a.label(f"L_valid_{tag}")
    a(f"global_load_dword v3, v4, s[{ptr(I_DBG)}:{ptr(I_DBG)+1}] sc1")
    a("s_waitcnt vmcnt(0)")
    a("v_readfirstlane_b32 s28, v3")
    a("s_cmp_eq_u32 s28, 0")
    a(f"s_cbranch_scc1 L_valid_{tag}")

def gen_loader_setup(a):
    VX = 8; VW = 12
    a("v_and_b32 v1, 63, v0")
    a("v_lshrrev_b32 v2, 3, v1")
    a("v_and_b32 v3, 7, v1")
    a("v_lshrrev_b32 v4, 4, v1")
    a("v_xor_b32 v5, v3, v4")
    a("v_xor_b32 v6, 4, v5")
    a("v_lshlrev_b32 v7, 10, v2")
    a(f"v_lshl_add_u32 v{VX}, v5, 4, v7")
    a(f"v_lshl_add_u32 v{VX+1}, v6, 4, v7")
    a(f"v_add_u32 v{VX+2}, {2*7168}, v{VX}")
    a(f"v_add_u32 v{VX+3}, {3*7168}, v{VX+1}")
    a(f"v_add_u32 v{VX+1}, {7168}, v{VX+1}")
    a("v_and_b32 v4, 1, v4")
    a("v_lshlrev_b32 v4, 1, v4")
    a("v_xor_b32 v5, v3, v4")
    a("v_mul_u32_u24 v7, 3584, v2")
    a(f"v_lshl_add_u32 v{VW}, v5, 4, v7")
    a("v_xor_b32 v5, 4, v5")
    a(f"v_lshl_add_u32 v{VW+1}, v5, 4, v7")
    a(f"v_add_u32 v{VW+2}, {2*(28672-1024)}, v{VW}")
    a(f"v_add_u32 v{VW+3}, {3*(28672-1024)}, v{VW+1}")
    a(f"v_add_u32 v{VW+1}, {(28672-1024)}, v{VW+1}")

def gen_loader(a):
    VX = 8; VW = 12
    a("s_sub_u32 s6, s3, 4")
    a("s_lshl_b32 s28, s4, 18")
    a("s_lshl_b32 s29, s6, 17")
    a("s_add_u32 s28, s28, s29")
    for q in range(1, 4):
        a(f"s_add_u32 s{28+q}, s28, {q*32768}")
    a("s_lshl_b32 s32, s5, 7")
    a(f"s_add_u32 s33, s32, {4*28672}")
    a("s_lshl_b32 s34, s6, 14")
    a("s_lshl_b32 s35, s6, 13")
    a("s_add_u32 s35, s35, 32768")
    a("s_mov_b32 s26, 0")
    a("s_mov_b32 s27, 0")
    a("s_lshl_b32 s7, s6, 2")
    a(f"s_add_u32 s7, s7, {FL_FULL}")
    a("v_mov_b32 v16, s7")
    a(f"v_mov_b32 v17, {FL_FREE}")
    stamp(a, 1)
    a.label("L_ld_loop")
    a("s_cmp_lt_u32 s26, 3")
    a("s_cbranch_scc1 L_ld_go")
    a("s_sub_u32 s25, s26, 2")
    a.label("L_ld_spin")
    a("ds_read_b128 v[20:23], v17")
    a("s_waitcnt lgkmcnt(0)")
    a("v_min_u32 v20, v20, v21")
    a("v_min3_u32 v20, v20, v22, v23")
    a("s_nop 0")
    a("v_readfirstlane_b32 s7, v20")
    a("s_cmp_lt_u32 s7, s25")
    a("s_cbranch_scc1 L_ld_spin")
    a.label("L_ld_go")
    a("s_add_u32 s24, s35, s27")
    a("v_mov_b32 v18, s26")
    for q in range(2):
        a(f"s_add_u32 m0, s24, {q*4096}")
        a("s_nop 0")
        for k in range(4):
            a(f"buffer_load_dwordx4 v{VW+k}, s[{SRD_W}:{SRD_W+3}], s{32+q} offen offset:{k*1024} lds")
        a(f"s_add_u32 s{32+q}, s{32+q}, {64*3584}")
    a("s_add_u32 s24, s34, s27")
    for q in range(4):
        a(f"s_add_u32 m0, s24, {q*4096}")
        a("s_nop 0")
        for k in range(4):
            a(f"buffer_load_dwordx4 v{VX+k}, s[{SRD_X}:{SRD_X+3}], s{28+q} offen offset:{k*1024} lds")
        a(f"s_add_u32 s{28+q}, s{28+q}, 128")
        if q == 0:
            a("s_waitcnt vmcnt(12)")
            a("ds_write_b32 v16, v18")
    a("s_cmp_lg_u32 s26, 0")
    a("s_cbranch_scc1 L_ld_nb")
    a("s_barrier")
    a.label("L_ld_nb")
    a(f"s_add_u32 s27, s27, {SLOT}")
    a(f"s_cmp_eq_u32 s27, {3*SLOT}")
    a("s_cselect_b32 s27, 0, s27")
    a("s_add_u32 s26, s26, 1")
    a("s_cmp_lt_u32 s26, 8")
    a("s_cbranch_scc1 L_ld_loop")
    a("v_mov_b32 v18, 8")
    a("s_waitcnt vmcnt(0)")
    a("ds_write_b32 v16, v18")
    stamp(a, 2)

class Stream:
    def __init__(self):
        self.I = []
    def __call__(self, s, cost=1, nosplit=False):
        self.I.append((s, cost, nosplit))

def cmul(k, d, x, y):
    if "scalarc" in OPT:
        k(f"v_mul_f32 v{d}, v{x}, v{y}")
        k(f"v_mul_f32 v{d+1}, v{x}, v{y+1}")
        k(f"v_fma_f32 v{d}, -v{x+1}, v{y+1}, v{d}")
        k(f"v_fmac_f32 v{d+1}, v{x+1}, v{y}")
        return
    k(f"v_pk_mul_f32 {vr(d,2)}, {vr(x,2)}, {vr(y,2)} op_sel:[0,0] op_sel_hi:[0,1]")
    k(f"v_pk_fma_f32 {vr(d,2)}, {vr(x,2)}, {vr(y,2)}, {vr(d,2)} op_sel:[1,1,0] op_sel_hi:[1,0,1] neg_lo:[0,1,0]")

KG_RS = 272
V_EO = 192
V_DSK = 190

def gen_kgen(a):
    k = Stream()
    PR = 16
    a("s_sub_u32 s6, s3, 6")
    a("s_lshl_b32 s7, s2, 1")
    a("s_add_u32 s7, s7, s6")
    a("s_lshl_b32 s28, s7, 8")
    a("v_and_b32 v1, 63, v0")
    a("v_lshl_add_u32 v2, v1, 2, s28")
    for i in range(6):
        a(f"global_load_dword v{PR+i}, v2, s[{ptr(I_ARE+i)}:{ptr(I_ARE+i)+1}]")
    a("s_lshl_b32 s29, s7, 1")
    a("v_mov_b32 v3, s29")
    a(f"global_load_ushort v{PR+6}, v3, s[{ptr(I_LDT)}:{ptr(I_LDT)+1}]")
    a("s_lshl_b32 s30, s6, 13")
    a(f"s_add_u32 s30, s30, {L_SIDE}")
    VWR = 4; VRD = 5
    a(f"v_lshl_add_u32 v{VWR}, v1, 2, s30")
    a("v_and_b32 v6, 15, v1")
    a("v_lshrrev_b32 v7, 4, v1")
    a(f"v_mul_u32_u24 v{VRD}, {KG_RS}, v6")
    a(f"v_lshl_add_u32 v{VRD}, v7, 4, v{VRD}")
    a(f"v_add_u32 v{VRD}, s30, v{VRD}")
    a("v_mov_b32 v8, 0")
    a(f"ds_write_b32 v{VWR}, v8 offset:{SIDE_F}")
    VC0, VC1, VC2, VC3 = 8, 9, 10, 11
    a("v_lshrrev_b32 v12, 1, v7")
    a("v_and_b32 v13, 1, v7")
    a(f"v_lshlrev_b32 v{VC0}, 8, v12")
    a(f"v_lshl_add_u32 v{VC0}, v6, 4, v{VC0}")
    a(f"v_lshl_add_u32 v{VC0}, v13, 3, v{VC0}")
    a(f"v_add_u32 v{VC0}, s30, v{VC0}")
    a(f"v_lshlrev_b32 v{VC1}, 7, v7")
    a("v_sub_u32 v14, 3, v12")
    a("v_lshlrev_b32 v14, v14, v6")
    a(f"v_add3_u32 v{VC1}, v{VC1}, v14, s30")
    a("v_mul_u32_u24 v14, 60, v12")
    a(f"v_add3_u32 v{VC2}, v{VC1}, v14, 4")
    a(f"v_lshlrev_b32 v{VC3}, 7, v7")
    a(f"v_lshl_add_u32 v{VC3}, v6, 1, v{VC3}")
    a(f"v_add_u32 v{VC3}, s30, v{VC3}")
    DT = 24
    D = 96
    YF = 112
    XFr = 128
    for i in range(12):
        a(f"v_mov_b32 v{D+i}, 0")
    a(f"s_mov_b32 s31, 0xffff0000")
    a(f"s_mov_b32 s32, {f2u(LOG2E)}")
    L2E_HI = struct.unpack("<f", struct.pack("<f", LOG2E))[0]
    L2E_LO = LOG2E - L2E_HI
    a(f"s_mov_b32 s33, {f2u(L2E_LO)}")
    a(f"s_mov_b32 s34, {f2u(1.0/(2*math.pi))}")
    k("s_waitcnt vmcnt(0)", 0)
    k(f"v_lshlrev_b32 v{PR+6}, 16, v{PR+6}")
    k(f"v_mul_f32 v{DT}, s32, v{PR+6}")
    k(f"v_fma_f32 v{DT+1}, v{PR+6}, s32, -v{DT}")
    k(f"v_fmac_f32 v{DT+1}, s33, v{PR+6}")
    k(f"v_exp_f32 v{DT}, v{DT}", 2)
    k(f"v_mul_f32 v{DT+1}, {f2u(math.log(2.0))}, v{DT+1}")
    k(f"v_fmac_f32 v{DT}, v{DT}, v{DT+1}")
    k(f"v_cvt_pk_bf16_f32 v{DT}, v{DT}, v{DT}")
    k(f"v_and_b32 v{DT}, s31, v{DT}")
    U = 26
    AP, BP = 32, 33
    CB, W1, Y8, W128, W2, W4 = 34, 36, 38, 40, 42, 44
    T0 = 46
    Q = 56
    C0 = 160
    PK = 176
    pkc = [0]
    def put(row, z):
        p = PK + (pkc[0] % 8); pkc[0] += 1
        k(f"v_cvt_pk_bf16_f32 v{p}, v{z}, v{z+1}")
        k(f"ds_write_b32 v{VWR}, v{p} offset:{SIDE_U + row*KG_RS}")
    def readfr(dst):
        for kk in range(4):
            k(f"ds_read_b128 {vr(dst+4*kk,4)}, v{VRD} offset:{SIDE_U + kk*64}")
    def dexp(dst, l, conj=False):
        k(f"v_mul_f32 v{T0}, {float(l)!r}, v{AP}" if l in (1, 2, 4) else f"v_mul_f32 v{T0}, {f2u(float(l))}, v{AP}")
        k(f"v_mul_f32 v{T0+1}, {float(l)!r}, v{BP}" if l in (1, 2, 4) else f"v_mul_f32 v{T0+1}, {f2u(float(l))}, v{BP}")
        k(f"v_exp_f32 v{T0}, v{T0}", 2)
        k(f"v_fract_f32 v{T0+1}, v{T0+1}")
        k(f"v_cos_f32 v{T0+2}, v{T0+1}", 2)
        k(f"v_sin_f32 v{T0+3}, v{T0+1}", 2)
        k(f"v_mul_f32 v{dst}, v{T0}, v{T0+2}")
        if conj:
            k(f"v_mul_f32 v{dst+1}, -v{T0}, v{T0+3}")
        else:
            k(f"v_mul_f32 v{dst+1}, v{T0}, v{T0+3}")
    k("s_mov_b32 s35, 2")
    k("L_kg_half:")
    for half in range(1):
        for i in range(6):
            k(f"v_lshlrev_b32 v{U+i}, 16, v{PR+i}")
            k(f"v_lshrrev_b32 v{PR+i}, 16, v{PR+i}")
        k(f"v_mul_f32 v{AP}, v{DT}, v{U}")
        k(f"v_mul_f32 v{BP}, v{DT}, v{U+1}")
        k(f"v_mul_f32 v{AP}, s32, v{AP}")
        k(f"v_mul_f32 v{BP}, s34, v{BP}")
        k(f"v_mul_f32 v{U+2}, v{DT}, v{U+2}")
        k(f"v_mul_f32 v{U+3}, v{DT}, v{U+3}")
        cmul(k, CB, U+4, U+2)
        dexp(Y8, 8, conj=True)
        dexp(W1, 1)
        dexp(W128, 128)
        k(f"v_mov_b32 v{PK+7}, 0x3f80")
        k(f"ds_write_b32 v{VWR}, v{PK+7} offset:{SIDE_U}")
        put(1, Y8)
        Y16 = T0+4
        cmul(k, Y16, Y8, Y8)
        put(2, Y16)
        ca, cb = Y8, Y16
        na, nb = C0, C0+2
        for j in range(3, 16, 2):
            cmul(k, na, ca, Y16)
            if j+1 < 16: cmul(k, nb, cb, Y16)
            put(j, na)
            if j+1 < 16: put(j+1, nb)
            ca, cb = na, nb
            na = C0+4 if na == C0 else C0
            nb = C0+6 if nb == C0+2 else C0+2
        readfr(YF)
        Q1 = Q
        cmul(k, Q1, CB, W128)
        cmul(k, W2, W1, W1)
        put(0, CB); put(8, Q1)
        ca, cb = CB, Q1
        na, nb = C0, C0+2
        for r in range(1, 8):
            cmul(k, na, ca, W1); cmul(k, nb, cb, W1)
            put(r, na); put(8+r, nb)
            ca, cb = na, nb
            na = C0+4 if na == C0 else C0
            nb = C0+6 if nb == C0+2 else C0+2
        readfr(XFr)
        cmul(k, W4, W2, W2)
        for q in range(2, 8):
            cmul(k, Q+2*(q-1), Q+2*(q-2), W128)
        k("s_waitcnt lgkmcnt(0)", 1)
        for kk in range(4):
            k(f"v_mfma_f32_16x16x32_bf16 {vr(D,4)}, {vr(XFr+4*kk,4)}, {vr(YF+4*kk,4)}, {vr(D,4)}", 2)
        Qn = lambda q: Q+2*(q-1)
        put(0, Qn(2)); put(4, Qn(3))
        ca, cb = Qn(2), Qn(3)
        na, nb = C0, C0+2
        for r in range(1, 4):
            cmul(k, na, ca, W2); cmul(k, nb, cb, W2)
            put(r, na); put(4+r, nb)
            ca, cb = na, nb
            na = C0+4 if na == C0 else C0
            nb = C0+6 if nb == C0+2 else C0+2
        for qq in range(4):
            put(8+2*qq, Qn(4+qq))
            cmul(k, C0+8+2*(qq & 1), Qn(4+qq), W4)
            put(9+2*qq, C0+8+2*(qq & 1))
        readfr(XFr+16)
        prev = Qn(7)
        for q in range(8, 17):
            cur = C0+12+2*(q & 1)
            cmul(k, cur, prev, W128)
            put(q-8, cur)
            prev = cur
        readfr(XFr)
        k("s_waitcnt lgkmcnt(13)", 1)
        for kk in range(4):
            k(f"v_mfma_f32_16x16x32_bf16 {vr(D+4,4)}, {vr(XFr+16+4*kk,4)}, {vr(YF+4*kk,4)}, {vr(D+4,4)}", 2)
        k("s_waitcnt lgkmcnt(0)", 1)
        for kk in range(4):
            k(f"v_mfma_f32_16x16x32_bf16 {vr(D+8,4)}, {vr(XFr+4*kk,4)}, {vr(YF+4*kk,4)}, {vr(D+8,4)}", 2)
    k("s_sub_u32 s35, s35, 1")
    k("s_cmp_lg_u32 s35, 0")
    k("s_cbranch_scc1 L_kg_half")
    MU, EE, GB = 26, 27, 28
    k(f"v_sub_u32 v{MU}, 63, v1")
    k(f"v_lshrrev_b32 v{EE}, 4, v{MU}")
    k(f"v_min_u32 v{EE}, 2, v{EE}")
    k(f"v_lshlrev_b32 v{GB}, 5, v{MU}")
    k(f"v_lshrrev_b32 v{GB}, v{EE}, v{GB}")
    k(f"v_lshl_add_u32 v{GB}, v{EE}, 8, v{GB}")
    k(f"v_add_u32 v{GB}, s30, v{GB}")
    k(f"v_lshlrev_b32 v{EE}, 3, v{EE}")
    GA = 144
    def rne(o, e):
        if e == 0: return o
        return (o + ((1 << (e-1)) - 1) + ((o >> e) & 1)) >> e
    for o in range(17):
        tab = sum((2*rne(o, e)) << (8*e) for e in range(3))
        k(f"s_mov_b32 s35, {tab}", 0, True)
        k(f"v_bfe_u32 v{GA+o}, s35, v{EE}, 8")
        k(f"v_add_u32 v{GA+o}, v{GA+o}, v{GB}")
    k(f"v_lshl_add_u32 v{MU}, v{MU}, 2, s30")
    k("s_nop 4", 1)
    CP = 32
    k(f"v_cvt_pk_bf16_f32 v{CP}, v{D}, v{D+1}")
    k(f"v_cvt_pk_bf16_f32 v{CP+1}, v{D+2}, v{D+3}")
    k(f"v_cvt_pk_bf16_f32 v{CP+2}, v{D+4}, v{D+5}")
    k(f"v_cvt_pk_bf16_f32 v{CP+3}, v{D+6}, v{D+7}")
    k(f"v_cvt_pk_bf16_f32 v{CP+4}, v{D+8}, v{D+9}")
    k(f"v_cvt_pk_bf16_f32 v{CP+5}, v{D+10}, v{D+11}")
    k(f"ds_write_b64 v{VC0}, {vr(CP,2)} offset:{SIDE_C}")
    k(f"ds_write_b32 v{VC1}, v{CP+2} offset:{SIDE_C+512}")
    k(f"ds_write_b32 v{VC2}, v{CP+3} offset:{SIDE_C+512}")
    k(f"ds_write_b16 v{VC3}, v{CP+4} offset:{SIDE_C+1024}")
    k(f"ds_write_b16_d16_hi v{VC3}, v{CP+4} offset:{SIDE_C+1024+32}")
    k(f"ds_write_b16 v{VC3}, v{CP+5} offset:{SIDE_C+1024+64}")
    k(f"ds_write_b16_d16_hi v{VC3}, v{CP+5} offset:{SIDE_C+1024+96}")
    E0, O0, E1, O1 = V_EO, V_EO+8, V_EO+16, V_EO+24
    k(f"ds_read_b32 v{CP}, v{MU} offset:{SIDE_C+1024}")
    k(f"ds_read_u16 v{CP+1}, v{MU} offset:{SIDE_C+1024+4}")
    for m in range(8):
        k(f"ds_read_u16 v{E1+m}, v{GA+15-2*m} offset:{SIDE_C}")
        k(f"ds_read_u16 v{O1+m}, v{GA+14-2*m} offset:{SIDE_C}")
    k(f"ds_read_u16 v{CP+2}, v{GA+16} offset:{SIDE_C}")
    k(f"s_mov_b32 s28, 0x01000100", 0)
    k(f"s_mov_b32 s29, 0x03020302", 0)
    k(f"s_mov_b32 s35, 0x01000302", 0)
    k(f"s_mov_b32 s33, 0x03020504", 0)
    k("s_waitcnt lgkmcnt(15)", 1)
    k(f"v_perm_b32 v{E0}, v{CP+1}, v{CP+1}, s28")
    k(f"v_perm_b32 v{E0+2}, v{CP}, v{CP}, s29")
    k(f"v_perm_b32 v{E0+6}, v{CP}, v{CP}, s28")
    k(f"v_perm_b32 v{E0+5}, v{CP}, v{CP}, s35")
    k(f"v_perm_b32 v{O0+2}, v{CP+1}, v{CP}, s33")
    for d_, s_ in ((E0+1, E0), (E0+3, E0+2), (E0+4, E0+2), (E0+7, E0+6), (O0, E0), (O0+1, E0), (O0+3, E0+2), (O0+4, E0+2),
                   (O0+5, E0+2), (O0+6, E0+6), (O0+7, E0+6)):
        k(f"v_mov_b32 v{d_}, v{s_}")
    k("s_waitcnt lgkmcnt(0)", 1)
    for m in range(8):
        k(f"v_lshl_or_b32 v{E1+m}, v{O1+m}, 16, v{E1+m}")
    k(f"v_lshl_or_b32 v{O1}, v{E1}, 16, v{CP+2}")
    for m in range(1, 8):
        k(f"v_alignbit_b32 v{O1+m}, v{E1+m}, v{E1+m-1}, 16")
    a("s_waitcnt lgkmcnt(0)")
    a("s_barrier")
    for s_, c, ns in k.I:
        if s_.endswith(":"): a.label(s_[:-1])
        else: a(s_)
    stamp(a, 1)

def gen_kgen_tail(a):
    a("v_mov_b32 v2, 0")
    a("v_mov_b32 v3, 0")
    a("v_lshl_add_u32 v4, v1, 3, s30")
    a(f"ds_write_b64 v4, v[2:3] offset:{SIDE_U}")
    a.label("L_kg_waitu")
    a(f"global_load_dword v5, v2, s[{ptr(I_DBG)}:{ptr(I_DBG)+1}] offset:4 sc1")
    a("s_waitcnt vmcnt(0)")
    a("v_readfirstlane_b32 s28, v5")
    a("s_cmp_lt_u32 s28, 32")
    a("s_cbranch_scc1 L_kg_waitu")
    a("s_lshl_b32 s28, s7, 12")
    a(f"s_add_u32 s28, s28, {WS_UT}")
    a(f"s_add_u32 m0, s30, {SIDE_U+512}")
    a("v_lshlrev_b32 v4, 4, v1")
    for i in range(4):
        a(f"buffer_load_dwordx4 v4, s[{SRD_WS}:{SRD_WS+3}], s28 offen offset:{i*1024} sc1 lds")
    a(f"v_mov_b32 v17, {FL_FREE}")
    a.label("L_kg_waitring")
    a("ds_read_b128 v[20:23], v17")
    a("s_waitcnt lgkmcnt(0)")
    a("v_min_u32 v20, v20, v21")
    a("v_min3_u32 v20, v20, v22, v23")
    a("s_nop 0")
    a("v_readfirstlane_b32 s28, v20")
    a("s_cmp_lt_u32 s28, 8")
    a("s_cbranch_scc1 L_kg_waitring")
    a("s_mul_i32 s29, s6, 8320")
    a(f"s_add_u32 s29, s29, {L2_EO}")
    a("v_lshl_add_u32 v4, v1, 5, s29")
    E0, O0, E1, O1 = V_EO, V_EO+8, V_EO+16, V_EO+24
    for rnd, (E, O) in enumerate(((E0, O0), (E1, O1))):
        for h in range(2):
            a(f"ds_write_b128 v4, {vr(E+4*h,4)} offset:{rnd*2048+16*h}")
            a(f"ds_write_b128 v4, {vr(O+4*h,4)} offset:{EO_O+rnd*2048+16*h}")
    a(f"v_lshrrev_b32 v8, 16, v{E1+7}")
    for i in range(9, 16):
        a(f"v_mov_b32 v{i}, 0")
    a("s_mov_b32 s28, 0")
    a("s_mov_b32 s29, 0x80000000")
    a("s_mov_b64 exec, s[28:29]")
    a(f"ds_write_b128 v4, v[12:15] offset:{2048+32}")
    a(f"ds_write_b128 v4, v[12:15] offset:{2048+48}")
    a(f"ds_write_b128 v4, v[8:11] offset:{EO_O+2048+32}")
    a(f"ds_write_b128 v4, v[12:15] offset:{EO_O+2048+48}")
    a("v_mov_b32 v8, 1")
    a("s_lshl_b32 s28, s6, 2")
    a(f"s_add_u32 s28, s28, {FL_EO}")
    a("v_mov_b32 v9, s28")
    a("s_waitcnt vmcnt(0) lgkmcnt(0)")
    a("ds_write_b32 v9, v8")
    a("s_mov_b64 exec, -1")

def gen_dump_eo(a):
    a("s_waitcnt lgkmcnt(0)")
    a("s_mul_i32 s29, s6, 8320")
    a(f"s_add_u32 s29, s29, {L2_EO}")
    a("v_lshl_add_u32 v4, v1, 4, s29")
    a("s_mul_i32 s28, s7, 16384")
    a(f"s_add_u32 s28, s28, {WS_SIZE}")
    a("v_lshlrev_b32 v5, 4, v1")
    a(f"s_mov_b32 s{SRD_WS+2}, {WS_SIZE + 512*16384}")
    for i in range(9):
        a(f"ds_read_b128 v[8:11], v4 offset:{i*1024}")
        a("s_waitcnt lgkmcnt(0)")
        a(f"buffer_store_dwordx4 v[8:11], v5, s[{SRD_WS}:{SRD_WS+3}], s28 offen")
        a("s_add_u32 s28, s28, 1024")
        a("s_waitcnt vmcnt(0)")
    a("v_lshl_add_u32 v4, v1, 4, s30")
    for i in range(5):
        a(f"ds_read_b128 v[8:11], v4 offset:{i*1024}")
        a("s_waitcnt lgkmcnt(0)")
        a(f"buffer_store_dwordx4 v[8:11], v5, s[{SRD_WS}:{SRD_WS+3}], s28 offen")
        a("s_add_u32 s28, s28, 1024")
        a("s_waitcnt vmcnt(0)")

def gen_conv(a, typ):
    CS = [7, 6, 5, 1] if typ == 0 else [4, 3, 2, 0]
    NA = max(CS) + 1
    tag = f"cv{typ}"
    ACC = 16
    FR = 64
    AB = 8
    UB = 12
    def af(st, aa): return FR + 64*st + 4*aa
    def bf(st, e): return FR + 64*st + 32 + 4*e
    a("v_and_b32 v1, 63, v0")
    a("v_and_b32 v2, 15, v1")
    a("v_lshrrev_b32 v3, 4, v1")
    a("s_lshl_b32 s28, s7, 1")
    a("v_mov_b32 v4, s28")
    a(f"global_load_ushort v32, v4, s[{ptr(I_DSK)}:{ptr(I_DSK)+1}]")
    a("s_mul_i32 s29, s6, 8320")
    a(f"s_add_u32 s29, s29, {L2_EO + 4*1016 + EO_O}")
    a("v_add_u32 v4, 1, v2")
    a("v_lshrrev_b32 v4, 1, v4")
    a("v_lshlrev_b32 v5, 2, v3")
    a("v_sub_u32 v5, v5, v4")
    a("v_lshl_add_u32 v5, v5, 2, s29")
    a("v_and_b32 v4, 1, v2")
    a(f"v_mul_u32_u24 v4, {EO_O}, v4")
    a("v_sub_u32 v5, v5, v4")
    for b in range((NA+1)//2):
        a(f"v_subrev_u32 v{AB+b}, {512*(2*b+1)}, v5")
    a("v_lshlrev_b32 v4, 5, v2")
    a("v_lshl_add_u32 v4, v3, 4, v4")
    a(f"s_add_u32 s28, s30, {SIDE_U + 480}")
    a(f"v_add_u32 v{UB}, s28, v4")
    for i in range(16):
        a(f"v_mov_b32 v{ACC+i}, 0")
    def reads(st):
        r = []
        for x in range(NA):
            o = 128 if x % 2 == 0 else 0
            r.append(f"ds_read2_b32 {vr(af(st,x),2)}, v{AB+x//2} offset0:{o} offset1:{o+1}")
            r.append(f"ds_read2_b32 {vr(af(st,x)+2,2)}, v{AB+x//2} offset0:{o+2} offset1:{o+3}")
            r.append(f"ds_read_b128 {vr(bf(st,x),4)}, v{UB} offset:{512*x}")
        return r
    def adv():
        r = [f"v_subrev_u32 v{AB+b}, 64, v{AB+b}" for b in range((NA+1)//2)]
        r.append(f"v_subrev_u32 v{UB}, 64, v{UB}")
        return r
    def mf(st):
        lists = [[(ti, aa, c-aa) for aa in range(c+1)] for ti, c in enumerate(CS)]
        r = []
        while any(lists):
            for l in lists:
                if l:
                    ti, aa, e = l.pop(0)
                    d = ACC + 4*ti
                    r.append(f"v_mfma_f32_16x16x32_bf16 {vr(d,4)}, {vr(af(st,aa),4)}, {vr(bf(st,e),4)}, {vr(d,4)}")
        return r
    for r in reads(0): a(r)
    for r in adv(): a(r)
    a("s_mov_b32 s28, 4")
    a.label(f"L_{tag}_loop")
    for st in range(2):
        a("s_waitcnt lgkmcnt(0)")
        M = mf(st); R = reads(1-st) + adv()
        per = -(-len(R)//len(M))
        for i, m in enumerate(M):
            a(m)
            for _ in range(per):
                if R: a(R.pop(0))
        assert not R
    a("s_sub_u32 s28, s28, 1")
    a("s_cmp_lg_u32 s28, 0")
    a(f"s_cbranch_scc1 L_{tag}_loop")
    a("v_lshlrev_b32 v4, 5, v2")
    a("v_lshl_add_u32 v4, v3, 3, v4")
    a(f"s_add_u32 s28, s30, {SIDE_U + 512}")
    a("v_add_u32 v5, s28, v4")
    a("s_waitcnt lgkmcnt(0)")
    UU = 40
    for ti, c in enumerate(CS):
        a(f"ds_read_b64 {vr(UU+2*ti,2)}, v5 offset:{512*c}")
    a("s_mov_b32 s31, 0xffff0000")
    a("s_waitcnt vmcnt(0)")
    a("v_lshlrev_b32 v32, 16, v32")
    a("v_lshlrev_b32 v6, 5, v2")
    a("v_lshrrev_b32 v7, 1, v3")
    a("v_lshl_add_u32 v6, v7, 4, v6")
    a("v_and_b32 v7, 1, v3")
    a("s_lshl_b32 s28, s7, 12")
    a(f"s_add_u32 s28, s28, {WS_A}")
    a("s_waitcnt lgkmcnt(0)")
    X = 48
    for ti in range(4):
        for h in range(2):
            a(f"v_lshlrev_b32 v{X}, 16, v{UU+2*ti+h}")
            a(f"v_and_b32 v{X+1}, s31, v{UU+2*ti+h}")
            a(f"v_fmac_f32 v{ACC+4*ti+2*h}, v{X}, v32")
            a(f"v_fmac_f32 v{ACC+4*ti+2*h+1}, v{X+1}, v32")
    P = 52
    for pr in range(2):
        t1, t2 = 2*pr, 2*pr+1
        p = P + 4*pr
        a(f"v_cvt_pk_bf16_f32 v{p}, v{ACC+4*t1}, v{ACC+4*t1+1}")
        a(f"v_cvt_pk_bf16_f32 v{p+1}, v{ACC+4*t1+2}, v{ACC+4*t1+3}")
        a(f"v_cvt_pk_bf16_f32 v{p+2}, v{ACC+4*t2}, v{ACC+4*t2+1}")
        a(f"v_cvt_pk_bf16_f32 v{p+3}, v{ACC+4*t2+2}, v{ACC+4*t2+3}")
        d = (CS[t2] - CS[t1]) * 512
        a(f"v_mul_i32_i24 v{X+pr}, {d & 0xffffffff if d >= 0 else d}, v7")
        a(f"v_add3_u32 v{X+pr}, v{X+pr}, v6, 0")
        a(f"v_add_u32 v{X+pr}, {CS[t1]*512}, v{X+pr}")
        a(f"v_permlane16_swap_b32 v{p}, v{p+2}")
        a(f"v_permlane16_swap_b32 v{p+1}, v{p+3}")
        a(f"buffer_store_dwordx4 {vr(p,4)}, v{X+pr}, s[{SRD_WS}:{SRD_WS+3}], s28 offen sc1")
    wait_valid(a, tag)
    a("s_lshl_b32 s28, s7, 3")
    a(f"s_add_u32 s28, s28, {WS_FA + 4*typ}")
    a("v_mov_b32 v3, 1")
    a("v_mov_b32 v4, 0")
    a("s_waitcnt vmcnt(0)")
    a("s_mov_b64 exec, 1")
    a(f"buffer_store_dword v3, v4, s[{SRD_WS}:{SRD_WS+3}], s28 offen sc1")
    a("s_mov_b64 exec, -1")

def w2_voffs(a, V):
    a("v_lshrrev_b32 v2, 3, v1")
    a("v_and_b32 v3, 7, v1")
    a("v_bfe_u32 v4, v1, 4, 2")
    a("v_lshlrev_b32 v4, 1, v4")
    a("v_xor_b32 v3, v3, v4")
    a("v_lshlrev_b32 v2, 10, v2")
    a(f"v_lshl_add_u32 v{V}, v3, 4, v2")
    for k in range(1, 4):
        a(f"v_add_u32 v{V+k}, {k*7168}, v{V}")

def g2_map(a):
    a("s_and_b32 s4, s2, 7")
    a("s_lshl_b32 s4, s4, 2")
    a("s_lshr_b32 s5, s2, 3")
    a("s_and_b32 s28, s5, 3")
    a("s_add_u32 s4, s4, s28")
    a("s_lshr_b32 s5, s5, 2")

def gen_w2pre(a):
    V = 8
    g2_map(a)
    a("v_and_b32 v1, 63, v0")
    w2_voffs(a, V)
    a(f"v_mov_b32 v17, {FL_FREE}")
    a.label("L_w2_waitring")
    a("ds_read_b128 v[20:23], v17")
    a("s_waitcnt lgkmcnt(0)")
    a("v_min_u32 v20, v20, v21")
    a("v_min3_u32 v20, v20, v22, v23")
    a("s_nop 0")
    a("v_readfirstlane_b32 s28, v20")
    a("s_cmp_lt_u32 s28, 8")
    a("s_cbranch_scc1 L_w2_waitring")
    a(f"s_mul_i32 s28, s6, {28*32768}")
    a("s_lshl_b32 s29, s5, 7")
    a("s_add_u32 s28, s28, s29")
    a(f"s_mul_i32 s29, s6, {2*28672}")
    a(f"s_add_u32 s29, s29, {L2_W2}")
    a("s_mov_b32 s31, 14")
    a.label("L_w2_loop")
    a("s_mov_b32 m0, s29")
    a("s_add_u32 s29, s29, 4096")
    for k in range(4):
        a(f"buffer_load_dwordx4 v{V+k}, s[{SRD_W2}:{SRD_W2+3}], s28 offen offset:{k*1024} lds")
    a("s_add_u32 s28, s28, 65536")
    a("s_sub_u32 s31, s31, 1")
    a("s_cmp_lg_u32 s31, 0")
    a("s_cbranch_scc1 L_w2_loop")
    a("s_lshl_b32 s28, s6, 2")
    a(f"s_add_u32 s29, s28, {FL_W2}")
    a("v_mov_b32 v16, s29")
    a("v_mov_b32 v18, 1")
    a(f"s_add_u32 s29, s28, {FL_EO}")
    a("v_mov_b32 v17, s29")
    a("s_waitcnt vmcnt(0)")
    a("ds_write_b32 v16, v18")
    a("s_lshl_b32 s7, s2, 1")
    a("s_add_u32 s7, s7, s6")
    a("s_lshl_b32 s30, s6, 13")
    a(f"s_add_u32 s30, s30, {L_SIDE}")
    a.label("L_w2_waiteo")
    a("ds_read_b32 v20, v17")
    a("s_waitcnt lgkmcnt(0)")
    a("v_readfirstlane_b32 s28, v20")
    a("s_cmp_eq_u32 s28, 0")
    a("s_cbranch_scc1 L_w2_waiteo")

def gen_g2(a):
    ACC = 192; HF = 64; WF = 32; VW = 8; VH = 12; WA = 16
    def acc(nu, m): return ACC + 4*(nu*4+m)
    def hf(i, m): return HF + 16*i + 4*m
    def wf(nu): return WF + 4*nu
    g2_map(a)
    a("v_and_b32 v1, 63, v0")
    w2_voffs(a, VW)
    a(f"v_lshlrev_b32 v{VH}, 4, v1")
    for m in range(1, 4):
        a(f"v_add_u32 v{VH+m}, {m*57344}, v{VH}")
    a("v_bfe_u32 v2, v1, 2, 2")
    a("v_and_b32 v3, 3, v1")
    a("v_lshrrev_b32 v4, 4, v1")
    a("v_lshl_add_u32 v6, v4, 2, v2")
    a("v_lshlrev_b32 v6, 7, v6")
    a("v_lshl_add_u32 v6, v3, 3, v6")
    a(f"s_mul_i32 s29, s3, 28672")
    a(f"s_add_u32 s29, s29, {L2_W2}")
    a("v_add_u32 v6, s29, v6")
    a("v_lshrrev_b32 v7, 1, v2")
    a("v_and_b32 v4, 1, v4")
    a("v_lshl_or_b32 v7, v4, 1, v7")
    for nu in range(4):
        a(f"v_xor_b32 v5, {nu}, v7")
        a(f"v_lshl_add_u32 v{WA+nu}, v5, 5, v6")
    for i in range(0, 64, 2):
        a(f"v_pk_mul_f32 {vr(ACC+i,2)}, 0, 0")
    a(f"s_mul_i32 s30, s4, {4*57344}")
    a(f"s_mul_i32 s31, s3, {14*1024}")
    a("s_add_u32 s30, s30, s31")
    a(f"s_mul_i32 s31, s3, {14*32768}")
    a("s_lshl_b32 s32, s5, 7")
    a("s_add_u32 s31, s31, s32")
    a("s_add_u32 s31, s31, 32768")
    a("s_lshl_b32 s32, s4, 7")
    a("s_mul_i32 s33, s3, 28")
    a("s_add_u32 s32, s32, s33")
    a(f"s_add_u32 s32, s32, {WS_FH}")
    a("v_min_u32 v2, 6, v1")
    a("v_lshlrev_b32 v2, 2, v2")
    a.label("L_g2_poll")
    a(f"buffer_load_dword v3, v2, s[{SRD_WS}:{SRD_WS+3}], s32 offen sc1")
    a("s_waitcnt vmcnt(0)")
    a("v_cmp_ne_u32 vcc, 1, v3")
    a("s_nop 4")
    a("s_cbranch_vccnz L_g2_poll")
    stamp(a, 6)
    for i in range(7):
        for m in range(4):
            a(f"buffer_load_dwordx4 {vr(hf(i,m),4)}, v{VH+m}, s[{SRD_WS}:{SRD_WS+3}], s30 offen sc1")
        a("s_add_u32 s30, s30, 2048")
    a(f"s_sub_u32 s30, s30, {7*2048 - 1024}")
    a("s_lshr_b32 s33, s3, 1")
    a("s_lshl_b32 s33, s33, 2")
    a(f"s_add_u32 s33, s33, {FL_W2}")
    a("v_mov_b32 v2, s33")
    a.label("L_g2_w2w")
    a("ds_read_b32 v3, v2")
    a("s_waitcnt lgkmcnt(0)")
    a("v_readfirstlane_b32 s33, v3")
    a("s_cmp_eq_u32 s33, 0")
    a("s_cbranch_scc1 L_g2_w2w")
    for np_ in range(2):
        for i in range(7):
            n = (24 + 4*i) if np_ == 0 else (48 - 8*i)
            if np_ == 1:
                a(f"s_waitcnt vmcnt({n})")
            for nu in range(4):
                for h in range(2):
                    a(f"ds_read_b64_tr_b16 {vr(wf(nu)+2*h,2)}, v{WA+nu} offset:{i*4096+h*2048}")
            if np_ == 0:
                a(f"s_waitcnt vmcnt({n})")
            for nu in range(4):
                a(f"s_waitcnt lgkmcnt({6-2*nu})")
                for m in range(4):
                    d = acc(nu, m)
                    a(f"v_mfma_f32_16x16x32_bf16 {vr(d,4)}, {vr(wf(nu),4)}, {vr(hf(i,m),4)}, {vr(d,4)}")
            if np_ == 0:
                a(f"s_add_u32 m0, s29, {i*4096}")
                for m in range(4):
                    a(f"buffer_load_dwordx4 {vr(hf(i,m),4)}, v{VH+m}, s[{SRD_WS}:{SRD_WS+3}], s30 offen sc1")
                for k in range(4):
                    a(f"buffer_load_dwordx4 v{VW+k}, s[{SRD_W2}:{SRD_W2+3}], s31 offen offset:{k*1024} lds")
                a("s_add_u32 s30, s30, 2048")
                a("s_add_u32 s31, s31, 65536")
    stamp(a, 7)
    a("s_lshl_b32 s32, s5, 9")
    a("s_lshl_b32 s33, s3, 7")
    a("s_add_u32 s32, s32, s33")
    a(f"s_add_u32 s32, s32, {WS_FA}")
    a("v_and_b32 v2, 31, v1")
    a("v_lshlrev_b32 v2, 2, v2")
    a.label("L_g2_polla")
    a(f"buffer_load_dword v3, v2, s[{SRD_WS}:{SRD_WS+3}], s32 offen sc1")
    a("s_waitcnt vmcnt(0)")
    a("v_cmp_ne_u32 vcc, 1, v3")
    a("s_nop 4")
    a("s_cbranch_vccnz L_g2_polla")
    a("v_lshrrev_b32 v2, 3, v1")
    a("v_and_b32 v3, 7, v1")
    a("v_bfe_u32 v4, v1, 4, 2")
    a("v_lshlrev_b32 v4, 1, v4")
    a("v_xor_b32 v3, v3, v4")
    a("v_lshlrev_b32 v2, 12, v2")
    a("v_lshl_add_u32 v2, v3, 4, v2")
    a(f"v_add_u32 v3, {8*4096-1024}, v2")
    a("s_lshl_b32 s32, s5, 18")
    a("s_lshl_b32 s33, s3, 16")
    a("s_add_u32 s32, s32, s33")
    a("s_lshl_b32 s33, s4, 7")
    a("s_add_u32 s32, s32, s33")
    a(f"s_add_u32 s32, s32, {WS_A}")
    a("s_lshl_b32 s33, s3, 11")
    a(f"s_add_u32 m0, s33, {L2_AT}")
    a("s_nop 0")
    a(f"buffer_load_dwordx4 v2, s[{SRD_WS}:{SRD_WS+3}], s32 offen sc1 lds")
    a(f"buffer_load_dwordx4 v3, s[{SRD_WS}:{SRD_WS+3}], s32 offen offset:1024 sc1 lds")
    a("v_and_b32 v4, 15, v1")
    a("v_lshlrev_b32 v4, 3, v4")
    a("s_lshl_b32 s32, s4, 9")
    a("s_lshl_b32 s33, s3, 7")
    a("s_add_u32 s32, s32, s33")
    a(f"s_add_u32 s32, s32, {WS_G}")
    a(f"buffer_load_dwordx2 v[20:21], v4, s[{SRD_WS}:{SRD_WS+3}], s32 offen sc1")
    a("v_lshl_add_u32 v5, v1, 4, s29")
    for m in range(4):
        for nu in range(4):
            a(f"ds_write_b128 v5, {vr(acc(nu,m),4)} offset:{(m*4+nu)*1024}")
    a("s_lshl_b32 s33, s3, 12")
    a(f"s_add_u32 s33, s33, {L2_W2}")
    a("v_lshl_add_u32 v6, v1, 4, s33")
    a(f"v_add_u32 v7, {2*28672}, v6")
    a("v_bfe_u32 v2, v1, 2, 2")
    a("v_and_b32 v3, 3, v1")
    a("v_lshrrev_b32 v4, 4, v1")
    a("v_lshl_add_u32 v8, v4, 2, v2")
    a("v_lshlrev_b32 v8, 7, v8")
    a("v_lshl_add_u32 v8, v3, 3, v8")
    a("v_lshrrev_b32 v9, 1, v2")
    a("v_and_b32 v4, 1, v4")
    a("v_lshl_or_b32 v9, v4, 1, v9")
    a("v_xor_b32 v9, s3, v9")
    a("v_lshl_add_u32 v8, v9, 5, v8")
    a(f"v_add_u32 v8, {L2_AT}, v8")
    a("s_waitcnt vmcnt(0) lgkmcnt(0)")
    a("s_barrier")
    R = 64
    for ww in range(4):
        for nu in range(4):
            a(f"ds_read_b128 {vr(R+16*ww+4*nu,4)}, v{6 + ww//2} offset:{(ww%2)*28672 + nu*1024}")
    AT = 32
    for nu in range(4):
        a(f"ds_read_b64_tr_b16 {vr(AT+2*nu,2)}, v8 offset:{nu*2048}")
    a("s_mov_b32 s31, 0xffff0000")
    a("v_and_b32 v2, 15, v1")
    a("v_lshlrev_b32 v2, 10, v2")
    a("v_lshrrev_b32 v3, 4, v1")
    a("v_lshl_add_u32 v2, v3, 4, v2")
    a("s_lshl_b32 s32, s4, 16")
    a("s_lshl_b32 s33, s3, 14")
    a("s_add_u32 s32, s32, s33")
    a("s_lshl_b32 s33, s5, 7")
    a("s_add_u32 s32, s32, s33")
    a("s_waitcnt lgkmcnt(12)")
    for i in range(0, 16, 2):
        a(f"v_pk_add_f32 {vr(R+i,2)}, {vr(R+i,2)}, {vr(R+16+i,2)}")
    a("s_waitcnt lgkmcnt(4)")
    for i in range(0, 16, 2):
        a(f"v_pk_add_f32 {vr(R+32+i,2)}, {vr(R+32+i,2)}, {vr(R+48+i,2)}")
    for i in range(0, 16, 2):
        a(f"v_pk_add_f32 {vr(R+i,2)}, {vr(R+i,2)}, {vr(R+32+i,2)}")
    for i in range(0, 16, 2):
        a(f"v_pk_mul_f32 {vr(R+i,2)}, {vr(R+i,2)}, v[20:21] op_sel:[0,1] op_sel_hi:[1,1]")
    a("s_waitcnt lgkmcnt(0)")
    for i in range(8):
        a(f"v_lshlrev_b32 v40, 16, v{AT+i}")
        a(f"v_and_b32 v41, s31, v{AT+i}")
        a(f"v_fmac_f32 v{R+2*i}, v40, v20")
        a(f"v_fmac_f32 v{R+2*i+1}, v41, v20")
    P = 44
    for pr in range(2):
        p = P + 4*pr
        n0, n1 = 2*pr, 2*pr+1
        a(f"v_cvt_pk_bf16_f32 v{p}, v{R+4*n0}, v{R+4*n0+1}")
        a(f"v_cvt_pk_bf16_f32 v{p+1}, v{R+4*n0+2}, v{R+4*n0+3}")
        a(f"v_cvt_pk_bf16_f32 v{p+2}, v{R+4*n1}, v{R+4*n1+1}")
        a(f"v_cvt_pk_bf16_f32 v{p+3}, v{R+4*n1+2}, v{R+4*n1+3}")
        a("s_nop 1")
        a(f"v_permlane32_swap_b32 v{p}, v{p+2}")
        a(f"v_permlane32_swap_b32 v{p+1}, v{p+3}")
        a("s_nop 1")
        a(f"v_permlane16_swap_b32 v{p}, v{p+2}")
        a(f"v_permlane16_swap_b32 v{p+1}, v{p+3}")
        a(f"buffer_store_dwordx4 {vr(p,4)}, v2, s[{SRD_OUT}:{SRD_OUT+3}], s32 offen offset:{64*pr}")

def gen_kernel(a):
    a.raw(f".globl {KNAME}\n.p2align 8\n.type {KNAME},@function")
    a.label(KNAME)
    a(f"s_load_dwordx16 s[{P0}:{P0+15}], s[0:1], 0")
    a(f"s_load_dwordx16 s[{P0+16}:{P0+31}], s[0:1], 64")
    a(f"s_load_dwordx2 s[{P0+32}:{P0+33}], s[0:1], 128")
    a("s_cmp_ge_u32 s2, 256")
    a("s_cbranch_scc1 L_end")
    stamp(a, 0)
    a("v_lshrrev_b32 v1, 6, v0")
    a("s_and_b32 s6, s2, 7")
    a("v_readfirstlane_b32 s3, v1")
    a("s_lshr_b32 s7, s2, 3")
    a("s_and_b32 s4, s6, 1")
    a("s_lshl_b32 s4, s4, 2")
    a("s_and_b32 s30, s7, 3")
    a("s_add_u32 s4, s4, s30")
    a("s_lshr_b32 s5, s6, 1")
    a("s_mul_i32 s5, s5, 7")
    a("s_lshr_b32 s30, s7, 2")
    a("s_add_u32 s5, s5, s30")
    gen_loader_setup(a)
    a("s_waitcnt lgkmcnt(0)")
    a("s_mov_b32 s0, 0x100000")
    srd(a, SRD_X, ptr(I_U), 2048*512*2)
    a("s_cmp_eq_u32 s3, 5")
    a(f"s_cselect_b32 s{SRD_W}, s{ptr(I_W3)}, s{ptr(I_W1)}")
    a(f"s_cselect_b32 s{SRD_W+1}, s{ptr(I_W3)+1}, s{ptr(I_W1)+1}")
    a(f"s_and_b32 s{SRD_W+1}, s{SRD_W+1}, 0xffff")
    a(f"s_mov_b32 s{SRD_W+2}, {512*1792*2}")
    a(f"s_mov_b32 s{SRD_W+3}, 0x00020000")
    srd(a, SRD_WS, ptr(I_WS), WS_SIZE)
    srd(a, SRD_W2, ptr(I_W2), 1792*512*2)
    srd(a, SRD_OUT, ptr(I_OUT), 2048*512*2)
    a("s_cmp_ge_u32 s3, 6")
    a("s_cbranch_scc1 L_kgen")
    a("s_cmp_ge_u32 s2, 224")
    a("s_cbranch_scc1 L_spare")
    a("s_cmp_lt_u32 s3, 4")
    a("s_cbranch_scc1 L_g1")
    gen_loader(a)
    a.label("L_ph2_loader")
    gen_w2pre(a)
    stamp(a, 3)
    gen_conv(a, 1)
    stamp(a, 4)
    stamp_flush(a, 5)
    a("s_endpgm")
    a.label("L_g1")
    gen_g1(a)
    a.label("L_g2")
    gen_g2(a)
    if "stamps" in OPT:
        a("s_waitcnt vmcnt(0)")
        a(f"s_memtime s[{ST0+4}:{ST0+5}]")
        a(f"s_memrealtime s[{ST0+6}:{ST0+7}]")
    stamp_flush(a, 8)
    a("s_endpgm")
    a.label("L_spare")
    gen_spare(a)
    a.label("L_kgen")
    gen_kgen(a)
    gen_kgen_tail(a)
    stamp(a, 2)
    gen_conv(a, 0)
    stamp(a, 3)
    stamp_flush(a, 4)
    a.label("L_end")
    a("s_endpgm")

def gen_spare(a):
    a("s_cmp_lt_u32 s3, 4")
    a("s_cbranch_scc1 L_tr")
    a("s_sub_u32 s6, s3, 4")
    a("s_barrier")
    a("s_cmp_lg_u32 s2, 255")
    a("s_cbranch_scc1 L_sp_done")
    a("s_cmp_lg_u32 s3, 4")
    a("s_cbranch_scc1 L_sp_done")
    for i in range(4):
        a(f"v_mov_b32 v{4+i}, 0")
    a("v_lshlrev_b32 v2, 4, v1")
    a(f"s_mov_b32 s28, {WS_FH}")
    for i in range((WS_FEND - WS_FH)//4096):
        for j in range(4):
            a(f"buffer_store_dwordx4 v[4:7], v2, s[{SRD_WS}:{SRD_WS+3}], s28 offen offset:{j*1024} sc1")
        a("s_add_u32 s28, s28, 4096")
    a("v_mov_b32 v3, 1")
    a("s_waitcnt vmcnt(0)")
    a("s_mov_b64 exec, 1")
    a(f"global_store_dword v4, v3, s[{ptr(I_DBG)}:{ptr(I_DBG)+1}] sc1")
    a("s_mov_b64 exec, -1")
    a.label("L_sp_done")
    a("s_branch L_ph2_loader")
    a.label("L_tr")
    gen_transpose(a)

TR_RS = 1056
def gen_transpose(a):
    X = 64
    GW = 16
    a("s_sub_u32 s6, s2, 224")
    a("s_lshl_b32 s7, s6, 2")
    a("s_add_u32 s7, s7, s3")
    a("s_lshl_b32 s28, s7, 14")
    a("v_lshlrev_b32 v2, 4, v1")
    a(f"global_load_dwordx4 {vr(GW,4)}, v2, s[{ptr(I_GW)}:{ptr(I_GW)+1}]")
    for r in range(16):
        a(f"buffer_load_dwordx4 {vr(X+4*r,4)}, v2, s[{SRD_X}:{SRD_X+3}], s28 offen offset:{(r%4)*1024}")
        if r % 4 == 3: a("s_add_u32 s28, s28, 4096")
    a(f"s_mul_i32 s29, s3, {16*TR_RS}")
    a("v_add_u32 v3, s29, v2")
    a("s_mov_b32 s31, 0xffff0000")
    a("s_mov_b32 s32, 0x3f803f80")
    a("s_waitcnt vmcnt(16)")
    for i in range(4):
        a(f"v_lshlrev_b32 v{20+2*i}, 16, v{GW+i}")
        a(f"v_and_b32 v{21+2*i}, s31, v{GW+i}")
    S = 128
    for r in range(16):
        a(f"s_waitcnt vmcnt({15-r})")
        a(f"ds_write_b128 v3, {vr(X+4*r,4)} offset:{r*TR_RS}")
    for r in range(16):
        T = 32 + 8*(r & 1)
        for i in range(4):
            a(f"v_lshlrev_b32 v{T+2*i}, 16, v{X+4*r+i}")
            a(f"v_and_b32 v{T+2*i+1}, s31, v{X+4*r+i}")
        for i in range(4):
            a(f"v_pk_mul_f32 {vr(T+2*i,2)}, {vr(T+2*i,2)}, {vr(20+2*i,2)}")
        for i in range(4):
            a(f"v_cvt_pk_bf16_f32 v{T+2*i}, v{T+2*i}, v{T+2*i+1}")
        for i in range(4):
            a(f"v_and_b32 v{T+2*i+1}, s31, v{T+2*i}")
            a(f"v_lshlrev_b32 v{T+2*i}, 16, v{T+2*i}")
        a(f"v_pk_add_f32 {vr(T,2)}, {vr(T,2)}, {vr(T+2,2)}")
        a(f"v_pk_add_f32 {vr(T+4,2)}, {vr(T+4,2)}, {vr(T+6,2)}")
        a(f"v_pk_add_f32 {vr(T,2)}, {vr(T,2)}, {vr(T+4,2)}")
        a(f"v_add_f32 v{S+r}, v{T}, v{T+1}")
        if r == 0:
            a("s_barrier")
            a("s_lshl_b32 s29, s3, 2")
            a(f"s_add_u32 s29, s29, {FL_TR}")
            a("v_mov_b32 v8, s29")
            a("v_mov_b32 v9, 1")
            a("s_waitcnt lgkmcnt(0)")
            a("ds_write_b32 v8, v9")
    lds_wait4(a, FL_TR, 1, "tr1")
    a("v_bfe_u32 v4, v1, 2, 2")
    a("v_lshrrev_b32 v5, 4, v1")
    a("v_lshl_add_u32 v4, v5, 3, v4")
    a(f"v_mul_u32_u24 v4, {TR_RS}, v4")
    a("v_and_b32 v6, 3, v1")
    a("v_lshl_add_u32 v4, v6, 3, v4")
    a("s_lshl_b32 s29, s3, 8")
    a("v_add_u32 v4, s29, v4")
    a("v_and_b32 v6, 15, v1")
    a("v_lshlrev_b32 v6, 12, v6")
    a("v_lshl_add_u32 v6, v5, 4, v6")
    a("s_lshl_b32 s28, s3, 19")
    a("s_lshl_b32 s29, s6, 7")
    a("s_add_u32 s28, s28, s29")
    a(f"s_add_u32 s28, s28, {WS_UT}")
    O = 64
    n = 0
    for dt in range(8):
        for kh in range(2):
            for h in range(2):
                a(f"ds_read_b64_tr_b16 {vr(O+4*n+2*h,2)}, v4 offset:{(32*kh+4*h)*TR_RS + dt*32}")
            n += 1
    n = 0
    for dt in range(8):
        for kh in range(2):
            a(f"s_waitcnt lgkmcnt({min(15, 2*(15-n))})")
            a(f"buffer_store_dwordx4 {vr(O+4*n,4)}, v6, s[{SRD_WS}:{SRD_WS+3}], s28 offen offset:{kh*64} sc1")
            n += 1
        a(f"s_add_u32 s28, s28, {16*4096}")
    for i in range(8):
        a(f"v_permlane32_swap_b32 v{S+i}, v{S+8+i}")
    for i in range(8):
        a(f"v_add_f32 v{S+i}, v{S+i}, v{S+8+i}")
    a("s_nop 1")
    for i in range(4):
        a(f"v_permlane16_swap_b32 v{S+i}, v{S+4+i}")
    for i in range(4):
        a(f"v_add_f32 v{S+i}, v{S+i}, v{S+4+i}")
    for sh in (8, 4, 2, 1):
        a("s_nop 0")
        for i in range(4):
            a(f"v_add_f32_dpp v{S+i}, v{S+i}, v{S+i} row_ror:{sh} row_mask:0xf bank_mask:0xf")
    a("v_and_b32 v7, 3, v1")
    for i in range(1, 4):
        a(f"v_cmp_eq_u32 vcc, {i}, v7")
        a("s_nop 1")
        a(f"v_cndmask_b32 v{S}, v{S}, v{S+i}, vcc")
    a(f"v_cvt_pk_bf16_f32 v{S}, v{S}, v{S}")
    a(f"v_and_b32 v{S}, s31, v{S}")
    a(f"v_mul_f32 v{S}, {f2u(-LOG2E)}, v{S}")
    a(f"v_exp_f32 v{S}, v{S}")
    a("s_nop 0")
    a(f"v_add_f32 v{S}, 1.0, v{S}")
    a(f"v_rcp_f32 v{S}, v{S}")
    a("s_nop 0")
    a(f"v_cvt_pk_bf16_f32 v{S}, v{S}, v{S}")
    a(f"v_and_b32 v{S}, s31, v{S}")
    a(f"v_sub_f32 v{S+1}, 1.0, v{S}")
    a(f"v_cvt_pk_bf16_f32 v{S+1}, v{S+1}, v{S+1}")
    a(f"v_and_b32 v{S+1}, s31, v{S+1}")
    a("v_lshl_add_u32 v7, v5, 2, v7")
    a("v_lshlrev_b32 v7, 3, v7")
    a("s_lshl_b32 s28, s7, 7")
    a(f"s_add_u32 s28, s28, {WS_G}")
    a("s_mov_b32 s34, 0x000f000f")
    a("s_mov_b32 s35, 0x000f000f")
    a("s_mov_b64 exec, s[34:35]")
    a(f"buffer_store_dwordx2 {vr(S,2)}, v7, s[{SRD_WS}:{SRD_WS+3}], s28 offen sc1")
    a("s_mov_b64 exec, -1")
    a("v_mov_b32 v10, 8")
    a(f"ds_write_b32 v8, v10 offset:{FL_FREE - FL_TR + 65536 if False else 0}") if False else None
    a(f"v_subrev_u32 v11, {FL_TR - FL_FREE}, v8")
    a("ds_write_b32 v11, v10")
    a("s_waitcnt vmcnt(0)")
    a(f"ds_write_b32 v8, v9 offset:{FL_TR2 - FL_TR}")
    a("s_cmp_lg_u32 s3, 0")
    a("s_cbranch_scc1 L_tr_nopub")
    lds_wait4(a, FL_TR2, 1, "tr2")
    a("v_mov_b32 v3, 1")
    a("v_mov_b32 v4, 0")
    a("s_mov_b64 exec, 1")
    a(f"global_atomic_add v4, v3, s[{ptr(I_DBG)}:{ptr(I_DBG)+1}] offset:4 sc1")
    a("s_mov_b64 exec, -1")
    a.label("L_tr_nopub")
    wait_valid(a, "tr")
    a("s_branch L_g2")

def kd(name, vgpr, sgpr=102):
    return f""".p2align 6
.amdhsa_kernel {name}
  .amdhsa_next_free_vgpr {vgpr}
  .amdhsa_next_free_sgpr {sgpr}
  .amdhsa_accum_offset {vgpr}
  .amdhsa_group_segment_fixed_size 0
  .amdhsa_kernarg_size 136
  .amdhsa_user_sgpr_count 2
  .amdhsa_user_sgpr_kernarg_segment_ptr 1
  .amdhsa_system_sgpr_workgroup_id_x 1
.end_amdhsa_kernel"""

def main():
    out = sys.argv[1] if len(sys.argv) > 1 else "k.s"
    if len(sys.argv) > 2:
        OPT.update(sys.argv[2].split(","))
    a = Asm()
    a.raw(f"; @launch grid=(256,1,1) block=(512,1,1) lds={LDS_SIZE}")
    a.raw('.amdgcn_target "amdgcn-amd-amdhsa--gfx950"')
    a.raw(".text")
    gen_kernel(a)
    a.raw('.section .rodata,"a"')
    a.raw(kd(KNAME, 256))
    open(out, "w").write(a.text())

if __name__ == "__main__":
    main()
```

```python
import sys, struct, math

KNAME = "gated_mix__ssm_conv_s4__glu_gated_swiglu__prompt_kernel"
OPT = set()

def f2u(x):
    return struct.unpack("<I", struct.pack("<f", x))[0]

import re
def est_size(s):
    m = s.split()[0]
    lit = 0
    for tok in re.findall(r"(?<![\w\[:])(-?(?:0x[0-9a-fA-F]+|\d+))(?![\w\]:.])", s.split(None, 1)[1] if " " in s else ""):
        v = int(tok, 0)
        if not (-16 <= v <= 64): lit = 4
    if m.startswith(("ds_", "buffer_", "global_", "v_mfma", "v_pk_", "s_load", "s_mem")): return 8
    if m.startswith("s_"):
        if m in ("s_waitcnt", "s_nop", "s_sleep", "s_branch", "s_barrier", "s_setprio", "s_endpgm") or m.startswith("s_cbranch"): return 4
        return 4 + lit
    if m in ("v_fma_f32", "v_lshl_add_u32", "v_lshl_or_b32", "v_add3_u32", "v_bfe_u32", "v_min3_u32", "v_cvt_pk_bf16_f32", "v_perm_b32",
             "v_alignbit_b32", "v_and_or_b32", "v_mul_lo_u32") or "dpp" in m or "-v" in s: return 8
    return 4 + lit

HOP = 56
class Asm:
    def __init__(self):
        self.L = []
        self.walk = None
    def _hop(self):
        name, k, _ = self.walk
        self.L.append(f"Lh_{name}_{k}:")
        self.L.append(f"    s_cbranch_execz Lh_{name}_{k+1}")
        self.walk = [name, k+1, 4]
    def walk_begin(self, name):
        if "nowalk" in OPT: return
        self.walk = [name, 0, 0]
        self._hop()
    def walk_end(self, to="L_walk_ret"):
        if "nowalk" in OPT: return
        name, k, _ = self.walk
        self.L.append(f"Lh_{name}_{k}:")
        self.L.append(f"    s_cbranch_execz {to}")
        self.walk = None
    def __call__(self, s):
        self.L.append("    " + s)
        if self.walk is not None:
            self.walk[2] += est_size(s)
            if self.walk[2] >= HOP:
                self._hop()
    def label(self, s):
        self.L.append(s + ":")
    def spin(self, s, sleep=0):
        self.L.append(s + ":")
        self("s_sub_u32 s0, s0, 1")
        self("s_cbranch_scc1 L_end")
        if sleep:
            self(f"s_sleep {sleep}")
    def raw(self, s):
        self.L.append(s)
    def text(self):
        return "\n".join(self.L) + "\n"

RET = 34
def walk(a, label):
    if "nowalk" in OPT: return
    a("s_mov_b64 exec, 0")
    a(f"s_call_b64 s[{RET}:{RET+1}], {label}")
    a("s_mov_b64 exec, -1")

def vr(b, n):
    return f"v[{b}:{b+n-1}]" if n > 1 else f"v{b}"

class VM:
    def __init__(self, a):
        self.a = a; self.q = []
    def op(self, s, tag):
        self.a(s); self.q.append(tag)
    def wait(self, tag):
        idx = max(i for i, t in enumerate(self.q) if t == tag) if tag in self.q else -1
        if idx < 0: return
        n = len(self.q) - 1 - idx
        assert n <= 63
        self.a(f"s_waitcnt vmcnt({n})")
        self.q = self.q[idx+1:]

WS_H    = 0x000000
WS_UT   = 0x800000
WS_G    = 0xA00000
WS_A    = 0xB00000
FSTR    = 4352
WS_FH   = 0xE00000
WS_FA   = 0xE80000
WS_FU   = WS_FH + 64*FSTR
WS_STAMP = 0x1300000
WS_SIZE = 0x1400000
LOG2E = 1.4426950408889634

SRD_X, SRD_W1, SRD_W2, SRD_WS, SRD_OUT = 8, 12, 16, 20, 24
P0 = 36
def ptr(i): return P0 + 2*i
def pp(i): return f"s[{ptr(i)}:{ptr(i)+1}]"
(I_U, I_ARE, I_AIM, I_BRE, I_BIM, I_CRE, I_CIM, I_LDT, I_DSK, I_X, I_W1, I_W3, I_W2, I_GW, I_OUT, I_DBG, I_WS) = range(17)
ST0 = 70
def S(d): return f"s[{d}:{d+3}]"

G1G2 = [False]
def stamp(a, idx, grp="main"):
    if "stamps" not in OPT: return
    if ("kst" in OPT) != (grp == "kst") and grp != "any": return
    if ("itst" in OPT or "g2st" in OPT) and G1G2[0] and grp != "any": return
    a(f"s_memtime s[{ST0+4*idx}:{ST0+1+4*idx}]")
    a(f"s_memrealtime s[{ST0+2+4*idx}:{ST0+3+4*idx}]")
    a("s_waitcnt lgkmcnt(0)")
def stamp_flush(a, n):
    if "stamps" not in OPT: return
    a("s_waitcnt lgkmcnt(0)")
    a("s_lshl_b32 s34, s2, 3")
    a("s_add_u32 s34, s34, s3")
    a("s_lshl_b32 s34, s34, 6")
    a(f"s_add_u32 s34, s34, {WS_STAMP}")
    a("v_mov_b32 v1, 0")
    for i in range(n):
        a(f"v_mov_b32 v2, s{ST0+4*i}")
        a(f"v_mov_b32 v3, s{ST0+2+4*i}")
        a(f"buffer_store_dwordx2 v[2:3], v1, {S(SRD_WS)}, s34 offen offset:{8*i}")
        a("s_nop 1")

SLOT = 49152
L_SIDE = 3*SLOT
SIDE_U = 0
SIDE_C = 6144
SIDE_F = 7680
LDS_SIZE = 163840
FLB = L_SIDE + SIDE_F
FL_FULL = FLB + 0
FL_ISS = FLB + 8
FL_VALID = FLB + 12
FL_FREE = FLB + 16
FL_EO = FLB + 32
FL_W2 = FLB + 40
FL_TR = FLB + 48
FL_TR2 = FLB + 64
FL_MASK = FLB + 80
FL_UT = FLB + 88
FL_X = FLB + 96
L2_XB = 139520
SIDE_XA = 4608
KT_BASE = 0
KG_RS = 272
L2_W2 = 0
L2_EO = 114688
L2_AT = 131328
EO_O = 4160

def srd(a, d, base, nbytes):
    a(f"s_mov_b32 s{d}, s{base}")
    a(f"s_and_b32 s{d+1}, s{base+1}, 0xffff")
    a(f"s_mov_b32 s{d+2}, {nbytes}")
    a(f"s_mov_b32 s{d+3}, 0x00020000")

def lds_wait(a, addr, n, val, tag, va, vt, sleep=1):
    a(f"v_mov_b32 v{va}, {addr}")
    a.spin(f"L_lw_{tag}", sleep)
    if n == 1:
        a(f"ds_read_b32 v{vt}, v{va}")
        a("s_waitcnt lgkmcnt(0)")
    elif n == 2:
        a(f"ds_read_b64 {vr(vt,2)}, v{va}")
        a("s_waitcnt lgkmcnt(0)")
        a(f"v_min_u32 v{vt}, v{vt}, v{vt+1}")
    else:
        a(f"ds_read_b128 {vr(vt,4)}, v{va}")
        a("s_waitcnt lgkmcnt(0)")
        a(f"v_min_u32 v{vt}, v{vt}, v{vt+1}")
        a(f"v_min3_u32 v{vt}, v{vt}, v{vt+2}, v{vt+3}")
    a(f"v_cmp_gt_u32 vcc, {val}, v{vt}")
    a(f"s_cbranch_vccnz L_lw_{tag}")

BARN = [0]
def bar(a):
    BARN[0] += 1
    a("s_cmp_ge_u32 s2, 224")
    a(f"s_cbranch_scc1 L_bar{BARN[0]}")
    a("s_barrier")
    a.label(f"L_bar{BARN[0]}")

def lds_set(a, addr, val, va, vv):
    a(f"v_mov_b32 v{va}, {addr}")
    a(f"v_mov_b32 v{vv}, {val}")
    a(f"ds_write_b32 v{va}, v{vv}")

def publish(a, soff, va, vv):
    a(f"v_mov_b32 v{vv}, 1")
    a(f"v_mov_b32 v{va}, 0")
    a("s_mov_b64 exec, 1")
    a(f"buffer_store_dword v{vv}, v{va}, {S(SRD_WS)}, {soff} offen sc1")
    a("s_mov_b64 exec, -1")

def arrive(a, tag, va, vv):
    a(f"v_mov_b32 v{va}, 0")
    a(f"v_mov_b32 v{vv}, 1")
    a("s_mov_b64 exec, 1")
    a(f"global_atomic_add v{vv+1}, v{va}, v{vv}, {pp(I_DBG)} offset:128 sc0 sc1")
    a("s_waitcnt vmcnt(0)")
    a(f"v_cmp_eq_u32 vcc, 32, v{vv+1}")
    a(f"s_cbranch_vccz L_arr_{tag}")
    a(f"global_store_dword v{va}, v{vv}, {pp(I_DBG)} sc1")
    a.label(f"L_arr_{tag}")
    a("s_mov_b64 exec, -1")

def cmul(a, d, x, y):
    a(f"v_pk_mul_f32 {vr(d,2)}, {vr(x,2)}, {vr(y,2)} op_sel:[0,0] op_sel_hi:[0,1]")
    a(f"v_pk_fma_f32 {vr(d,2)}, {vr(x,2)}, {vr(y,2)}, {vr(d,2)} op_sel:[1,1,0] op_sel_hi:[1,0,1] neg_lo:[0,1,0]")

KT_PR = 120
KT_D = 24
V_DSK = 20
def gen_ktab_addr(a):
    a("s_sub_u32 s6, s3, 6")
    a("s_lshl_b32 s7, s2, 1")
    a("s_add_u32 s7, s7, s6")
    a("s_lshl_b32 s28, s7, 8")
    a("v_lshl_add_u32 v2, v1, 2, s28")
    a("s_lshl_b32 s29, s7, 1")
    a("v_mov_b32 v3, s29")

def gen_ktab_loads(a):
    for i in range(6):
        a(f"global_load_dword v{KT_PR+i}, v2, {pp(I_ARE+i)}")
    a(f"global_load_short_d16_hi v{KT_PR+6}, v3, {pp(I_LDT)}")
    a(f"global_load_ushort v{V_DSK}, v3, {pp(I_DSK)}")

SEG0, SEGN = 110, 92
def gen_ktab(a):
    U = 64
    DT = 127; DT1 = 23; AP = 74; BP = 75
    W1, W4, W512 = 76, 78, 80
    T0 = 82
    W2, W128, W256, Y32 = 56, 58, 60, 62
    Z = 24
    VWR, VRD = 21, 22
    PT = 128
    a("s_lshl_b32 s30, s6, 13")
    a(f"s_add_u32 s30, s30, {L_SIDE}")
    a(f"v_lshl_add_u32 v{VWR}, v1, 4, s30")
    a("v_bfe_u32 v6, v1, 2, 2")
    a("v_lshrrev_b32 v7, 4, v1")
    a("v_lshl_add_u32 v6, v7, 3, v6")
    a(f"v_lshl_add_u32 v{VRD}, v6, 4, s30")
    a("v_and_b32 v6, 1, v1")
    a(f"v_lshl_add_u32 v{VRD}, v6, 3, v{VRD}")
    a("v_bfe_u32 v6, v1, 1, 1")
    a("v_mul_u32_u24 v6, 1088, v6")
    a(f"v_add_u32 v{VRD}, v6, v{VRD}")
    a("s_mov_b32 s31, 0xffff0000")
    a(f"s_mov_b32 s32, {f2u(LOG2E)}")
    L2E_HI = struct.unpack("<f", struct.pack("<f", LOG2E))[0]
    a(f"s_mov_b32 s33, {f2u(LOG2E - L2E_HI)}")
    a(f"s_mov_b32 s34, {f2u(1.0/(2*math.pi))}")
    a("s_waitcnt vmcnt(0)")
    st = {"c": 0, "nb": 0}
    def k(x):
        a(x)
        st["c"] += 2 if x.split()[0] in ("v_exp_f32", "v_sin_f32", "v_cos_f32") else 1
        lim = SEG0 if st["nb"] == 0 else SEGN
        if st["c"] >= lim and st["nb"] < 9:
            if st["nb"] == 0: a("s_barrier")
            else: bar(a)
            st["nb"] += 1; st["c"] = 0
    L = KT_PR+6
    k(f"v_and_b32 v{L}, s31, v{L}")
    k(f"v_mul_f32 v{DT}, s32, v{L}")
    k(f"v_fma_f32 v{DT1}, v{L}, s32, -v{DT}")
    k(f"v_fmac_f32 v{DT1}, s33, v{L}")
    k(f"v_exp_f32 v{DT}, v{DT}")
    k(f"v_mul_f32 v{DT1}, {f2u(math.log(2.0))}, v{DT1}")
    k(f"v_fmac_f32 v{DT}, v{DT}, v{DT1}")
    k(f"v_cvt_pk_bf16_f32 v{DT}, v{DT}, v{DT}")
    k(f"v_and_b32 v{DT}, s31, v{DT}")
    z = lambda c: Z + 2*c
    CB = z(4)
    E = 96
    ev = lambda kk, it: E + 6*kk + 2*(it-1)
    mult = [Y32]*4 + [W2]*4 + [W2, W2, W128, W128] + [W256, W256]
    def cmuls(lst):
        for d, x, y in lst:
            k(f"v_mul_f32 v{d}, v{x}, v{y}")
            k(f"v_mul_f32 v{d+1}, v{x}, v{y+1}")
        for d, x, y in lst:
            k(f"v_fma_f32 v{d}, -v{x+1}, v{y+1}, v{d}")
            k(f"v_fmac_f32 v{d+1}, v{x+1}, v{y}")
    for half in range(2):
        if "nokgen" in OPT: break
        for i in range(6):
            if half == 0: k(f"v_lshlrev_b32 v{U+i}, 16, v{KT_PR+i}")
            else: k(f"v_and_b32 v{U+i}, s31, v{KT_PR+i}")
        k(f"v_mul_f32 v{AP}, v{DT}, v{U}")
        k(f"v_mul_f32 v{BP}, v{DT}, v{U+1}")
        k(f"v_mul_f32 v{U+2}, v{DT}, v{U+2}")
        k(f"v_mul_f32 v{U+3}, v{DT}, v{U+3}")
        k(f"v_mul_f32 v{AP}, s32, v{AP}")
        k(f"v_mul_f32 v{BP}, s34, v{BP}")
        cmuls([(CB, U+4, U+2)])
        dsts = [(z(1), 8, True), (W1, 1, False), (W128, 128, False)]
        for n, (dst, l, cj) in enumerate(dsts):
            lit = "1.0" if l == 1 else str(f2u(float(l)))
            k(f"v_mul_f32 v{T0+4*n}, {lit}, v{AP}")
            k(f"v_mul_f32 v{T0+4*n+1}, {lit}, v{BP}")
        for n in range(3):
            k(f"v_exp_f32 v{T0+4*n}, v{T0+4*n}")
            k(f"v_fract_f32 v{T0+4*n+1}, v{T0+4*n+1}")
        for n in range(3):
            k(f"v_cos_f32 v{T0+4*n+2}, v{T0+4*n+1}")
            k(f"v_sin_f32 v{T0+4*n+3}, v{T0+4*n+1}")
        k(f"v_mov_b32 v{z(0)}, 1.0")
        for n, (dst, l, cj) in enumerate(dsts):
            k(f"v_mul_f32 v{dst}, v{T0+4*n}, v{T0+4*n+2}")
            k(f"v_mul_f32 v{dst+1}, {'-' if cj else ''}v{T0+4*n}, v{T0+4*n+3}")
        k(f"v_mov_b32 v{z(0)+1}, 0")
        cmuls([(z(2), z(1), z(1)), (W2, W1, W1), (z(5), CB, W1), (z(6), CB, W128), (W256, W128, W128)])
        cmuls([(z(3), z(2), z(1)), (Y32, z(2), z(2)), (z(7), z(6), W1), (W4, W2, W2), (z(8), CB, W256), (z(9), z(6), W256), (W512, W256, W256)])
        cmuls([(z(10), z(8), W256), (T0, W512, W512)])
        cmuls([(z(11), z(10), W4), (z(13), T0, z(6)), (z(12), T0, CB)])
        def val(c0, kk, it):
            if c0 == 0 and kk == 0 and it == 1: return Y32
            return z(c0+kk) if it == 0 else ev(kk, it)
        def tile(t, c0, nch, extra=None):
            for it in range(1, 4):
                cmuls([(ev(kk, it), val(c0, kk, it-1), mult[c0+kk]) for kk in range(nch) if not (c0 == 0 and kk == 0 and it == 1)])
            if extra is not None:
                cmuls([(extra, ev(0, 3), mult[c0])])
            for pair in range(2):
                for pl in range(2):
                    p = PT + 64*half + 16*t + 4*(2*pl+pair)
                    for kk in range(2):
                        c = 2*pair + kk
                        if c < nch:
                            k(f"v_cvt_pk_bf16_f32 v{p+2*kk}, v{val(c0,c,0)+pl}, v{val(c0,c,1)+pl}")
                            k(f"v_cvt_pk_bf16_f32 v{p+2*kk+1}, v{val(c0,c,2)+pl}, v{val(c0,c,3)+pl}")
                        elif c == nch:
                            k(f"v_cvt_pk_bf16_f32 v{p}, v{extra+pl}, v{extra+pl}")
        tile(0, 0, 4)
        tile(1, 4, 4)
        tile(2, 8, 4)
        tile(3, 12, 2, extra=z(8))
    print("kgen barriers placed in VALU phase:", st["nb"], "left", st["c"], file=sys.stderr)
    gen_kfin_addr(k)
    print("after addr:", st["nb"], "left", st["c"], file=sys.stderr)
    while st["nb"] < 9:
        bar(a); st["nb"] += 1
    stamp(a, 1)
    lds_wait(a, FL_VALID, 1, 1, "kfv", 4, 60, sleep=1)
    a("s_and_b32 s29, s7, 31")
    a(f"s_mul_i32 s29, s29, {FSTR}")
    a(f"s_add_u32 s29, s29, {WS_FU}")
    a("v_and_b32 v54, 31, v1")
    a("v_lshlrev_b32 v54, 2, v54")
    a(f"buffer_load_dword v55, v54, {S(SRD_WS)}, s29 offen sc1")
    SP = 1088
    FRG = [64, 80, 96, 112]
    D = KT_D
    for half in range(2):
        for t in range(4):
            for sp in range(4):
                a(f"ds_write_b128 v{VWR}, {vr(PT+64*half+16*t+4*sp,4)} offset:{sp*SP}")
            for pl in range(2):
                for nh in range(2):
                    for h in range(2):
                        a(f"ds_read_b64_tr_b16 {vr(FRG[t]+8*pl+4*nh+2*h,2)}, v{VRD} offset:{2*pl*SP + nh*512 + h*64}")
            if t >= 2:
                a("s_waitcnt lgkmcnt(12)")
                for kk in range(4):
                    c = "0" if (half == 0 and kk == 0) else vr(D+4*(t-2), 4)
                    a(f"v_mfma_f32_16x16x32_bf16 {vr(D+4*(t-2),4)}, {vr(FRG[t-1]+4*kk,4)}, {vr(FRG[0]+4*kk,4)}, {c}")
        a("s_waitcnt lgkmcnt(0)")
        for kk in range(4):
            c = "0" if (half == 0 and kk == 0) else vr(D+8, 4)
            a(f"v_mfma_f32_16x16x32_bf16 {vr(D+8,4)}, {vr(FRG[3]+4*kk,4)}, {vr(FRG[0]+4*kk,4)}, {c}")

def gen_g1_setup(a):
    ACC = 128
    XF = 32; WF = 64; XA = 8; WA = 12
    a("v_and_b32 v2, 15, v1")
    a("v_lshrrev_b32 v3, 4, v1")
    a("v_bfe_u32 v4, v2, 1, 3")
    a("s_lshl_b32 s28, s3, 13")
    a(f"s_add_u32 s28, s28, {SLOT}")
    a("v_lshlrev_b32 v5, 7, v2")
    a("v_add_u32 v5, s28, v5")
    for sig in range(2):
        a(f"v_add_u32 v6, {4*sig}, v3")
        a("v_xor_b32 v6, v6, v4")
        a(f"v_lshl_add_u32 v{XA+sig}, v6, 4, v5")
    a("v_bfe_u32 v2, v1, 2, 2")
    a("v_and_b32 v3, 3, v1")
    a("v_lshrrev_b32 v4, 4, v1")
    a("v_lshl_add_u32 v6, v4, 3, v2")
    a("v_lshlrev_b32 v6, 7, v6")
    a("v_lshl_add_u32 v6, v3, 3, v6")
    a(f"v_add_u32 v6, {32768+SLOT}, v6")
    a("v_lshrrev_b32 v7, 1, v2")
    a("v_and_b32 v4, 1, v4")
    a("v_lshl_or_b32 v7, v4, 1, v7")
    for nu in range(4):
        a(f"v_xor_b32 v5, {nu}, v7")
        a(f"v_lshl_add_u32 v{WA+nu}, v5, 5, v6")
    for i in range(0, 128, 2):
        a(f"v_pk_mul_f32 {vr(ACC+i,2)}, 0, 0")
    a("s_lshl_b32 s28, s3, 2")
    a(f"s_add_u32 s28, s28, {FL_FREE}")
    a("v_mov_b32 v19, s28")
    a("v_mov_b32 v20, 0")

def gen_g1(a):
    ACC = 128
    XF = 32; WF = 64; XA = 8; WA = 12
    def acc(mat, nu, m): return ACC + 4*((mat*4+nu)*4+m)
    def xf(sig, m): return XF + 16*(sig & 1) + 4*m
    def wf(sig, mat, nu): return WF + 32*(sig & 1) + 4*(mat*4+nu)
    def reads(sig):
        r = []
        for m in range(4):
            r.append(f"ds_read_b128 {vr(xf(sig,m),4)}, v{XA+sig} offset:{m*2048}")
        for mat in range(2):
            for nu in range(4):
                for h in range(2):
                    r.append(f"ds_read_b64_tr_b16 {vr(wf(sig,mat,nu)+2*h,2)}, v{WA+nu} offset:{mat*8192+sig*4096+h*512}")
        return r
    def mfmas(sig):
        r = []
        for mat in range(2):
            for nu in range(4):
                for m in range(4):
                    d = acc(mat, nu, m)
                    r.append(f"v_mfma_f32_16x16x32_bf16 {vr(d,4)}, {vr(wf(sig,mat,nu),4)}, {vr(xf(sig,m),4)}, {vr(d,4)}")
        return r
    a("s_mov_b32 s7, 1")
    a("s_mov_b32 s28, 8")
    a(f"s_mov_b32 s30, {SLOT}")
    a("s_barrier")
    stamp(a, 2)
    for r in reads(0): a(r)
    a.label("L_g1_loop")
    a("s_add_u32 s7, s7, 1")
    a("s_cmp_eq_u32 s7, 3")
    a(f"s_cselect_b32 s29, {(-2*SLOT) & 0xffffffff}, s30")
    a("s_cselect_b32 s7, 0, s7")
    M = mfmas(0); R = reads(1)
    issued = 0
    for i in range(32):
        if i % 4 == 0:
            need = 4 + 2*(i//4 + 1)
            n = (20 - need) + issued
            a(f"s_waitcnt lgkmcnt({min(n,15)})")
        a(M[i])
        if issued < 20 and i >= 2:
            a(R[issued]); issued += 1
        if i == 24:
            a(f"v_add_u32 v{XA}, s29, v{XA}")
            a(f"v_add_u32 v{XA+1}, s29, v{XA+1}")
        if i in (25, 26):
            a(f"v_add_u32 v{WA+2*(i-25)}, s29, v{WA+2*(i-25)}")
            a(f"v_add_u32 v{WA+2*(i-25)+1}, s29, v{WA+2*(i-25)+1}")
        if i == 27:
            a("s_sub_u32 s28, s28, 1")
            a("s_cmp_eq_u32 s28, 0")
    assert issued == 20
    M = mfmas(1); R = reads(0)
    a("s_waitcnt lgkmcnt(0)")
    a(M[0]); a(M[1])
    a("s_barrier")
    a("s_cbranch_scc1 L_g1_last")
    issued = 0
    for i in range(2, 32):
        if issued < 20:
            a(R[issued]); issued += 1
        a(M[i])
    a("s_branch L_g1_loop")
    a.label("L_g1_last")
    for i in range(2, 32):
        a(M[i])
    stamp(a, 3)
    a(f"s_mov_b32 s6, {f2u(-LOG2E)}")
    a(f"s_mov_b32 s7, {f2u(-LOG2E)}")
    a("s_lshl_b32 s28, s4, 4")
    a("s_lshl_b32 s29, s3, 2")
    a("s_add_u32 s28, s28, s29")
    a("s_mul_i32 s28, s28, 56")
    a("s_lshl_b32 s29, s5, 1")
    a("s_add_u32 s28, s28, s29")
    a("s_lshl_b32 s28, s28, 10")
    for m in range(1, 4):
        a(f"s_add_u32 s{28+m}, s28, {m*56*1024}")
    a("v_lshlrev_b32 v2, 4, v1")
    a("s_lshl_b32 s32, s4, 2")
    a("s_add_u32 s32, s32, s3")
    a(f"s_mul_i32 s32, s32, {FSTR}")
    a("s_lshl_b32 s33, s5, 2")
    a("s_add_u32 s32, s32, s33")
    a(f"s_add_u32 s32, s32, {WS_FH}")
    a(f"s_add_u32 s33, s32, {32*FSTR}")
    T = 32
    cnt = 0
    for np_ in range(2):
        for m in range(4):
            E = T + 16*(cnt & 1)
            O = E + 8
            gs = [acc(0, 2*np_, m), acc(0, 2*np_, m)+2, acc(0, 2*np_+1, m), acc(0, 2*np_+1, m)+2]
            us = [acc(1, 2*np_, m), acc(1, 2*np_, m)+2, acc(1, 2*np_+1, m), acc(1, 2*np_+1, m)+2]
            for p in range(4):
                a(f"v_pk_mul_f32 {vr(E+2*p,2)}, {vr(gs[p],2)}, s[6:7]")
            for p in range(8):
                a(f"v_exp_f32 v{E+p}, v{E+p}")
            for p in range(4):
                a(f"v_pk_mul_f32 {vr(us[p],2)}, {vr(gs[p],2)}, {vr(us[p],2)}")
            for p in range(4):
                a(f"v_pk_add_f32 {vr(E+2*p,2)}, {vr(E+2*p,2)}, 1.0 op_sel_hi:[1,0]")
            for p in range(8):
                a(f"v_rcp_f32 v{E+p}, v{E+p}")
            a("s_nop 0")
            for p in range(4):
                a(f"v_pk_mul_f32 {vr(us[p],2)}, {vr(us[p],2)}, {vr(E+2*p,2)}")
            for p in range(4):
                a(f"v_cvt_pk_bf16_f32 v{O+p}, v{us[p]}, v{us[p]+1}")
            if cnt == 6:
                lds_wait(a, FL_VALID, 1, 1, "g1v", 3, 4, sleep=0)
                a("s_waitcnt vmcnt(2)")
                publish(a, "s32", 3, 4)
            a(f"buffer_store_dwordx4 {vr(O,4)}, v2, {S(SRD_WS)}, s{28+m} offen offset:{np_*1024} sc1")
            cnt += 1
    a("v_mov_b32 v20, 1")
    a("ds_write_b32 v19, v20")
    stamp(a, 4)
    a("s_mov_b32 s35, s33")
    a.walk_end()

VX = 8; VW = 12
def gen_loader_setup(a):
    a("v_lshrrev_b32 v2, 3, v1")
    a("v_and_b32 v3, 7, v1")
    a("v_lshrrev_b32 v4, 4, v1")
    a("v_xor_b32 v5, v3, v4")
    a("v_xor_b32 v6, 4, v5")
    a("v_lshlrev_b32 v7, 10, v2")
    a(f"v_lshl_add_u32 v{VX}, v5, 4, v7")
    a(f"v_lshl_add_u32 v{VX+1}, v6, 4, v7")
    a(f"v_add_u32 v{VX+2}, {2*7168}, v{VX}")
    a(f"v_add_u32 v{VX+3}, {3*7168}, v{VX+1}")
    a(f"v_add_u32 v{VX+1}, {7168}, v{VX+1}")
    a("v_and_b32 v4, 1, v4")
    a("v_lshlrev_b32 v4, 1, v4")
    a("v_xor_b32 v5, v3, v4")
    a("v_mul_u32_u24 v7, 3584, v2")
    a(f"v_lshl_add_u32 v{VW}, v5, 4, v7")
    a("v_xor_b32 v5, 4, v5")
    a(f"v_lshl_add_u32 v{VW+1}, v5, 4, v7")
    a(f"v_add_u32 v{VW+2}, {2*(28672-1024)}, v{VW}")
    a(f"v_add_u32 v{VW+3}, {3*(28672-1024)}, v{VW+1}")
    a(f"v_add_u32 v{VW+1}, {(28672-1024)}, v{VW+1}")

def gen_loader(a):
    a("s_sub_u32 s6, s3, 4")
    a("s_cmp_eq_u32 s6, 1")
    a(f"s_cselect_b32 s{SRD_W1}, s{ptr(I_W3)}, s{ptr(I_W1)}")
    a(f"s_cselect_b32 s{SRD_W1+1}, s{ptr(I_W3)+1}, s{ptr(I_W1)+1}")
    a(f"s_and_b32 s{SRD_W1+1}, s{SRD_W1+1}, 0xffff")
    a("s_lshl_b32 s28, s4, 18")
    a("s_lshl_b32 s7, s6, 17")
    a("s_add_u32 s28, s28, s7")
    a("s_lshl_b32 s29, s5, 7")
    a("s_lshl_b32 s34, s6, 14")
    a(f"s_add_u32 s34, s34, {SLOT}")
    a("s_lshl_b32 s35, s6, 13")
    a(f"s_add_u32 s35, s35, {SLOT+32768}")
    a("s_mov_b32 s31, 0")
    a("s_mov_b32 s30, 1")
    a.label("L_ld_loop")
    a(f"s_add_u32 s33, s29, {4*28672}")
    for q in range(2):
        a(f"s_add_u32 m0, s35, {q*4096}")
        a("s_nop 0")
        for k in range(4):
            a(f"buffer_load_dwordx4 v{VW+k}, {S(SRD_W1)}, s{29 if q == 0 else 33} offen offset:{k*1024} lds")
    a("s_mov_b32 s33, s28")
    for q in range(4):
        a(f"s_add_u32 m0, s34, {q*4096}")
        a("s_nop 0")
        for k in range(4):
            a(f"buffer_load_dwordx4 v{VX+k}, {S(SRD_X)}, s33 offen offset:{k*1024} lds")
        if q < 3: a("s_add_u32 s33, s33, 32768")
    a("s_add_u32 s28, s28, 128")
    a(f"s_add_u32 s29, s29, {64*3584}")
    a("s_add_u32 s30, s30, 1")
    a("s_cmp_eq_u32 s30, 3")
    a(f"s_cselect_b32 s7, {(-3*SLOT) & 0xffffffff}, 0")
    a("s_cselect_b32 s30, 0, s30")
    a(f"s_add_u32 s7, s7, {SLOT}")
    a("s_add_u32 s34, s34, s7")
    a("s_add_u32 s35, s35, s7")
    a("s_add_u32 s31, s31, 1")
    a("s_cmp_eq_u32 s31, 1")
    a("s_cbranch_scc1 L_ld_loop")
    a("s_waitcnt vmcnt(24)")
    a("s_barrier")
    a("s_cmp_lt_u32 s31, 8")
    a("s_cbranch_scc1 L_ld_loop")
    stamp(a, 1)

V_EO = 192
VC0, VC1, VC3 = 8, 16, 11
MU, EE, GB = 56, 57, 58
GA = 36
def gen_kfin_addr(a):
    a("v_and_b32 v6, 15, v1")
    a("v_lshrrev_b32 v7, 4, v1")
    a("v_and_b32 v2, 3, v6")
    a("v_lshrrev_b32 v3, 2, v6")
    a("v_lshl_add_u32 v6, v2, 2, v3")
    a("v_lshrrev_b32 v12, 1, v7")
    a("v_and_b32 v13, 1, v7")
    a(f"v_lshlrev_b32 v{VC0}, 8, v12")
    a(f"v_lshl_add_u32 v{VC0}, v13, 1, v{VC0}")
    a(f"v_lshl_add_u32 v{VC0}, v6, 4, v{VC0}")
    a(f"v_add_u32 v{VC0}, s30, v{VC0}")
    a("v_lshlrev_b32 v2, 7, v13")
    a("v_lshl_add_u32 v2, v6, 3, v2")
    a("v_lshlrev_b32 v3, 1, v13")
    a("v_lshl_add_u32 v3, v6, 2, v3")
    a("v_add_u32 v3, 256, v3")
    a("v_cmp_eq_u32 vcc, 0, v12")
    a("v_mul_u32_u24 v14, 62, v12")
    a("v_add_u32 v14, 2, v14")
    a(f"v_cndmask_b32 v{VC1}, v3, v2, vcc")
    a(f"v_add_u32 v{VC1}, s30, v{VC1}")
    for i in range(1, 4):
        a(f"v_add_u32 v{VC1+i}, v{VC1+i-1}, v14")
    a(f"v_lshlrev_b32 v{VC3}, 5, v7")
    a("v_mul_u32_u24 v2, 192, v12")
    a(f"v_add3_u32 v{VC3}, v{VC3}, v2, s30")
    a(f"v_lshl_add_u32 v{VC3}, v6, 1, v{VC3}")
    a(f"v_sub_u32 v{MU}, 63, v1")
    a(f"v_lshrrev_b32 v{EE}, 4, v{MU}")
    a(f"v_min_u32 v{EE}, 2, v{EE}")
    a(f"v_lshlrev_b32 v{GB}, 5, v{MU}")
    a(f"v_lshrrev_b32 v{GB}, v{EE}, v{GB}")
    a(f"v_lshl_add_u32 v{GB}, v{EE}, 8, v{GB}")
    a(f"v_add_u32 v{GB}, s30, v{GB}")
    a(f"v_lshlrev_b32 v{EE}, 3, v{EE}")
    def rne(o, e):
        if e == 0: return o
        return (o + ((1 << (e-1)) - 1) + ((o >> e) & 1)) >> e
    for o in range(17):
        tab = sum((2*rne(o, e)) << (8*e) for e in range(3))
        a(f"s_mov_b32 s35, {tab}")
        a(f"v_bfe_u32 v{GA+o}, s35, v{EE}, 8")
        a(f"v_add_u32 v{GA+o}, v{GA+o}, v{GB}")
    a(f"v_lshl_add_u32 v{MU}, v{MU}, 2, s30")

def gen_kfin(a):
    D = KT_D
    CP = 64
    a("s_waitcnt vmcnt(0)")
    a("v_cmp_ne_u32 vcc, 1, v55")
    a("s_cbranch_vccz L_kf_uok")
    a.spin("L_kf_upoll", 8)
    a(f"buffer_load_dword v55, v54, {S(SRD_WS)}, s29 offen sc1")
    a("s_waitcnt vmcnt(0)")
    a("v_cmp_ne_u32 vcc, 1, v55")
    a("s_cbranch_vccnz L_kf_upoll")
    a.label("L_kf_uok")
    a("s_lshl_b32 s28, s7, 12")
    a(f"s_add_u32 s28, s28, {WS_UT}")
    a(f"s_add_u32 m0, s30, {SIDE_U+512}")
    a("v_lshlrev_b32 v4, 4, v1")
    for i in range(4):
        a(f"buffer_load_dwordx4 v4, {S(SRD_WS)}, s28 offen offset:{i*1024} sc1 lds")
    for i in range(6):
        a(f"v_cvt_pk_bf16_f32 v{CP+i}, v{D+2*i}, v{D+2*i+1}")
    for i in range(4):
        hi = "_d16_hi" if i & 1 else ""
        a(f"ds_write_b16{hi} v{VC0}, v{CP+i//2} offset:{SIDE_C+4*i}")
        a(f"ds_write_b16{hi} v{VC1+i}, v{CP+2+i//2} offset:{SIDE_C+512}")
        a(f"ds_write_b16{hi} v{VC3}, v{CP+4+i//2} offset:{SIDE_C+1024+64*i}")
    E0, O0, E1, O1 = V_EO, V_EO+8, V_EO+16, V_EO+24
    G0 = 72
    a(f"ds_read_b32 v{G0}, v{MU} offset:{SIDE_C+1024}")
    a(f"ds_read_u16 v{G0+1}, v{MU} offset:{SIDE_C+1024+4}")
    for m in range(8):
        a(f"ds_read_u16 v{E1+m}, v{GA+15-2*m} offset:{SIDE_C}")
        a(f"ds_read_u16 v{O1+m}, v{GA+14-2*m} offset:{SIDE_C}")
    a(f"ds_read_u16 v{G0+2}, v{GA+16} offset:{SIDE_C}")
    a("v_mov_b32 v2, 0")
    a("v_mov_b32 v3, 0")
    a("v_lshl_add_u32 v4, v1, 3, s30")
    a(f"ds_write_b64 v4, v[2:3] offset:{SIDE_U}")
    a("s_mov_b32 s28, 0x01000100")
    a("s_mov_b32 s29, 0x03020302")
    a("s_mov_b32 s35, 0x01000302")
    a("s_mov_b32 s33, 0x03020504")
    a("s_waitcnt lgkmcnt(15)")
    a(f"v_perm_b32 v{E0}, v{G0+1}, v{G0+1}, s28")
    a(f"v_perm_b32 v{E0+2}, v{G0}, v{G0}, s29")
    a(f"v_perm_b32 v{E0+6}, v{G0}, v{G0}, s28")
    a(f"v_perm_b32 v{E0+5}, v{G0}, v{G0}, s35")
    a(f"v_perm_b32 v{O0+2}, v{G0+1}, v{G0}, s33")
    for d_, s_ in ((E0+1, E0), (E0+3, E0+2), (E0+4, E0+2), (E0+7, E0+6), (O0, E0), (O0+1, E0), (O0+3, E0+2), (O0+4, E0+2),
                   (O0+5, E0+2), (O0+6, E0+6), (O0+7, E0+6)):
        a(f"v_mov_b32 v{d_}, v{s_}")
    a("s_waitcnt lgkmcnt(0)")
    for m in range(8):
        a(f"v_lshl_or_b32 v{E1+m}, v{O1+m}, 16, v{E1+m}")
    a(f"v_lshl_or_b32 v{O1}, v{E1}, 16, v{G0+2}")
    for m in range(1, 8):
        a(f"v_alignbit_b32 v{O1+m}, v{E1+m}, v{E1+m-1}, 16")
    a(f"v_lshrrev_b32 v8, 16, v{E1+7}")
    for i in range(9, 16):
        a(f"v_mov_b32 v{i}, 0")
    a("s_mul_i32 s29, s6, 8320")
    a(f"s_add_u32 s29, s29, {L2_EO}")
    a("v_lshl_add_u32 v4, v1, 5, s29")
    stamp(a, 2)
    a("s_cmp_lt_u32 s2, 224")
    a("s_cbranch_scc1 L_kf_ring")
    lds_wait(a, FL_FREE, 4, 1, "kfring", 17, 60, sleep=2)
    a.label("L_kf_ring")
    for rnd, (E, O) in enumerate(((E0, O0), (E1, O1))):
        for h in range(2):
            a(f"ds_write_b128 v4, {vr(E+4*h,4)} offset:{rnd*2048+16*h}")
            a(f"ds_write_b128 v4, {vr(O+4*h,4)} offset:{EO_O+rnd*2048+16*h}")
    a("s_mov_b32 s28, 0")
    a("s_mov_b32 s29, 0x80000000")
    a("s_mov_b64 exec, s[28:29]")
    a(f"ds_write_b128 v4, v[12:15] offset:{2048+32}")
    a(f"ds_write_b128 v4, v[12:15] offset:{2048+48}")
    a(f"ds_write_b128 v4, v[8:11] offset:{EO_O+2048+32}")
    a(f"ds_write_b128 v4, v[12:15] offset:{EO_O+2048+48}")
    a("s_mov_b64 exec, -1")
    a("s_lshl_b32 s28, s6, 2")
    a(f"s_add_u32 s28, s28, {FL_EO}")
    a("s_waitcnt vmcnt(0)")
    lds_set(a, "s28", 1, 16, 17)

def gen_conv(a):
    tag = "cv"
    ACC = 24; FR = 64; AB = 8; UB = 12
    def af(st, aa): return FR + 64*st + 4*aa
    def bf(st, e): return FR + 64*st + 32 + 4*e
    a("v_and_b32 v2, 15, v1")
    a("v_lshrrev_b32 v3, 4, v1")
    a("s_lshl_b32 s32, s33, 8")
    a("s_mul_i32 s29, s6, 8320")
    a(f"s_add_u32 s29, s29, {L2_EO + 4*1016 + EO_O}")
    a("s_sub_u32 s29, s29, s32")
    a("v_add_u32 v4, 1, v2")
    a("v_lshrrev_b32 v4, 1, v4")
    a("v_lshlrev_b32 v5, 2, v3")
    a("v_sub_u32 v5, v5, v4")
    a("v_lshl_add_u32 v5, v5, 2, s29")
    a("v_and_b32 v4, 1, v2")
    a(f"v_mul_u32_u24 v4, {EO_O}, v4")
    a("v_sub_u32 v5, v5, v4")
    for b in range(4):
        a(f"v_subrev_u32 v{AB+b}, {512*(2*b+1)}, v5")
    a("v_lshlrev_b32 v4, 5, v2")
    a("v_lshl_add_u32 v4, v3, 4, v4")
    a(f"s_add_u32 s28, s30, {SIDE_U + 480}")
    a("s_sub_u32 s28, s28, s32")
    a(f"v_add_u32 v{UB}, s28, v4")
    for i in range(32):
        a(f"v_mov_b32 v{ACC+i}, 0")
    def reads(st):
        r = []
        for x in range(8):
            o = 128 if x % 2 == 0 else 0
            r.append(f"ds_read2_b32 {vr(af(st,x),2)}, v{AB+x//2} offset0:{o} offset1:{o+1}")
            r.append(f"ds_read2_b32 {vr(af(st,x)+2,2)}, v{AB+x//2} offset0:{o+2} offset1:{o+3}")
            r.append(f"ds_read_b128 {vr(bf(st,x),4)}, v{UB} offset:{512*x}")
        return r
    def adv():
        r = [f"v_subrev_u32 v{AB+b}, 64, v{AB+b}" for b in range(4)]
        r.append(f"v_subrev_u32 v{UB}, 64, v{UB}")
        return r
    def mf(st):
        r = []
        for aa in range(8):
            for e in range(8 - aa):
                d = ACC + 4*(aa+e)
                r.append(f"v_mfma_f32_16x16x32_bf16 {vr(d,4)}, {vr(af(st,aa),4)}, {vr(bf(st,e),4)}, {vr(d,4)}")
        return r
    for r in reads(0): a(r)
    for r in adv(): a(r)
    if "convearly" not in OPT:
        a("s_lshl_b32 s28, s3, 2")
        a(f"s_add_u32 s28, s28, {FL_FREE - 16}")
        lds_wait(a, "s28", 1, 1, tag+"e", 16, 18, sleep=2)
    a("s_mov_b32 s28, 2")
    a.label(f"L_{tag}_loop")
    for st in range(2):
        a("s_waitcnt lgkmcnt(0)")
        M = mf(st); R = reads(1-st) + adv()
        for i, m in enumerate(M):
            a(m)
            if R: a(R.pop(0))
        assert not R
    a("s_sub_u32 s28, s28, 1")
    a("s_cmp_lg_u32 s28, 0")
    a(f"s_cbranch_scc1 L_{tag}_loop")
    a(f"s_add_u32 s28, s30, {SIDE_XA}")
    a("s_lshl_b32 s29, s6, 11")
    a(f"s_add_u32 s29, s29, {L2_XB}")
    a("s_cmp_eq_u32 s33, 0")
    a("s_cselect_b32 s34, s28, s29")
    a("s_cselect_b32 s35, s29, s28")
    a("v_lshl_add_u32 v13, v1, 4, s34")
    a("v_lshl_add_u32 v14, v1, 4, s35")
    a("s_lshl_b32 s28, s6, 3")
    a("s_lshl_b32 s29, s33, 2")
    a("s_add_u32 s28, s28, s29")
    a(f"s_add_u32 s28, s28, {FL_X}")
    a("s_xor_b32 s29, s28, 4")
    a("v_lshlrev_b32 v4, 5, v2")
    a("v_lshl_add_u32 v4, v3, 3, v4")
    a("s_lshl_b32 s32, s33, 11")
    a(f"s_add_u32 s34, s30, {SIDE_U + 512}")
    a("s_add_u32 s34, s34, s32")
    a("v_add_u32 v5, s34, v4")
    a("s_waitcnt lgkmcnt(0)")
    UU = 64; PKX = 72; RX = 80
    for ti in range(4):
        a(f"ds_read_b64 {vr(UU+2*ti,2)}, v5 offset:{512*ti}")
    a("s_cmp_eq_u32 s33, 0")
    a("s_cbranch_scc1 L_cv_t0")
    for i in range(8):
        a(f"v_cvt_pk_bf16_f32 v{PKX+i}, v{ACC+2*i}, v{ACC+2*i+1}")
    for i in range(16):
        a(f"v_mov_b32 v{ACC+i}, v{ACC+16+i}")
    a("s_branch L_cv_t1")
    a.label("L_cv_t0")
    for i in range(8):
        a(f"v_cvt_pk_bf16_f32 v{PKX+i}, v{ACC+16+2*i}, v{ACC+16+2*i+1}")
    a.label("L_cv_t1")
    a(f"ds_write_b128 v13, {vr(PKX,4)}")
    a(f"ds_write_b128 v13, {vr(PKX+4,4)} offset:1024")
    lds_set(a, "s28", 1, 16, 17)
    a("s_mov_b32 s31, 0xffff0000")
    a(f"v_lshlrev_b32 v{V_DSK}, 16, v{V_DSK}")
    a("v_lshlrev_b32 v6, 5, v2")
    a("v_lshrrev_b32 v7, 1, v3")
    a("v_lshl_add_u32 v6, v7, 4, v6")
    a("v_and_b32 v7, 1, v3")
    a("v_lshl_add_u32 v6, v7, 9, v6")
    a("s_waitcnt lgkmcnt(3)")
    X = 90
    for ti in range(4):
        for h in range(2):
            a(f"v_lshlrev_b32 v{X}, 16, v{UU+2*ti+h}")
            a(f"v_and_b32 v{X+1}, s31, v{UU+2*ti+h}")
            a(f"v_fmac_f32 v{ACC+4*ti+2*h}, v{X}, v{V_DSK}")
            a(f"v_fmac_f32 v{ACC+4*ti+2*h+1}, v{X+1}, v{V_DSK}")
    lds_wait(a, "s29", 1, 1, "cvx", 16, 18, sleep=0)
    a(f"ds_read_b128 {vr(RX,4)}, v14")
    a(f"ds_read_b128 {vr(RX+4,4)}, v14 offset:1024")
    a("s_lshl_b32 s28, s7, 12")
    a("s_add_u32 s28, s28, s32")
    a(f"s_add_u32 s28, s28, {WS_A}")
    a("s_waitcnt lgkmcnt(0)")
    for i in range(8):
        a(f"v_lshlrev_b32 v{X}, 16, v{RX+i}")
        a(f"v_and_b32 v{X+1}, s31, v{RX+i}")
        a(f"v_add_f32 v{ACC+2*i}, v{ACC+2*i}, v{X}")
        a(f"v_add_f32 v{ACC+2*i+1}, v{ACC+2*i+1}, v{X+1}")
    P = 96
    for pr in range(2):
        t1, t2 = 2*pr, 2*pr+1
        p = P + 4*pr
        a(f"v_cvt_pk_bf16_f32 v{p}, v{ACC+4*t1}, v{ACC+4*t1+1}")
        a(f"v_cvt_pk_bf16_f32 v{p+1}, v{ACC+4*t1+2}, v{ACC+4*t1+3}")
        a(f"v_cvt_pk_bf16_f32 v{p+2}, v{ACC+4*t2}, v{ACC+4*t2+1}")
        a(f"v_cvt_pk_bf16_f32 v{p+3}, v{ACC+4*t2+2}, v{ACC+4*t2+3}")
        a("s_nop 1")
        a(f"v_permlane16_swap_b32 v{p}, v{p+2}")
        a(f"v_permlane16_swap_b32 v{p+1}, v{p+3}")
        a(f"buffer_store_dwordx4 {vr(p,4)}, v6, {S(SRD_WS)}, s28 offen offset:{1024*pr} sc1")
    a("s_lshr_b32 s28, s7, 6")
    a(f"s_mul_i32 s28, s28, {FSTR}")
    a("s_and_b32 s29, s7, 63")
    a("s_lshl_b32 s29, s29, 2")
    a("s_add_u32 s28, s28, s29")
    a("s_lshl_b32 s29, s33, 8")
    a("s_add_u32 s28, s28, s29")
    a(f"s_add_u32 s28, s28, {WS_FA}")
    a("s_waitcnt vmcnt(0)")
    publish(a, "s28", 3, 4)

def w2_voffs(a, V):
    a("v_lshrrev_b32 v2, 3, v1")
    a("v_and_b32 v3, 7, v1")
    a("v_bfe_u32 v4, v1, 4, 2")
    a("v_lshlrev_b32 v4, 1, v4")
    a("v_xor_b32 v3, v3, v4")
    a("v_lshlrev_b32 v2, 10, v2")
    a(f"v_lshl_add_u32 v{V}, v3, 4, v2")
    for k in range(1, 4):
        a(f"v_add_u32 v{V+k}, {k*7168}, v{V}")

def g2_map(a):
    a("s_bfe_u32 s4, s2, 0x20001")
    a("s_and_b32 s28, s2, 1")
    a("s_xor_b32 s28, s28, 1")
    a("s_lshl_b32 s28, s28, 2")
    a("s_add_u32 s4, s4, s28")
    a("s_lshl_b32 s4, s4, 2")
    a("s_lshr_b32 s5, s2, 3")
    a("s_and_b32 s28, s5, 3")
    a("s_add_u32 s4, s4, s28")
    a("s_lshr_b32 s5, s5, 2")

def gen_w2pre(a):
    V = 8
    a("s_lshl_b32 s7, s2, 1")
    a("s_add_u32 s7, s7, s6")
    a("s_lshl_b32 s28, s7, 1")
    a("v_mov_b32 v3, s28")
    a(f"global_load_ushort v{V_DSK}, v3, {pp(I_DSK)}")
    g2_map(a)
    w2_voffs(a, V)
    a("s_lshl_b32 s28, s6, 16")
    a("s_lshl_b32 s29, s5, 7")
    a("s_add_u32 s28, s28, s29")
    a("s_lshl_b32 s29, s6, 12")
    a(f"s_add_u32 s29, s29, {L2_W2}")
    a(f"v_mov_b32 v18, {FL_VALID}")
    a("v_mov_b32 v16, 0")
    a("v_mov_b32 v17, 1")
    a("s_mov_b32 s33, 0")
    a("s_cmp_lg_u32 s6, 0")
    a("s_cbranch_scc1 L_w2_part")
    a(f"global_load_dword v17, v16, {pp(I_DBG)} sc1")
    a.label("L_w2_part")
    a("s_cmp_eq_u32 s33, 2")
    a("s_cselect_b32 s31, 2, 6")
    a.label("L_w2_loop")
    a("s_mov_b32 m0, s29")
    a("s_add_u32 s29, s29, 8192")
    for k in range(4):
        a(f"buffer_load_dwordx4 v{V+k}, {S(SRD_W2)}, s28 offen offset:{k*1024} lds")
    a("s_add_u32 s28, s28, 131072")
    a("s_sub_u32 s31, s31, 1")
    a("s_cmp_lg_u32 s31, 0")
    a("s_cbranch_scc1 L_w2_loop")
    a("s_add_u32 s33, s33, 1")
    a("s_cmp_eq_u32 s33, 3")
    a("s_cbranch_scc1 L_w2_done")
    a("s_waitcnt vmcnt(24)")
    bar(a)
    a("s_cmp_lg_u32 s6, 0")
    a("s_cbranch_scc1 L_w2_part")
    a("s_cmp_lg_u32 s33, 2")
    a("s_cbranch_scc1 L_w2_part")
    a("v_cmp_eq_u32 vcc, 0, v17")
    a("s_cbranch_vccnz L_w2_part")
    a("ds_write_b32 v18, v17")
    a("s_branch L_w2_part")
    a.label("L_w2_done")
    a("s_lshl_b32 s28, s6, 2")
    a(f"s_add_u32 s29, s28, {FL_W2}")
    a(f"s_add_u32 s28, s28, {FL_EO}")
    a("s_lshl_b32 s30, s6, 13")
    a(f"s_add_u32 s30, s30, {L_SIDE}")
    a("s_waitcnt vmcnt(0)")
    lds_set(a, "s29", 1, 21, 22)
    a("s_cmp_lg_u32 s6, 0")
    a("s_cbranch_scc1 L_rd_3")
    a("v_cmp_eq_u32 vcc, 0, v17")
    a("s_cbranch_vccz L_rd_2")
    a.spin("L_rd_poll", 16)
    a(f"global_load_dword v17, v16, {pp(I_DBG)} sc1")
    a("s_waitcnt vmcnt(0)")
    a("v_cmp_eq_u32 vcc, 0, v17")
    a("s_cbranch_vccnz L_rd_poll")
    a.label("L_rd_2")
    a("ds_write_b32 v18, v17")
    a.label("L_rd_3")
    lds_wait(a, "s28", 1, 1, "w2eo", 17, 22, sleep=2)
W2P1 = 5
RPRE = 3

def gen_g2(a):
    ACC = 192; HF = 32; WF = 80; VW2 = 8; VH = 12; WA = 16
    HD = 3
    HSC = "" if "nosc1ld" in OPT else " sc1"
    def acc(nu, m): return ACC + 4*(nu*4+m)
    def hf(n, m): return HF + 16*(n % HD) + 4*m
    def wf(i, nu): return WF + 16*i + 4*nu
    def gs(i):
        if "g2st" in OPT: stamp(a, i, "any")
    g2_map(a)
    a("v_bfe_u32 v2, v1, 2, 2")
    a("v_and_b32 v3, 3, v1")
    a("v_lshrrev_b32 v4, 4, v1")
    a("v_lshl_add_u32 v6, v4, 2, v2")
    a("v_lshlrev_b32 v6, 7, v6")
    a("v_lshl_add_u32 v6, v3, 3, v6")
    a(f"s_mul_i32 s29, s3, 28672")
    a(f"s_add_u32 s29, s29, {L2_W2}")
    a("v_add_u32 v6, s29, v6")
    a("v_lshrrev_b32 v7, 1, v2")
    a("v_and_b32 v4, 1, v4")
    a("v_lshl_or_b32 v7, v4, 1, v7")
    for nu in range(4):
        a(f"v_xor_b32 v5, {nu}, v7")
        a(f"v_lshl_add_u32 v{WA+nu}, v5, 5, v6")
    lds_wait(a, FL_W2, 2, 1, "g2w2", 2, 4, sleep=1)
    gs(0)
    def trreads(i):
        for nu in range(4):
            for h in range(2):
                a(f"ds_read_b64_tr_b16 {vr(wf(i,nu)+2*h,2)}, v{WA+nu} offset:{i*4096+h*2048}")
    for i in range(7): trreads(i)
    w2_voffs(a, VW2)
    a(f"v_lshlrev_b32 v{VH}, 4, v1")
    for m in range(1, 4):
        a(f"v_add_u32 v{VH+m}, {m*57344}, v{VH}")
    a(f"s_mul_i32 s30, s4, {4*57344}")
    a(f"s_mul_i32 s31, s3, {14*1024}")
    a("s_add_u32 s30, s30, s31")
    a(f"s_mul_i32 s31, s3, {14*32768}")
    a("s_lshl_b32 s33, s5, 7")
    a("s_add_u32 s31, s31, s33")
    a("s_add_u32 s31, s31, 32768")
    a(f"s_mul_i32 s32, s4, {FSTR}")
    a("s_mul_i32 s33, s3, 28")
    a("s_add_u32 s32, s32, s33")
    a(f"s_add_u32 s32, s32, {WS_FH}")
    a(f"s_add_u32 s34, s32, {32*FSTR}")
    a("v_min_u32 v22, 6, v1")
    a("v_lshlrev_b32 v22, 2, v22")
    a("s_mul_i32 s33, s3, 24")
    a("s_sub_u32 s33, 112, s33")
    a("v_mov_b32 v25, s33")
    a("v_cmp_gt_u32 vcc, 7, v1")
    a("s_nop 1")
    a("v_cndmask_b32 v25, v25, v22, vcc")
    a("s_waitcnt vmcnt(0)")
    a("s_cmp_eq_u32 s35, 0")
    a("s_cbranch_scc1 L_g2_nopub")
    publish(a, "s35", 3, 4)
    a.label("L_g2_nopub")
    stamp(a, 5)
    gs(1)
    vm = VM(a)
    vm.q = ["pub"]
    def pollop(reg, soff, tag):
        va = 25 if tag == "fb" else 22
        vm.op(f"buffer_load_dword v{reg}, v{va}, {S(SRD_WS)}, {soff} offen sc1", tag)
    def pollchk(reg, soff, tag, sleep):
        va = 25 if tag == "fb" else 22
        vm.wait(tag)
        a(f"v_cmp_ne_u32 vcc, 1, v{reg}")
        a(f"s_cbranch_vccz L_g2_{tag}_ok")
        a.spin(f"L_g2_{tag}", sleep)
        a(f"buffer_load_dword v{reg}, v{va}, {S(SRD_WS)}, {soff} offen sc1")
        a("s_waitcnt vmcnt(0)")
        a(f"v_cmp_ne_u32 vcc, 1, v{reg}")
        a(f"s_cbranch_vccnz L_g2_{tag}")
        a.label(f"L_g2_{tag}_ok")
    def refill(i):
        a(f"s_add_u32 m0, s29, {i*4096}")
        a("s_nop 0")
        for k in range(4):
            vm.op(f"buffer_load_dwordx4 v{VW2+k}, {S(SRD_W2)}, s31 offen offset:{k*1024} lds", f"w_{i}")
        a("s_add_u32 s31, s31, 65536")
    def hload(n):
        for m in range(4):
            vm.op(f"buffer_load_dwordx4 {vr(hf(n,m),4)}, v{VH+m}, {S(SRD_WS)}, s30 offen{HSC}", f"h_{n}")
        if n == 6: a(f"s_sub_u32 s30, s30, {6*2048 - 1024}")
        else: a("s_add_u32 s30, s30, 2048")
    a("s_waitcnt lgkmcnt(0)")
    refill(0)
    pollop(23, "s32", "fa")
    for i in range(1, RPRE): refill(i)
    pollchk(23, "s32", "fa", 2)
    stamp(a, 6)
    gs(2)
    for n in range(HD): hload(n)
    nref = RPRE
    for n in range(14):
        i = n % 7
        if n >= 6 and n < 13:
            vm.wait(f"w_{(n+1)%7}")
            trreads((n+1) % 7)
        vm.wait(f"h_{n}")
        if n >= 7:
            a(f"s_waitcnt lgkmcnt({8 if n < 13 else 0})")
        for nu in range(4):
            for m in range(4):
                d = acc(nu, m)
                c = "0" if n == 0 else vr(d, 4)
                a(f"v_mfma_f32_16x16x32_bf16 {vr(d,4)}, {vr(wf(i,nu),4)}, {vr(hf(n,m),4)}, {c}")
        if n == 0: gs(3)
        if n == 6: gs(4)
        if n + HD == 7 - 2: pollop(24, "s34", "fb")
        if n + HD == 7: pollchk(24, "s34", "fb", 1)
        if n + HD < 14: hload(n + HD)
        if nref < 7:
            refill(nref); nref += 1
        if n == 7:
            a("s_lshl_b32 s33, s3, 6")
            a(f"s_mul_i32 s32, s5, {FSTR}")
            a("s_add_u32 s32, s32, s33")
            a("s_lshr_b32 s33, s4, 4")
            a("s_lshl_b32 s33, s33, 8")
            a("s_add_u32 s32, s32, s33")
            a(f"s_add_u32 s32, s32, {WS_FA}")
            a("v_and_b32 v22, 15, v1")
            a("v_lshlrev_b32 v22, 2, v22")
            a("v_lshrrev_b32 v2, 3, v1")
            a("v_and_b32 v3, 7, v1")
            a("v_bfe_u32 v4, v1, 4, 2")
            a("v_lshlrev_b32 v4, 1, v4")
            a("v_xor_b32 v3, v3, v4")
            a("v_lshlrev_b32 v2, 12, v2")
            a("v_lshl_add_u32 v26, v3, 4, v2")
            a(f"v_add_u32 v27, {8*4096-1024}, v26")
            a("v_and_b32 v28, 15, v1")
            a("v_lshlrev_b32 v28, 3, v28")
            a("s_lshl_b32 s34, s5, 18")
            a("s_lshl_b32 s33, s3, 16")
            a("s_add_u32 s34, s34, s33")
            a("s_lshl_b32 s33, s4, 7")
            a("s_add_u32 s34, s34, s33")
            a(f"s_add_u32 s34, s34, {WS_A}")
            a("s_lshl_b32 s31, s4, 9")
            a("s_lshl_b32 s33, s3, 7")
            a("s_add_u32 s31, s31, s33")
            a(f"s_add_u32 s31, s31, {WS_G}")
            vm.op(f"buffer_load_dwordx2 v[20:21], v28, {S(SRD_WS)}, s31 offen sc1", "g")
        if n == 10:
            pollop(23, "s32", "fc")
            gs(5)
    gs(6)
    stamp(a, 7)
    pollchk(23, "s32", "fc", 6)
    a("s_lshl_b32 s33, s3, 11")
    a(f"s_add_u32 m0, s33, {L2_AT}")
    a("s_nop 0")
    a(f"buffer_load_dwordx4 v26, {S(SRD_WS)}, s34 offen sc1 lds")
    a(f"buffer_load_dwordx4 v27, {S(SRD_WS)}, s34 offen offset:1024 sc1 lds")
    a("s_nop 3")
    a("v_lshl_add_u32 v5, v1, 4, s29")
    for m in range(4):
        for nu in range(4):
            a(f"ds_write_b128 v5, {vr(acc(nu,m),4)} offset:{(m*4+nu)*1024}")
    a("s_lshl_b32 s33, s3, 12")
    a(f"s_add_u32 s33, s33, {L2_W2}")
    a("v_lshl_add_u32 v6, v1, 4, s33")
    a(f"v_add_u32 v7, {2*28672}, v6")
    a("v_bfe_u32 v2, v1, 2, 2")
    a("v_and_b32 v3, 3, v1")
    a("v_lshrrev_b32 v4, 4, v1")
    a("v_lshl_add_u32 v8, v4, 2, v2")
    a("v_lshlrev_b32 v8, 7, v8")
    a("v_lshl_add_u32 v8, v3, 3, v8")
    a("v_lshrrev_b32 v9, 1, v2")
    a("v_and_b32 v4, 1, v4")
    a("v_lshl_or_b32 v9, v4, 1, v9")
    a("v_xor_b32 v9, s3, v9")
    a("v_lshl_add_u32 v8, v9, 5, v8")
    a(f"v_add_u32 v8, {L2_AT}, v8")
    a("s_mov_b32 s31, 0xffff0000")
    a("v_and_b32 v2, 15, v1")
    a("v_lshlrev_b32 v2, 10, v2")
    a("v_lshrrev_b32 v3, 4, v1")
    a("v_lshl_add_u32 v2, v3, 4, v2")
    a("s_lshl_b32 s32, s4, 16")
    a("s_lshl_b32 s33, s3, 14")
    a("s_add_u32 s32, s32, s33")
    a("s_lshl_b32 s33, s5, 7")
    a("s_add_u32 s32, s32, s33")
    a("s_waitcnt vmcnt(0) lgkmcnt(0)")
    gs(7)
    a("s_barrier")
    R = 64
    for ww in range(4):
        for nu in range(4):
            a(f"ds_read_b128 {vr(R+16*ww+4*nu,4)}, v{6 + ww//2} offset:{(ww%2)*28672 + nu*1024}")
    AT = 32
    for nu in range(4):
        a(f"ds_read_b64_tr_b16 {vr(AT+2*nu,2)}, v8 offset:{nu*2048}")
    a("s_waitcnt lgkmcnt(12)")
    for i in range(0, 16, 2):
        a(f"v_pk_add_f32 {vr(R+i,2)}, {vr(R+i,2)}, {vr(R+16+i,2)}")
    a("s_waitcnt lgkmcnt(4)")
    for i in range(0, 16, 2):
        a(f"v_pk_add_f32 {vr(R+32+i,2)}, {vr(R+32+i,2)}, {vr(R+48+i,2)}")
    for i in range(0, 16, 2):
        a(f"v_pk_add_f32 {vr(R+i,2)}, {vr(R+i,2)}, {vr(R+32+i,2)}")
    for i in range(0, 16, 2):
        a(f"v_pk_mul_f32 {vr(R+i,2)}, {vr(R+i,2)}, v[20:21] op_sel:[0,1] op_sel_hi:[1,1]")
    a("s_waitcnt lgkmcnt(0)")
    for i in range(8):
        a(f"v_lshlrev_b32 v40, 16, v{AT+i}")
        a(f"v_and_b32 v41, s31, v{AT+i}")
        a(f"v_fmac_f32 v{R+2*i}, v40, v20")
        a(f"v_fmac_f32 v{R+2*i+1}, v41, v20")
    P = 44
    for pr in range(2):
        p = P + 4*pr
        n0, n1 = 2*pr, 2*pr+1
        a(f"v_cvt_pk_bf16_f32 v{p}, v{R+4*n0}, v{R+4*n0+1}")
        a(f"v_cvt_pk_bf16_f32 v{p+1}, v{R+4*n0+2}, v{R+4*n0+3}")
        a(f"v_cvt_pk_bf16_f32 v{p+2}, v{R+4*n1}, v{R+4*n1+1}")
        a(f"v_cvt_pk_bf16_f32 v{p+3}, v{R+4*n1+2}, v{R+4*n1+3}")
        a("s_nop 1")
        a(f"v_permlane32_swap_b32 v{p}, v{p+2}")
        a(f"v_permlane32_swap_b32 v{p+1}, v{p+3}")
        a("s_nop 1")
        a(f"v_permlane16_swap_b32 v{p}, v{p+2}")
        a(f"v_permlane16_swap_b32 v{p+1}, v{p+3}")
        a(f"buffer_store_dwordx4 {vr(p,4)}, v2, {S(SRD_OUT)}, s32 offen offset:{64*pr}")

TR_RS = 1056
T2_BASE = 64*TR_RS
T2_RS = 144
TRX = 64
def gen_tr_loads(a):
    GW = 16
    a("s_sub_u32 s6, s2, 224")
    a("s_lshl_b32 s7, s6, 2")
    a("s_add_u32 s7, s7, s3")
    a("s_lshl_b32 s28, s7, 14")
    a("v_lshlrev_b32 v9, 4, v1")
    for r in range(16):
        a(f"buffer_load_dwordx4 {vr(TRX+4*r,4)}, v9, {S(SRD_X)}, s28 offen offset:{(r%4)*1024}")
        if r % 4 == 3: a("s_add_u32 s28, s28, 4096")
    a(f"global_load_dwordx4 {vr(GW,4)}, v9, {pp(I_GW)}")
    return 17

def gen_transpose(a):
    X = TRX; GW = 16
    a(f"s_mul_i32 s29, s3, {16*TR_RS}")
    a("v_add_u32 v3, s29, v9")
    for r in range(16):
        a(f"s_waitcnt vmcnt({16-r})")
        a(f"ds_write_b128 v3, {vr(X+4*r,4)} offset:{r*TR_RS}")
    a("v_bfe_u32 v4, v1, 2, 2")
    a("v_lshrrev_b32 v5, 4, v1")
    a("v_lshl_add_u32 v4, v5, 3, v4")
    a(f"v_mul_u32_u24 v4, {TR_RS}, v4")
    a("v_and_b32 v6, 3, v1")
    a("v_lshl_add_u32 v4, v6, 3, v4")
    a("s_lshl_b32 s29, s3, 8")
    a("v_add_u32 v4, s29, v4")
    a("v_and_b32 v6, 15, v1")
    a(f"v_mul_u32_u24 v6, {T2_RS}, v6")
    a("v_lshl_add_u32 v6, v5, 4, v6")
    a(f"s_mul_i32 s29, s3, {128*T2_RS}")
    a(f"s_add_u32 s29, s29, {T2_BASE}")
    a("v_add_u32 v6, s29, v6")
    a("v_lshrrev_b32 v7, 3, v1")
    a("v_and_b32 v11, 7, v1")
    a(f"v_mul_u32_u24 v13, {T2_RS}, v7")
    a("v_lshl_add_u32 v13, v11, 4, v13")
    a("v_add_u32 v13, s29, v13")
    a("v_lshlrev_b32 v7, 12, v7")
    a("v_lshl_add_u32 v7, v11, 4, v7")
    a("s_lshl_b32 s28, s3, 19")
    a("s_lshl_b32 s29, s6, 7")
    a("s_add_u32 s28, s28, s29")
    a(f"s_add_u32 s28, s28, {WS_UT}")
    a("s_waitcnt lgkmcnt(0)")
    a("s_barrier")
    O = 128
    n = 0
    for dt in range(8):
        for kh in range(2):
            for h in range(2):
                a(f"ds_read_b64_tr_b16 {vr(O+4*n+2*h,2)}, v4 offset:{(32*kh+4*h)*TR_RS + dt*32}")
            n += 1
    n = 0
    for dt in range(8):
        for kh in range(2):
            a(f"s_waitcnt lgkmcnt({min(15, 2*(15-n) + n)})")
            a(f"ds_write_b128 v6, {vr(O+4*n,4)} offset:{dt*16*T2_RS + kh*64}")
            n += 1
    O2 = 192
    for n in range(16):
        a(f"ds_read_b128 {vr(O2+4*n,4)}, v13 offset:{n*8*T2_RS}")
    for n in range(16):
        a(f"s_waitcnt lgkmcnt({15-n})")
        a(f"buffer_store_dwordx4 {vr(O2+4*n,4)}, v7, {S(SRD_WS)}, s28 offen sc1")
        a(f"s_add_u32 s28, s28, {8*4096}")
    stamp(a, 2)
    a("s_mov_b32 s31, 0xffff0000")
    a("s_waitcnt vmcnt(16)")
    for i in range(4):
        a(f"v_lshlrev_b32 v{20+2*i}, 16, v{GW+i}")
        a(f"v_and_b32 v{21+2*i}, s31, v{GW+i}")
    SS = 128
    def grow(r):
        T = 32 + 8*(r & 1)
        for i in range(4):
            a(f"v_lshlrev_b32 v{T+2*i}, 16, v{X+4*r+i}")
            a(f"v_and_b32 v{T+2*i+1}, s31, v{X+4*r+i}")
        for i in range(4):
            a(f"v_pk_mul_f32 {vr(T+2*i,2)}, {vr(T+2*i,2)}, {vr(20+2*i,2)}")
        for i in range(4):
            a(f"v_cvt_pk_bf16_f32 v{T+2*i}, v{T+2*i}, v{T+2*i+1}")
        for i in range(4):
            a(f"v_and_b32 v{T+2*i+1}, s31, v{T+2*i}")
            a(f"v_lshlrev_b32 v{T+2*i}, 16, v{T+2*i}")
        a(f"v_pk_add_f32 {vr(T,2)}, {vr(T,2)}, {vr(T+2,2)}")
        a(f"v_pk_add_f32 {vr(T+4,2)}, {vr(T+4,2)}, {vr(T+6,2)}")
        a(f"v_pk_add_f32 {vr(T,2)}, {vr(T,2)}, {vr(T+4,2)}")
        a(f"v_add_f32 v{SS+r}, v{T}, v{T+1}")
    a("s_lshl_b32 s28, s3, 2")
    a(f"s_add_u32 s28, s28, {FL_FREE}")
    lds_set(a, "s28", 1, 8, 10)
    for r in range(16):
        grow(r)
        if r == 2:
            a("s_waitcnt vmcnt(0)")
            a(f"ds_write_b32 v8, v10 offset:{FL_TR2 - FL_FREE}")
            a("s_cmp_lg_u32 s3, 0")
            a("s_cbranch_scc1 L_tr_nopub2")
            lds_wait(a, FL_TR2, 4, 1, "tr2", 12, 28, sleep=0)
            lds_wait(a, FL_VALID, 1, 1, "trv0", 12, 28, sleep=1)
            a(f"v_mul_u32_u24 v12, {FSTR}, v1")
            a("s_lshl_b32 s28, s6, 2")
            a(f"s_add_u32 s28, s28, {WS_FU}")
            a("s_mov_b32 s34, -1")
            a("s_mov_b32 s35, 0")
            a("s_mov_b64 exec, s[34:35]")
            a(f"buffer_store_dword v10, v12, {S(SRD_WS)}, s28 offen sc1")
            a("s_mov_b64 exec, -1")
            a.label("L_tr_nopub2")
            stamp(a, 3)
    a("s_nop 1")
    for i in range(8):
        a(f"v_permlane32_swap_b32 v{SS+i}, v{SS+8+i}")
    for i in range(8):
        a(f"v_add_f32 v{SS+i}, v{SS+i}, v{SS+8+i}")
    a("s_nop 1")
    for i in range(4):
        a(f"v_permlane16_swap_b32 v{SS+i}, v{SS+4+i}")
    for i in range(4):
        a(f"v_add_f32 v{SS+i}, v{SS+i}, v{SS+4+i}")
    for sh in (8, 4, 2, 1):
        a("s_nop 0")
        for i in range(4):
            a(f"v_add_f32_dpp v{SS+i}, v{SS+i}, v{SS+i} row_ror:{sh} row_mask:0xf bank_mask:0xf")
    a("v_and_b32 v7, 3, v1")
    for i in range(1, 4):
        a(f"v_cmp_eq_u32 vcc, {i}, v7")
        a("s_nop 1")
        a(f"v_cndmask_b32 v{SS}, v{SS}, v{SS+i}, vcc")
    a(f"v_cvt_pk_bf16_f32 v{SS}, v{SS}, v{SS}")
    a(f"v_and_b32 v{SS}, s31, v{SS}")
    a(f"v_mul_f32 v{SS}, {f2u(-LOG2E)}, v{SS}")
    a(f"v_exp_f32 v{SS}, v{SS}")
    a("s_nop 0")
    a(f"v_add_f32 v{SS}, 1.0, v{SS}")
    a(f"v_rcp_f32 v{SS}, v{SS}")
    a("s_nop 0")
    a(f"v_cvt_pk_bf16_f32 v{SS}, v{SS}, v{SS}")
    a(f"v_and_b32 v{SS}, s31, v{SS}")
    a(f"v_sub_f32 v{SS+1}, 1.0, v{SS}")
    a(f"v_cvt_pk_bf16_f32 v{SS+1}, v{SS+1}, v{SS+1}")
    a(f"v_and_b32 v{SS+1}, s31, v{SS+1}")
    a("v_lshl_add_u32 v7, v5, 2, v7")
    a("v_lshlrev_b32 v7, 3, v7")
    a("s_lshl_b32 s28, s7, 7")
    a(f"s_add_u32 s28, s28, {WS_G}")
    a("s_mov_b32 s34, 0x000f000f")
    a("s_mov_b32 s35, 0x000f000f")
    a("s_mov_b64 exec, s[34:35]")
    a(f"buffer_store_dwordx2 {vr(SS,2)}, v7, {S(SRD_WS)}, s28 offen sc1")
    a("s_mov_b64 exec, -1")
    a("s_waitcnt vmcnt(0)")
    stamp(a, 4)

def gen_kernel(a):
    a.raw(f".globl {KNAME}\n.p2align 8\n.type {KNAME},@function")
    a.label(KNAME)
    a(f"s_load_dwordx16 s[{P0}:{P0+15}], s[0:1], 0")
    a(f"s_load_dwordx16 s[{P0+16}:{P0+31}], s[0:1], 64")
    a(f"s_load_dwordx2 s[{P0+32}:{P0+33}], s[0:1], 128")
    a("s_cmp_ge_u32 s2, 256")
    a("s_cbranch_scc1 L_end")
    if "stamps" in OPT:
        a(f"s_memtime s[{ST0}:{ST0+1}]")
        a(f"s_memrealtime s[{ST0+2}:{ST0+3}]")
    if "nopf" not in OPT:
        a("s_getpc_b64 s[6:7]")
        a.label("L_pc0")
        a("v_lshlrev_b32 v1, 6, v0")
        a("v_min_u32 v1, L_codeend-L_pc0, v1")
        a("global_load_dword v31, v1, s[6:7]")
    a("v_lshrrev_b32 v2, 6, v0")
    a("v_and_b32 v1, 63, v0")
    a("v_readfirstlane_b32 s3, v2")
    a("s_and_b32 s6, s2, 7")
    a("s_lshr_b32 s7, s2, 3")
    a("s_and_b32 s4, s6, 1")
    a("s_lshl_b32 s4, s4, 2")
    a("s_and_b32 s30, s7, 3")
    a("s_add_u32 s4, s4, s30")
    a("s_lshr_b32 s5, s6, 1")
    a("s_mul_i32 s5, s5, 7")
    a("s_lshr_b32 s30, s7, 2")
    a("s_add_u32 s5, s5, s30")
    def common_srds():
        a("s_mov_b32 s0, 0x100000")
        srd(a, SRD_X, ptr(I_U), 2048*512*2)
        srd(a, SRD_W1, ptr(I_W1), 512*1792*2)
        srd(a, SRD_WS, ptr(I_WS), WS_SIZE)
        srd(a, SRD_W2, ptr(I_W2), 1792*512*2)
        srd(a, SRD_OUT, ptr(I_OUT), 2048*512*2)
    a("s_cmp_lt_u32 s3, 4")
    a("s_cbranch_scc1 L_w03")
    a("s_cmp_ge_u32 s3, 6")
    a("s_cbranch_scc1 L_kfin")
    a("s_cmp_lg_u32 s3, 4")
    a("s_cbranch_scc1 L_noinit")
    a("v_mov_b32 v3, 0")
    a(f"v_mov_b32 v4, {FLB}")
    a("v_lshl_add_u32 v4, v1, 2, v4")
    a("ds_write_b32 v4, v3")
    a.label("L_noinit")
    gen_loader_setup(a)
    a("s_waitcnt lgkmcnt(0)")
    common_srds()
    a("s_cmp_ge_u32 s2, 224")
    a("s_cbranch_scc1 L_spare45")
    gen_loader(a)
    a.label("L_ph2_loader")
    gen_w2pre(a)
    stamp(a, 2)
    stamp(a, 3)
    a("s_mov_b32 s33, 1")
    a("s_branch L_conv")
    a.label("L_w03")
    a("s_cmp_ge_u32 s2, 224")
    a("s_cbranch_scc1 L_tr")
    gen_g1_setup(a)
    a("s_waitcnt lgkmcnt(0)")
    common_srds()
    G1G2[0] = True
    gen_g1(a)
    a.label("L_g2")
    gen_g2(a)
    if "stamps" in OPT:
        a("s_waitcnt vmcnt(0)")
        stamp(a, 1)
    G1G2[0] = False
    stamp_flush(a, 8)
    a("s_endpgm")
    a.label("L_tr")
    a("s_waitcnt lgkmcnt(0)")
    common_srds()
    gen_tr_loads(a)
    gen_transpose(a)
    lds_wait(a, FL_VALID, 1, 1, "trv", 3, 4, sleep=4)
    a(f"s_mul_i32 s35, s6, {FSTR}")
    a("s_lshl_b32 s28, s3, 2")
    a("s_add_u32 s35, s35, s28")
    a(f"s_add_u32 s35, s35, {WS_FH + 32*FSTR + 112}")
    publish(a, "s35", 3, 4)
    a("s_mov_b32 s35, 0")
    a("s_branch L_g2")
    a.label("L_spare45")
    a("s_sub_u32 s6, s3, 4")
    a("s_cmp_lg_u32 s2, 255")
    a("s_cbranch_scc1 L_sp_bar")
    a("s_cmp_lg_u32 s3, 4")
    a("s_cbranch_scc1 L_sp_bar")
    for i in range(4):
        a(f"v_mov_b32 v{4+i}, 0")
    a("v_lshrrev_b32 v2, 3, v1")
    a(f"v_mul_u32_u24 v2, {FSTR}, v2")
    a("v_and_b32 v3, 7, v1")
    a("v_lshl_add_u32 v2, v3, 4, v2")
    a(f"s_mov_b32 s28, {WS_FH}")
    for i in range(12):
        a(f"buffer_store_dwordx4 v[4:7], v2, {S(SRD_WS)}, s28 offen sc1")
        a(f"s_add_u32 s28, s28, {8*FSTR}")
    a(f"s_mov_b32 s28, {WS_FA}")
    for i in range(4):
        a(f"buffer_store_dwordx4 v[4:7], v2, {S(SRD_WS)}, s28 offen offset:{i*128} sc1")
    a("v_mov_b32 v3, 1")
    a("s_waitcnt vmcnt(0)")
    a("s_mov_b64 exec, 1")
    a(f"global_store_dword v4, v3, {pp(I_DBG)} sc1")
    a("s_mov_b64 exec, -1")
    a.label("L_sp_bar")
    a("s_barrier")
    a("s_cmp_lg_u32 s6, 0")
    a("s_cbranch_scc1 L_sp_v")
    a("v_mov_b32 v16, 0")
    a.spin("L_sp_poll", 16)
    a(f"global_load_dword v17, v16, {pp(I_DBG)} sc1")
    a("s_waitcnt vmcnt(0)")
    a("v_cmp_eq_u32 vcc, 0, v17")
    a("s_cbranch_vccnz L_sp_poll")
    lds_set(a, FL_VALID, 1, 16, 17)
    a.label("L_sp_v")
    lds_wait(a, FL_FREE, 4, 1, "spring", 17, 22, sleep=4)
    a("s_branch L_ph2_loader")
    a.label("L_kfin")
    gen_ktab_addr(a)
    a("s_waitcnt lgkmcnt(0)")
    gen_ktab_loads(a)
    common_srds()
    gen_ktab(a)
    gen_kfin(a)
    stamp(a, 3)
    a("s_mov_b32 s33, 0")
    a.label("L_conv")
    gen_conv(a)
    stamp(a, 4)
    stamp_flush(a, 5)
    a.label("L_end")
    a.label("L_codeend")
    a("s_endpgm")

def kd(name, vgpr, sgpr=102):
    return f""".p2align 6
.amdhsa_kernel {name}
  .amdhsa_next_free_vgpr {vgpr}
  .amdhsa_next_free_sgpr {sgpr}
  .amdhsa_accum_offset {vgpr}
  .amdhsa_group_segment_fixed_size 0
  .amdhsa_kernarg_size 136
  .amdhsa_user_sgpr_count 2
  .amdhsa_user_sgpr_kernarg_segment_ptr 1
  .amdhsa_system_sgpr_workgroup_id_x 1
.end_amdhsa_kernel"""

def main():
    out = sys.argv[1] if len(sys.argv) > 1 else "k.s"
    if len(sys.argv) > 2:
        OPT.update(sys.argv[2].split(","))
    OPT.add("nowalk")
    a = Asm()
    a.raw(f"; @launch grid=(256,1,1) block=(512,1,1) lds={LDS_SIZE}")
    a.raw('.amdgcn_target "amdgcn-amd-amdhsa--gfx950"')
    a.raw(".text")
    gen_kernel(a)
    a.raw('.section .rodata,"a"')
    a.raw(kd(KNAME, 256))
    open(out, "w").write(a.text())

if __name__ == "__main__":
    main()
```

```python
import sys, struct, math

KNAME = "gated_mix__ssm_conv_s4__glu_gated_swiglu__prompt_kernel"
OPT = set()

def f2u(x):
    return struct.unpack("<I", struct.pack("<f", x))[0]

import re
def est_size(s):
    m = s.split()[0]
    lit = 0
    for tok in re.findall(r"(?<![\w\[:])(-?(?:0x[0-9a-fA-F]+|\d+))(?![\w\]:.])", s.split(None, 1)[1] if " " in s else ""):
        v = int(tok, 0)
        if not (-16 <= v <= 64): lit = 4
    if m.startswith(("ds_", "buffer_", "global_", "v_mfma", "v_pk_", "s_load", "s_mem")): return 8
    if m.startswith("s_"):
        if m in ("s_waitcnt", "s_nop", "s_sleep", "s_branch", "s_barrier", "s_setprio", "s_endpgm") or m.startswith("s_cbranch"): return 4
        return 4 + lit
    if m in ("v_fma_f32", "v_lshl_add_u32", "v_lshl_or_b32", "v_add3_u32", "v_bfe_u32", "v_min3_u32", "v_cvt_pk_bf16_f32", "v_perm_b32",
             "v_alignbit_b32", "v_and_or_b32", "v_mul_lo_u32") or "dpp" in m or "-v" in s: return 8
    return 4 + lit

HOP = 56
class Asm:
    def __init__(self):
        self.L = []
        self.walk = None
    def _hop(self):
        name, k, _ = self.walk
        self.L.append(f"Lh_{name}_{k}:")
        self.L.append(f"    s_cbranch_execz Lh_{name}_{k+1}")
        self.walk = [name, k+1, 4]
    def walk_begin(self, name):
        if "nowalk" in OPT: return
        self.walk = [name, 0, 0]
        self._hop()
    def walk_end(self, to="L_walk_ret"):
        if "nowalk" in OPT: return
        name, k, _ = self.walk
        self.L.append(f"Lh_{name}_{k}:")
        self.L.append(f"    s_cbranch_execz {to}")
        self.walk = None
    def __call__(self, s):
        self.L.append("    " + s)
        if self.walk is not None:
            self.walk[2] += est_size(s)
            if self.walk[2] >= HOP:
                self._hop()
    def label(self, s):
        self.L.append(s + ":")
    def spin(self, s, sleep=0):
        self.L.append(s + ":")
        self("s_sub_u32 s0, s0, 1")
        self("s_cbranch_scc1 L_end")
        if sleep:
            self(f"s_sleep {sleep}")
    def raw(self, s):
        self.L.append(s)
    def text(self):
        return "\n".join(self.L) + "\n"

RET = 34
def walk(a, label):
    if "nowalk" in OPT: return
    a("s_mov_b64 exec, 0")
    a(f"s_call_b64 s[{RET}:{RET+1}], {label}")
    a("s_mov_b64 exec, -1")

def vr(b, n):
    return f"v[{b}:{b+n-1}]" if n > 1 else f"v{b}"

class VM:
    def __init__(self, a):
        self.a = a; self.q = []
    def op(self, s, tag):
        self.a(s); self.q.append(tag)
    def wait(self, tag):
        idx = max(i for i, t in enumerate(self.q) if t == tag) if tag in self.q else -1
        if idx < 0: return
        n = len(self.q) - 1 - idx
        assert n <= 63
        self.a(f"s_waitcnt vmcnt({n})")
        self.q = self.q[idx+1:]

WS_H    = 0x000000
WS_UT   = 0x800000
WS_G    = 0xA00000
WS_A    = 0xB00000
FSTR    = 4352
WS_FH   = 0xE00000
WS_FA   = 0xE80000
WS_FU   = WS_FH + 64*FSTR
WS_STAMP = 0x1300000
WS_SIZE = 0x1400000
LOG2E = 1.4426950408889634

SRD_X, SRD_W1, SRD_W2, SRD_WS, SRD_OUT = 8, 12, 16, 20, 24
P0 = 36
def ptr(i): return P0 + 2*i
def pp(i): return f"s[{ptr(i)}:{ptr(i)+1}]"
(I_U, I_ARE, I_AIM, I_BRE, I_BIM, I_CRE, I_CIM, I_LDT, I_DSK, I_X, I_W1, I_W3, I_W2, I_GW, I_OUT, I_DBG, I_WS) = range(17)
ST0 = 70
def S(d): return f"s[{d}:{d+3}]"

G1G2 = [False]
def stamp(a, idx, grp="main"):
    if "stamps" not in OPT: return
    if ("kst" in OPT) != (grp == "kst") and grp != "any": return
    if ("itst" in OPT or "g2st" in OPT) and G1G2[0] and grp != "any": return
    a(f"s_memtime s[{ST0+4*idx}:{ST0+1+4*idx}]")
    a(f"s_memrealtime s[{ST0+2+4*idx}:{ST0+3+4*idx}]")
    a("s_waitcnt lgkmcnt(0)")
def stamp_flush(a, n):
    if "stamps" not in OPT or any(o.startswith("amp") for o in OPT): return
    a("s_waitcnt lgkmcnt(0)")
    a("s_lshl_b32 s34, s2, 3")
    a("s_add_u32 s34, s34, s3")
    a("s_lshl_b32 s34, s34, 6")
    a(f"s_add_u32 s34, s34, {WS_STAMP}")
    a("v_mov_b32 v1, 0")
    for i in range(n):
        a(f"v_mov_b32 v2, s{ST0+4*i}")
        a(f"v_mov_b32 v3, s{ST0+2+4*i}")
        a(f"buffer_store_dwordx2 v[2:3], v1, {S(SRD_WS)}, s34 offen offset:{8*i}")
        a("s_nop 1")

SLOT = 49152
L_SIDE = 3*SLOT
SIDE_U = 0
SIDE_C = 6144
SIDE_F = 7680
LDS_SIZE = 163840
FLB = L_SIDE + SIDE_F
FL_FULL = FLB + 0
FL_ISS = FLB + 8
FL_VALID = FLB + 12
FL_FREE = FLB + 16
FL_EO = FLB + 32
FL_W2 = FLB + 40
FL_TR = FLB + 48
FL_TR2 = FLB + 64
FL_MASK = FLB + 80
FL_UT = FLB + 88
FL_X = FLB + 96
L2_XB = 139520
SIDE_XA = 4608
KT_BASE = 0
KG_RS = 272
L2_W2 = 0
L2_EO = 114688
L2_AT = 131328
EO_O = 4160

def srd(a, d, base, nbytes):
    a(f"s_mov_b32 s{d}, s{base}")
    a(f"s_and_b32 s{d+1}, s{base+1}, 0xffff")
    a(f"s_mov_b32 s{d+2}, {nbytes}")
    a(f"s_mov_b32 s{d+3}, 0x00020000")

def lds_wait(a, addr, n, val, tag, va, vt, sleep=1):
    a(f"v_mov_b32 v{va}, {addr}")
    a.spin(f"L_lw_{tag}", sleep)
    if n == 1:
        a(f"ds_read_b32 v{vt}, v{va}")
        a("s_waitcnt lgkmcnt(0)")
    elif n == 2:
        a(f"ds_read_b64 {vr(vt,2)}, v{va}")
        a("s_waitcnt lgkmcnt(0)")
        a(f"v_min_u32 v{vt}, v{vt}, v{vt+1}")
    else:
        a(f"ds_read_b128 {vr(vt,4)}, v{va}")
        a("s_waitcnt lgkmcnt(0)")
        a(f"v_min_u32 v{vt}, v{vt}, v{vt+1}")
        a(f"v_min3_u32 v{vt}, v{vt}, v{vt+2}, v{vt+3}")
    a(f"v_cmp_gt_u32 vcc, {val}, v{vt}")
    a(f"s_cbranch_vccnz L_lw_{tag}")

BARN = [0]
def bar(a):
    BARN[0] += 1
    a("s_cmp_ge_u32 s2, 224")
    a(f"s_cbranch_scc1 L_bar{BARN[0]}")
    a("s_barrier")
    a.label(f"L_bar{BARN[0]}")

def lds_set(a, addr, val, va, vv):
    a(f"v_mov_b32 v{va}, {addr}")
    a(f"v_mov_b32 v{vv}, {val}")
    a(f"ds_write_b32 v{va}, v{vv}")

def publish(a, soff, va, vv):
    a(f"v_mov_b32 v{vv}, 1")
    a(f"v_mov_b32 v{va}, 0")
    a("s_mov_b64 exec, 1")
    a(f"buffer_store_dword v{vv}, v{va}, {S(SRD_WS)}, {soff} offen sc1")
    a("s_mov_b64 exec, -1")

def arrive(a, tag, va, vv):
    a(f"v_mov_b32 v{va}, 0")
    a(f"v_mov_b32 v{vv}, 1")
    a("s_mov_b64 exec, 1")
    a(f"global_atomic_add v{vv+1}, v{va}, v{vv}, {pp(I_DBG)} offset:128 sc0 sc1")
    a("s_waitcnt vmcnt(0)")
    a(f"v_cmp_eq_u32 vcc, 32, v{vv+1}")
    a(f"s_cbranch_vccz L_arr_{tag}")
    a(f"global_store_dword v{va}, v{vv}, {pp(I_DBG)} sc1")
    a.label(f"L_arr_{tag}")
    a("s_mov_b64 exec, -1")

def cmul(a, d, x, y):
    a(f"v_pk_mul_f32 {vr(d,2)}, {vr(x,2)}, {vr(y,2)} op_sel:[0,0] op_sel_hi:[0,1]")
    a(f"v_pk_fma_f32 {vr(d,2)}, {vr(x,2)}, {vr(y,2)}, {vr(d,2)} op_sel:[1,1,0] op_sel_hi:[1,0,1] neg_lo:[0,1,0]")

KT_PR = 120
KT_D = 24
V_DSK = 20
def gen_ktab_addr(a):
    a("s_sub_u32 s6, s3, 6")
    a("s_lshl_b32 s7, s2, 1")
    a("s_add_u32 s7, s7, s6")
    a("s_lshl_b32 s28, s7, 8")
    a("v_lshl_add_u32 v2, v1, 2, s28")
    a("s_lshl_b32 s29, s7, 1")
    a("v_mov_b32 v3, s29")

def gen_ktab_loads(a):
    for i in range(6):
        a(f"global_load_dword v{KT_PR+i}, v2, {pp(I_ARE+i)}")
    a(f"global_load_short_d16_hi v{KT_PR+6}, v3, {pp(I_LDT)}")
    a(f"global_load_ushort v{V_DSK}, v3, {pp(I_DSK)}")

SEG0, SEGN = 110, 92
def gen_ktab(a):
    U = 64
    DT = 127; DT1 = 23; AP = 74; BP = 75
    W1, W4, W512 = 76, 78, 80
    T0 = 82
    W2, W128, W256, Y32 = 56, 58, 60, 62
    Z = 24
    VWR, VRD = 21, 22
    PT = 128
    a("s_lshl_b32 s30, s6, 13")
    a(f"s_add_u32 s30, s30, {L_SIDE}")
    a(f"v_lshl_add_u32 v{VWR}, v1, 4, s30")
    a("v_bfe_u32 v6, v1, 2, 2")
    a("v_lshrrev_b32 v7, 4, v1")
    a("v_lshl_add_u32 v6, v7, 3, v6")
    a(f"v_lshl_add_u32 v{VRD}, v6, 4, s30")
    a("v_and_b32 v6, 1, v1")
    a(f"v_lshl_add_u32 v{VRD}, v6, 3, v{VRD}")
    a("v_bfe_u32 v6, v1, 1, 1")
    a("v_mul_u32_u24 v6, 1088, v6")
    a(f"v_add_u32 v{VRD}, v6, v{VRD}")
    a("s_mov_b32 s31, 0xffff0000")
    a(f"s_mov_b32 s32, {f2u(LOG2E)}")
    L2E_HI = struct.unpack("<f", struct.pack("<f", LOG2E))[0]
    a(f"s_mov_b32 s33, {f2u(LOG2E - L2E_HI)}")
    a(f"s_mov_b32 s34, {f2u(1.0/(2*math.pi))}")
    a("s_waitcnt vmcnt(0)")
    st = {"c": 0, "nb": 0}
    def k(x):
        a(x)
        st["c"] += 2 if x.split()[0] in ("v_exp_f32", "v_sin_f32", "v_cos_f32") else 1
        lim = SEG0 if st["nb"] == 0 else SEGN
        if st["c"] >= lim and st["nb"] < 9:
            if st["nb"] == 0: a("s_barrier")
            else: bar(a)
            st["nb"] += 1; st["c"] = 0
    L = KT_PR+6
    k(f"v_and_b32 v{L}, s31, v{L}")
    k(f"v_mul_f32 v{DT}, s32, v{L}")
    k(f"v_fma_f32 v{DT1}, v{L}, s32, -v{DT}")
    k(f"v_fmac_f32 v{DT1}, s33, v{L}")
    k(f"v_exp_f32 v{DT}, v{DT}")
    k(f"v_mul_f32 v{DT1}, {f2u(math.log(2.0))}, v{DT1}")
    k(f"v_fmac_f32 v{DT}, v{DT}, v{DT1}")
    k(f"v_cvt_pk_bf16_f32 v{DT}, v{DT}, v{DT}")
    k(f"v_and_b32 v{DT}, s31, v{DT}")
    z = lambda c: Z + 2*c
    CB = z(4)
    E = 96
    ev = lambda kk, it: E + 6*kk + 2*(it-1)
    mult = [Y32]*4 + [W2]*4 + [W2, W2, W128, W128] + [W256, W256]
    def cmuls(lst):
        for d, x, y in lst:
            k(f"v_mul_f32 v{d}, v{x}, v{y}")
            k(f"v_mul_f32 v{d+1}, v{x}, v{y+1}")
        for d, x, y in lst:
            k(f"v_fma_f32 v{d}, -v{x+1}, v{y+1}, v{d}")
            k(f"v_fmac_f32 v{d+1}, v{x+1}, v{y}")
    for half in range(2):
        if "nokgen" in OPT: break
        for i in range(6):
            if half == 0: k(f"v_lshlrev_b32 v{U+i}, 16, v{KT_PR+i}")
            else: k(f"v_and_b32 v{U+i}, s31, v{KT_PR+i}")
        k(f"v_mul_f32 v{AP}, v{DT}, v{U}")
        k(f"v_mul_f32 v{BP}, v{DT}, v{U+1}")
        k(f"v_mul_f32 v{U+2}, v{DT}, v{U+2}")
        k(f"v_mul_f32 v{U+3}, v{DT}, v{U+3}")
        k(f"v_mul_f32 v{AP}, s32, v{AP}")
        k(f"v_mul_f32 v{BP}, s34, v{BP}")
        cmuls([(CB, U+4, U+2)])
        dsts = [(z(1), 8, True), (W1, 1, False), (W128, 128, False)]
        for n, (dst, l, cj) in enumerate(dsts):
            lit = "1.0" if l == 1 else str(f2u(float(l)))
            k(f"v_mul_f32 v{T0+4*n}, {lit}, v{AP}")
            k(f"v_mul_f32 v{T0+4*n+1}, {lit}, v{BP}")
        for n in range(3):
            k(f"v_exp_f32 v{T0+4*n}, v{T0+4*n}")
            k(f"v_fract_f32 v{T0+4*n+1}, v{T0+4*n+1}")
        for n in range(3):
            k(f"v_cos_f32 v{T0+4*n+2}, v{T0+4*n+1}")
            k(f"v_sin_f32 v{T0+4*n+3}, v{T0+4*n+1}")
        k(f"v_mov_b32 v{z(0)}, 1.0")
        for n, (dst, l, cj) in enumerate(dsts):
            k(f"v_mul_f32 v{dst}, v{T0+4*n}, v{T0+4*n+2}")
            k(f"v_mul_f32 v{dst+1}, {'-' if cj else ''}v{T0+4*n}, v{T0+4*n+3}")
        k(f"v_mov_b32 v{z(0)+1}, 0")
        cmuls([(z(2), z(1), z(1)), (W2, W1, W1), (z(5), CB, W1), (z(6), CB, W128), (W256, W128, W128)])
        cmuls([(z(3), z(2), z(1)), (Y32, z(2), z(2)), (z(7), z(6), W1), (W4, W2, W2), (z(8), CB, W256), (z(9), z(6), W256), (W512, W256, W256)])
        cmuls([(z(10), z(8), W256), (T0, W512, W512)])
        cmuls([(z(11), z(10), W4), (z(13), T0, z(6)), (z(12), T0, CB)])
        def val(c0, kk, it):
            if c0 == 0 and kk == 0 and it == 1: return Y32
            return z(c0+kk) if it == 0 else ev(kk, it)
        def tile(t, c0, nch, extra=None):
            for it in range(1, 4):
                cmuls([(ev(kk, it), val(c0, kk, it-1), mult[c0+kk]) for kk in range(nch) if not (c0 == 0 and kk == 0 and it == 1)])
            if extra is not None:
                cmuls([(extra, ev(0, 3), mult[c0])])
            for pair in range(2):
                for pl in range(2):
                    p = PT + 64*half + 16*t + 4*(2*pl+pair)
                    for kk in range(2):
                        c = 2*pair + kk
                        if c < nch:
                            k(f"v_cvt_pk_bf16_f32 v{p+2*kk}, v{val(c0,c,0)+pl}, v{val(c0,c,1)+pl}")
                            k(f"v_cvt_pk_bf16_f32 v{p+2*kk+1}, v{val(c0,c,2)+pl}, v{val(c0,c,3)+pl}")
                        elif c == nch:
                            k(f"v_cvt_pk_bf16_f32 v{p}, v{extra+pl}, v{extra+pl}")
        tile(0, 0, 4)
        tile(1, 4, 4)
        tile(2, 8, 4)
        tile(3, 12, 2, extra=z(8))
    print("kgen barriers placed in VALU phase:", st["nb"], "left", st["c"], file=sys.stderr)
    gen_kfin_addr(k)
    print("after addr:", st["nb"], "left", st["c"], file=sys.stderr)
    while st["nb"] < 9:
        bar(a); st["nb"] += 1
    stamp(a, 1)
    lds_wait(a, FL_VALID, 1, 1, "kfv", 4, 60, sleep=1)
    a("s_and_b32 s29, s7, 31")
    a(f"s_mul_i32 s29, s29, {FSTR}")
    a(f"s_add_u32 s29, s29, {WS_FU}")
    a("v_and_b32 v54, 31, v1")
    a("v_lshlrev_b32 v54, 2, v54")
    a(f"buffer_load_dword v55, v54, {S(SRD_WS)}, s29 offen sc1")
    SP = 1088
    FRG = [64, 80, 96, 112]
    D = KT_D
    for half in range(2):
        for t in range(4):
            for sp in range(4):
                a(f"ds_write_b128 v{VWR}, {vr(PT+64*half+16*t+4*sp,4)} offset:{sp*SP}")
            for pl in range(2):
                for nh in range(2):
                    for h in range(2):
                        a(f"ds_read_b64_tr_b16 {vr(FRG[t]+8*pl+4*nh+2*h,2)}, v{VRD} offset:{2*pl*SP + nh*512 + h*64}")
            if t >= 2:
                a("s_waitcnt lgkmcnt(12)")
                for kk in range(4):
                    c = "0" if (half == 0 and kk == 0) else vr(D+4*(t-2), 4)
                    a(f"v_mfma_f32_16x16x32_bf16 {vr(D+4*(t-2),4)}, {vr(FRG[t-1]+4*kk,4)}, {vr(FRG[0]+4*kk,4)}, {c}")
        a("s_waitcnt lgkmcnt(0)")
        for kk in range(4):
            c = "0" if (half == 0 and kk == 0) else vr(D+8, 4)
            a(f"v_mfma_f32_16x16x32_bf16 {vr(D+8,4)}, {vr(FRG[3]+4*kk,4)}, {vr(FRG[0]+4*kk,4)}, {c}")

def gen_g1_setup(a):
    ACC = 128
    XF = 32; WF = 64; XA = 8; WA = 12
    a("v_and_b32 v2, 15, v1")
    a("v_lshrrev_b32 v3, 4, v1")
    a("v_bfe_u32 v4, v2, 1, 3")
    a("s_lshl_b32 s28, s3, 13")
    a(f"s_add_u32 s28, s28, {SLOT}")
    a("v_lshlrev_b32 v5, 7, v2")
    a("v_add_u32 v5, s28, v5")
    for sig in range(2):
        a(f"v_add_u32 v6, {4*sig}, v3")
        a("v_xor_b32 v6, v6, v4")
        a(f"v_lshl_add_u32 v{XA+sig}, v6, 4, v5")
    a("v_bfe_u32 v2, v1, 2, 2")
    a("v_and_b32 v3, 3, v1")
    a("v_lshrrev_b32 v4, 4, v1")
    a("v_lshl_add_u32 v6, v4, 3, v2")
    a("v_lshlrev_b32 v6, 7, v6")
    a("v_lshl_add_u32 v6, v3, 3, v6")
    a(f"v_add_u32 v6, {32768+SLOT}, v6")
    a("v_lshrrev_b32 v7, 1, v2")
    a("v_and_b32 v4, 1, v4")
    a("v_lshl_or_b32 v7, v4, 1, v7")
    for nu in range(4):
        a(f"v_xor_b32 v5, {nu}, v7")
        a(f"v_lshl_add_u32 v{WA+nu}, v5, 5, v6")
    for i in range(0, 128, 2):
        a(f"v_pk_mul_f32 {vr(ACC+i,2)}, 0, 0")
    a("s_lshl_b32 s28, s3, 2")
    a(f"s_add_u32 s28, s28, {FL_FREE}")
    a("v_mov_b32 v19, s28")
    a("v_mov_b32 v20, 0")

def gen_g1(a):
    ACC = 128
    XF = 32; WF = 64; XA = 8; WA = 12
    def acc(mat, nu, m): return ACC + 4*((mat*4+nu)*4+m)
    def xf(sig, m): return XF + 16*(sig & 1) + 4*m
    def wf(sig, mat, nu): return WF + 32*(sig & 1) + 4*(mat*4+nu)
    def reads(sig):
        r = []
        for m in range(4):
            r.append(f"ds_read_b128 {vr(xf(sig,m),4)}, v{XA+sig} offset:{m*2048}")
        for mat in range(2):
            for nu in range(4):
                for h in range(2):
                    r.append(f"ds_read_b64_tr_b16 {vr(wf(sig,mat,nu)+2*h,2)}, v{WA+nu} offset:{mat*8192+sig*4096+h*512}")
        return r
    def mfmas(sig):
        r = []
        for mat in range(2):
            for nu in range(4):
                for m in range(4):
                    d = acc(mat, nu, m)
                    r.append(f"v_mfma_f32_16x16x32_bf16 {vr(d,4)}, {vr(wf(sig,mat,nu),4)}, {vr(xf(sig,m),4)}, {vr(d,4)}")
        return r
    a("s_mov_b32 s7, 1")
    a("s_mov_b32 s28, 8")
    a(f"s_mov_b32 s30, {SLOT}")
    a("s_barrier")
    stamp(a, 2)
    for r in reads(0): a(r)
    a.label("L_g1_loop")
    a("s_add_u32 s7, s7, 1")
    a("s_cmp_eq_u32 s7, 3")
    a(f"s_cselect_b32 s29, {(-2*SLOT) & 0xffffffff}, s30")
    a("s_cselect_b32 s7, 0, s7")
    M = mfmas(0); R = reads(1)
    issued = 0
    for i in range(32):
        if i % 4 == 0:
            need = 4 + 2*(i//4 + 1)
            n = (20 - need) + issued
            a(f"s_waitcnt lgkmcnt({min(n,15)})")
        a(M[i])
        if issued < 20 and i >= 2:
            a(R[issued]); issued += 1
        if i == 24:
            a(f"v_add_u32 v{XA}, s29, v{XA}")
            a(f"v_add_u32 v{XA+1}, s29, v{XA+1}")
        if i in (25, 26):
            a(f"v_add_u32 v{WA+2*(i-25)}, s29, v{WA+2*(i-25)}")
            a(f"v_add_u32 v{WA+2*(i-25)+1}, s29, v{WA+2*(i-25)+1}")
        if i == 27:
            a("s_sub_u32 s28, s28, 1")
            a("s_cmp_eq_u32 s28, 0")
    assert issued == 20
    M = mfmas(1); R = reads(0)
    a("s_waitcnt lgkmcnt(0)")
    a(M[0]); a(M[1])
    a("s_barrier")
    a("s_cbranch_scc1 L_g1_last")
    issued = 0
    for i in range(2, 32):
        if issued < 20:
            a(R[issued]); issued += 1
        a(M[i])
    a("s_branch L_g1_loop")
    a.label("L_g1_last")
    for i in range(2, 32):
        a(M[i])
    stamp(a, 3)
    a(f"s_mov_b32 s6, {f2u(-LOG2E)}")
    a(f"s_mov_b32 s7, {f2u(-LOG2E)}")
    a("s_lshl_b32 s28, s4, 4")
    a("s_lshl_b32 s29, s3, 2")
    a("s_add_u32 s28, s28, s29")
    a("s_mul_i32 s28, s28, 56")
    a("s_lshl_b32 s29, s5, 1")
    a("s_add_u32 s28, s28, s29")
    a("s_lshl_b32 s28, s28, 10")
    for m in range(1, 4):
        a(f"s_add_u32 s{28+m}, s28, {m*56*1024}")
    a("v_lshlrev_b32 v2, 4, v1")
    a("s_lshl_b32 s32, s4, 2")
    a("s_add_u32 s32, s32, s3")
    a(f"s_mul_i32 s32, s32, {FSTR}")
    a("s_lshl_b32 s33, s5, 2")
    a("s_add_u32 s32, s32, s33")
    a(f"s_add_u32 s32, s32, {WS_FH}")
    a(f"s_add_u32 s33, s32, {32*FSTR}")
    T = 32
    cnt = 0
    for np_ in range(2):
        for m in range(4):
            E = T + 16*(cnt & 1)
            O = E + 8
            gs = [acc(0, 2*np_, m), acc(0, 2*np_, m)+2, acc(0, 2*np_+1, m), acc(0, 2*np_+1, m)+2]
            us = [acc(1, 2*np_, m), acc(1, 2*np_, m)+2, acc(1, 2*np_+1, m), acc(1, 2*np_+1, m)+2]
            for p in range(4):
                a(f"v_pk_mul_f32 {vr(E+2*p,2)}, {vr(gs[p],2)}, s[6:7]")
            for p in range(8):
                a(f"v_exp_f32 v{E+p}, v{E+p}")
            for p in range(4):
                a(f"v_pk_mul_f32 {vr(us[p],2)}, {vr(gs[p],2)}, {vr(us[p],2)}")
            for p in range(4):
                a(f"v_pk_add_f32 {vr(E+2*p,2)}, {vr(E+2*p,2)}, 1.0 op_sel_hi:[1,0]")
            for p in range(8):
                a(f"v_rcp_f32 v{E+p}, v{E+p}")
            a("s_nop 0")
            for p in range(4):
                a(f"v_pk_mul_f32 {vr(us[p],2)}, {vr(us[p],2)}, {vr(E+2*p,2)}")
            for p in range(4):
                a(f"v_cvt_pk_bf16_f32 v{O+p}, v{us[p]}, v{us[p]+1}")
            if cnt == 6:
                lds_wait(a, FL_VALID, 1, 1, "g1v", 3, 4, sleep=0)
                a("s_waitcnt vmcnt(2)")
                publish(a, "s32", 3, 4)
            a(f"buffer_store_dwordx4 {vr(O,4)}, v2, {S(SRD_WS)}, s{28+m} offen offset:{np_*1024} sc1")
            cnt += 1
    a("v_mov_b32 v20, 1")
    a("ds_write_b32 v19, v20")
    stamp(a, 4)
    a("s_mov_b32 s35, s33")
    a.walk_end()

VX = 8; VW = 12
def gen_loader_setup(a):
    a("v_lshrrev_b32 v2, 3, v1")
    a("v_and_b32 v3, 7, v1")
    a("v_lshrrev_b32 v4, 4, v1")
    a("v_xor_b32 v5, v3, v4")
    a("v_xor_b32 v6, 4, v5")
    a("v_lshlrev_b32 v7, 10, v2")
    a(f"v_lshl_add_u32 v{VX}, v5, 4, v7")
    a(f"v_lshl_add_u32 v{VX+1}, v6, 4, v7")
    a(f"v_add_u32 v{VX+2}, {2*7168}, v{VX}")
    a(f"v_add_u32 v{VX+3}, {3*7168}, v{VX+1}")
    a(f"v_add_u32 v{VX+1}, {7168}, v{VX+1}")
    a("v_and_b32 v4, 1, v4")
    a("v_lshlrev_b32 v4, 1, v4")
    a("v_xor_b32 v5, v3, v4")
    a("v_mul_u32_u24 v7, 3584, v2")
    a(f"v_lshl_add_u32 v{VW}, v5, 4, v7")
    a("v_xor_b32 v5, 4, v5")
    a(f"v_lshl_add_u32 v{VW+1}, v5, 4, v7")
    a(f"v_add_u32 v{VW+2}, {2*(28672-1024)}, v{VW}")
    a(f"v_add_u32 v{VW+3}, {3*(28672-1024)}, v{VW+1}")
    a(f"v_add_u32 v{VW+1}, {(28672-1024)}, v{VW+1}")

def gen_loader(a):
    a("s_sub_u32 s6, s3, 4")
    a("s_cmp_eq_u32 s6, 1")
    a(f"s_cselect_b32 s{SRD_W1}, s{ptr(I_W3)}, s{ptr(I_W1)}")
    a(f"s_cselect_b32 s{SRD_W1+1}, s{ptr(I_W3)+1}, s{ptr(I_W1)+1}")
    a(f"s_and_b32 s{SRD_W1+1}, s{SRD_W1+1}, 0xffff")
    a("s_lshl_b32 s28, s4, 18")
    a("s_lshl_b32 s7, s6, 17")
    a("s_add_u32 s28, s28, s7")
    a("s_lshl_b32 s29, s5, 7")
    a("s_lshl_b32 s34, s6, 14")
    a(f"s_add_u32 s34, s34, {SLOT}")
    a("s_lshl_b32 s35, s6, 13")
    a(f"s_add_u32 s35, s35, {SLOT+32768}")
    a("s_mov_b32 s31, 0")
    a("s_mov_b32 s30, 1")
    a.label("L_ld_loop")
    a(f"s_add_u32 s33, s29, {4*28672}")
    for q in range(2):
        a(f"s_add_u32 m0, s35, {q*4096}")
        a("s_nop 0")
        for k in range(4):
            a(f"buffer_load_dwordx4 v{VW+k}, {S(SRD_W1)}, s{29 if q == 0 else 33} offen offset:{k*1024} lds")
    a("s_mov_b32 s33, s28")
    for q in range(4):
        a(f"s_add_u32 m0, s34, {q*4096}")
        a("s_nop 0")
        for k in range(4):
            a(f"buffer_load_dwordx4 v{VX+k}, {S(SRD_X)}, s33 offen offset:{k*1024} lds")
        if q < 3: a("s_add_u32 s33, s33, 32768")
    a("s_add_u32 s28, s28, 128")
    a(f"s_add_u32 s29, s29, {64*3584}")
    a("s_add_u32 s30, s30, 1")
    a("s_cmp_eq_u32 s30, 3")
    a(f"s_cselect_b32 s7, {(-3*SLOT) & 0xffffffff}, 0")
    a("s_cselect_b32 s30, 0, s30")
    a(f"s_add_u32 s7, s7, {SLOT}")
    a("s_add_u32 s34, s34, s7")
    a("s_add_u32 s35, s35, s7")
    a("s_add_u32 s31, s31, 1")
    a("s_cmp_eq_u32 s31, 1")
    a("s_cbranch_scc1 L_ld_loop")
    a("s_waitcnt vmcnt(24)")
    a("s_barrier")
    a("s_cmp_lt_u32 s31, 8")
    a("s_cbranch_scc1 L_ld_loop")
    stamp(a, 1)

V_EO = 192
VC0, VC1, VC3 = 8, 16, 11
MU, EE, GB = 56, 57, 58
GA = 36
def gen_kfin_addr(a):
    a("v_and_b32 v6, 15, v1")
    a("v_lshrrev_b32 v7, 4, v1")
    a("v_and_b32 v2, 3, v6")
    a("v_lshrrev_b32 v3, 2, v6")
    a("v_lshl_add_u32 v6, v2, 2, v3")
    a("v_lshrrev_b32 v12, 1, v7")
    a("v_and_b32 v13, 1, v7")
    a(f"v_lshlrev_b32 v{VC0}, 8, v12")
    a(f"v_lshl_add_u32 v{VC0}, v13, 1, v{VC0}")
    a(f"v_lshl_add_u32 v{VC0}, v6, 4, v{VC0}")
    a(f"v_add_u32 v{VC0}, s30, v{VC0}")
    a("v_lshlrev_b32 v2, 7, v13")
    a("v_lshl_add_u32 v2, v6, 3, v2")
    a("v_lshlrev_b32 v3, 1, v13")
    a("v_lshl_add_u32 v3, v6, 2, v3")
    a("v_add_u32 v3, 256, v3")
    a("v_cmp_eq_u32 vcc, 0, v12")
    a("v_mul_u32_u24 v14, 62, v12")
    a("v_add_u32 v14, 2, v14")
    a(f"v_cndmask_b32 v{VC1}, v3, v2, vcc")
    a(f"v_add_u32 v{VC1}, s30, v{VC1}")
    for i in range(1, 4):
        a(f"v_add_u32 v{VC1+i}, v{VC1+i-1}, v14")
    a(f"v_lshlrev_b32 v{VC3}, 5, v7")
    a("v_mul_u32_u24 v2, 192, v12")
    a(f"v_add3_u32 v{VC3}, v{VC3}, v2, s30")
    a(f"v_lshl_add_u32 v{VC3}, v6, 1, v{VC3}")
    a(f"v_sub_u32 v{MU}, 63, v1")
    a(f"v_lshrrev_b32 v{EE}, 4, v{MU}")
    a(f"v_min_u32 v{EE}, 2, v{EE}")
    a(f"v_lshlrev_b32 v{GB}, 5, v{MU}")
    a(f"v_lshrrev_b32 v{GB}, v{EE}, v{GB}")
    a(f"v_lshl_add_u32 v{GB}, v{EE}, 8, v{GB}")
    a(f"v_add_u32 v{GB}, s30, v{GB}")
    a(f"v_lshlrev_b32 v{EE}, 3, v{EE}")
    def rne(o, e):
        if e == 0: return o
        return (o + ((1 << (e-1)) - 1) + ((o >> e) & 1)) >> e
    for o in range(17):
        tab = sum((2*rne(o, e)) << (8*e) for e in range(3))
        a(f"s_mov_b32 s35, {tab}")
        a(f"v_bfe_u32 v{GA+o}, s35, v{EE}, 8")
        a(f"v_add_u32 v{GA+o}, v{GA+o}, v{GB}")
    a(f"v_lshl_add_u32 v{MU}, v{MU}, 2, s30")

def gen_kfin(a):
    D = KT_D
    CP = 64
    a("s_waitcnt vmcnt(0)")
    a("v_cmp_ne_u32 vcc, 1, v55")
    a("s_cbranch_vccz L_kf_uok")
    a.spin("L_kf_upoll", 8)
    a(f"buffer_load_dword v55, v54, {S(SRD_WS)}, s29 offen sc1")
    a("s_waitcnt vmcnt(0)")
    a("v_cmp_ne_u32 vcc, 1, v55")
    a("s_cbranch_vccnz L_kf_upoll")
    a.label("L_kf_uok")
    a("s_lshl_b32 s28, s7, 12")
    a(f"s_add_u32 s28, s28, {WS_UT}")
    a(f"s_add_u32 m0, s30, {SIDE_U+512}")
    a("v_lshlrev_b32 v4, 4, v1")
    for i in range(4):
        a(f"buffer_load_dwordx4 v4, {S(SRD_WS)}, s28 offen offset:{i*1024} sc1 lds")
    for i in range(6):
        a(f"v_cvt_pk_bf16_f32 v{CP+i}, v{D+2*i}, v{D+2*i+1}")
    for i in range(4):
        hi = "_d16_hi" if i & 1 else ""
        a(f"ds_write_b16{hi} v{VC0}, v{CP+i//2} offset:{SIDE_C+4*i}")
        a(f"ds_write_b16{hi} v{VC1+i}, v{CP+2+i//2} offset:{SIDE_C+512}")
        a(f"ds_write_b16{hi} v{VC3}, v{CP+4+i//2} offset:{SIDE_C+1024+64*i}")
    E0, O0, E1, O1 = V_EO, V_EO+8, V_EO+16, V_EO+24
    G0 = 72
    a(f"ds_read_b32 v{G0}, v{MU} offset:{SIDE_C+1024}")
    a(f"ds_read_u16 v{G0+1}, v{MU} offset:{SIDE_C+1024+4}")
    for m in range(8):
        a(f"ds_read_u16 v{E1+m}, v{GA+15-2*m} offset:{SIDE_C}")
        a(f"ds_read_u16 v{O1+m}, v{GA+14-2*m} offset:{SIDE_C}")
    a(f"ds_read_u16 v{G0+2}, v{GA+16} offset:{SIDE_C}")
    a("v_mov_b32 v2, 0")
    a("v_mov_b32 v3, 0")
    a("v_lshl_add_u32 v4, v1, 3, s30")
    a(f"ds_write_b64 v4, v[2:3] offset:{SIDE_U}")
    a("s_mov_b32 s28, 0x01000100")
    a("s_mov_b32 s29, 0x03020302")
    a("s_mov_b32 s35, 0x01000302")
    a("s_mov_b32 s33, 0x03020504")
    a("s_waitcnt lgkmcnt(15)")
    a(f"v_perm_b32 v{E0}, v{G0+1}, v{G0+1}, s28")
    a(f"v_perm_b32 v{E0+2}, v{G0}, v{G0}, s29")
    a(f"v_perm_b32 v{E0+6}, v{G0}, v{G0}, s28")
    a(f"v_perm_b32 v{E0+5}, v{G0}, v{G0}, s35")
    a(f"v_perm_b32 v{O0+2}, v{G0+1}, v{G0}, s33")
    for d_, s_ in ((E0+1, E0), (E0+3, E0+2), (E0+4, E0+2), (E0+7, E0+6), (O0, E0), (O0+1, E0), (O0+3, E0+2), (O0+4, E0+2),
                   (O0+5, E0+2), (O0+6, E0+6), (O0+7, E0+6)):
        a(f"v_mov_b32 v{d_}, v{s_}")
    a("s_waitcnt lgkmcnt(0)")
    for m in range(8):
        a(f"v_lshl_or_b32 v{E1+m}, v{O1+m}, 16, v{E1+m}")
    a(f"v_lshl_or_b32 v{O1}, v{E1}, 16, v{G0+2}")
    for m in range(1, 8):
        a(f"v_alignbit_b32 v{O1+m}, v{E1+m}, v{E1+m-1}, 16")
    a(f"v_lshrrev_b32 v8, 16, v{E1+7}")
    for i in range(9, 16):
        a(f"v_mov_b32 v{i}, 0")
    a("s_mul_i32 s29, s6, 8320")
    a(f"s_add_u32 s29, s29, {L2_EO}")
    a("v_lshl_add_u32 v4, v1, 5, s29")
    stamp(a, 2)
    a("s_cmp_lt_u32 s2, 224")
    a("s_cbranch_scc1 L_kf_ring")
    lds_wait(a, FL_FREE, 4, 1, "kfring", 17, 60, sleep=2)
    a.label("L_kf_ring")
    for rnd, (E, O) in enumerate(((E0, O0), (E1, O1))):
        for h in range(2):
            a(f"ds_write_b128 v4, {vr(E+4*h,4)} offset:{rnd*2048+16*h}")
            a(f"ds_write_b128 v4, {vr(O+4*h,4)} offset:{EO_O+rnd*2048+16*h}")
    a("s_mov_b32 s28, 0")
    a("s_mov_b32 s29, 0x80000000")
    a("s_mov_b64 exec, s[28:29]")
    a(f"ds_write_b128 v4, v[12:15] offset:{2048+32}")
    a(f"ds_write_b128 v4, v[12:15] offset:{2048+48}")
    a(f"ds_write_b128 v4, v[8:11] offset:{EO_O+2048+32}")
    a(f"ds_write_b128 v4, v[12:15] offset:{EO_O+2048+48}")
    a("s_mov_b64 exec, -1")
    a("s_lshl_b32 s28, s6, 2")
    a(f"s_add_u32 s28, s28, {FL_EO}")
    a("s_waitcnt vmcnt(0)")
    lds_set(a, "s28", 1, 16, 17)

def gen_conv(a):
    tag = "cv"
    ACC = 24; FR = 64; AB = 8; UB = 12
    def af(st, aa): return FR + 64*st + 4*aa
    def bf(st, e): return FR + 64*st + 32 + 4*e
    a("v_and_b32 v2, 15, v1")
    a("v_lshrrev_b32 v3, 4, v1")
    a("s_lshl_b32 s32, s33, 8")
    a("s_mul_i32 s29, s6, 8320")
    a(f"s_add_u32 s29, s29, {L2_EO + 4*1016 + EO_O}")
    a("s_sub_u32 s29, s29, s32")
    a("v_add_u32 v4, 1, v2")
    a("v_lshrrev_b32 v4, 1, v4")
    a("v_lshlrev_b32 v5, 2, v3")
    a("v_sub_u32 v5, v5, v4")
    a("v_lshl_add_u32 v5, v5, 2, s29")
    a("v_and_b32 v4, 1, v2")
    a(f"v_mul_u32_u24 v4, {EO_O}, v4")
    a("v_sub_u32 v5, v5, v4")
    for b in range(4):
        a(f"v_subrev_u32 v{AB+b}, {512*(2*b+1)}, v5")
    a("v_lshlrev_b32 v4, 5, v2")
    a("v_lshl_add_u32 v4, v3, 4, v4")
    a(f"s_add_u32 s28, s30, {SIDE_U + 480}")
    a("s_sub_u32 s28, s28, s32")
    a(f"v_add_u32 v{UB}, s28, v4")
    for i in range(32):
        a(f"v_mov_b32 v{ACC+i}, 0")
    def reads(st):
        r = []
        for x in range(8):
            o = 128 if x % 2 == 0 else 0
            r.append(f"ds_read2_b32 {vr(af(st,x),2)}, v{AB+x//2} offset0:{o} offset1:{o+1}")
            r.append(f"ds_read2_b32 {vr(af(st,x)+2,2)}, v{AB+x//2} offset0:{o+2} offset1:{o+3}")
            r.append(f"ds_read_b128 {vr(bf(st,x),4)}, v{UB} offset:{512*x}")
        return r
    def adv():
        r = [f"v_subrev_u32 v{AB+b}, 64, v{AB+b}" for b in range(4)]
        r.append(f"v_subrev_u32 v{UB}, 64, v{UB}")
        return r
    def mf(st):
        r = []
        for aa in range(8):
            for e in range(8 - aa):
                d = ACC + 4*(aa+e)
                r.append(f"v_mfma_f32_16x16x32_bf16 {vr(d,4)}, {vr(af(st,aa),4)}, {vr(bf(st,e),4)}, {vr(d,4)}")
        return r
    for r in reads(0): a(r)
    for r in adv(): a(r)
    if "convearly" not in OPT:
        a("s_lshl_b32 s28, s3, 2")
        a(f"s_add_u32 s28, s28, {FL_FREE - 16}")
        lds_wait(a, "s28", 1, 1, tag+"e", 16, 18, sleep=2)
    a("s_mov_b32 s28, 2")
    a.label(f"L_{tag}_loop")
    for st in range(2):
        a("s_waitcnt lgkmcnt(0)")
        M = mf(st); R = reads(1-st) + adv()
        for i, m in enumerate(M):
            a(m)
            if R: a(R.pop(0))
        assert not R
    a("s_sub_u32 s28, s28, 1")
    a("s_cmp_lg_u32 s28, 0")
    a(f"s_cbranch_scc1 L_{tag}_loop")
    a(f"s_add_u32 s28, s30, {SIDE_XA}")
    a("s_lshl_b32 s29, s6, 11")
    a(f"s_add_u32 s29, s29, {L2_XB}")
    a("s_cmp_eq_u32 s33, 0")
    a("s_cselect_b32 s34, s28, s29")
    a("s_cselect_b32 s35, s29, s28")
    a("v_lshl_add_u32 v13, v1, 4, s34")
    a("v_lshl_add_u32 v14, v1, 4, s35")
    a("s_lshl_b32 s28, s6, 3")
    a("s_lshl_b32 s29, s33, 2")
    a("s_add_u32 s28, s28, s29")
    a(f"s_add_u32 s28, s28, {FL_X}")
    a("s_xor_b32 s29, s28, 4")
    a("v_lshlrev_b32 v4, 5, v2")
    a("v_lshl_add_u32 v4, v3, 3, v4")
    a("s_lshl_b32 s32, s33, 11")
    a(f"s_add_u32 s34, s30, {SIDE_U + 512}")
    a("s_add_u32 s34, s34, s32")
    a("v_add_u32 v5, s34, v4")
    a("s_waitcnt lgkmcnt(0)")
    UU = 64; PKX = 72; RX = 80
    for ti in range(4):
        a(f"ds_read_b64 {vr(UU+2*ti,2)}, v5 offset:{512*ti}")
    a("s_cmp_eq_u32 s33, 0")
    a("s_cbranch_scc1 L_cv_t0")
    for i in range(8):
        a(f"v_cvt_pk_bf16_f32 v{PKX+i}, v{ACC+2*i}, v{ACC+2*i+1}")
    for i in range(16):
        a(f"v_mov_b32 v{ACC+i}, v{ACC+16+i}")
    a("s_branch L_cv_t1")
    a.label("L_cv_t0")
    for i in range(8):
        a(f"v_cvt_pk_bf16_f32 v{PKX+i}, v{ACC+16+2*i}, v{ACC+16+2*i+1}")
    a.label("L_cv_t1")
    a(f"ds_write_b128 v13, {vr(PKX,4)}")
    a(f"ds_write_b128 v13, {vr(PKX+4,4)} offset:1024")
    lds_set(a, "s28", 1, 16, 17)
    a("s_mov_b32 s31, 0xffff0000")
    a(f"v_lshlrev_b32 v{V_DSK}, 16, v{V_DSK}")
    a("v_lshlrev_b32 v6, 5, v2")
    a("v_lshrrev_b32 v7, 1, v3")
    a("v_lshl_add_u32 v6, v7, 4, v6")
    a("v_and_b32 v7, 1, v3")
    a("v_lshl_add_u32 v6, v7, 9, v6")
    a("s_waitcnt lgkmcnt(3)")
    X = 90
    for ti in range(4):
        for h in range(2):
            a(f"v_lshlrev_b32 v{X}, 16, v{UU+2*ti+h}")
            a(f"v_and_b32 v{X+1}, s31, v{UU+2*ti+h}")
            a(f"v_fmac_f32 v{ACC+4*ti+2*h}, v{X}, v{V_DSK}")
            a(f"v_fmac_f32 v{ACC+4*ti+2*h+1}, v{X+1}, v{V_DSK}")
    lds_wait(a, "s29", 1, 1, "cvx", 16, 18, sleep=0)
    a(f"ds_read_b128 {vr(RX,4)}, v14")
    a(f"ds_read_b128 {vr(RX+4,4)}, v14 offset:1024")
    a("s_lshl_b32 s28, s7, 12")
    a("s_add_u32 s28, s28, s32")
    a(f"s_add_u32 s28, s28, {WS_A}")
    a("s_waitcnt lgkmcnt(0)")
    for i in range(8):
        a(f"v_lshlrev_b32 v{X}, 16, v{RX+i}")
        a(f"v_and_b32 v{X+1}, s31, v{RX+i}")
        a(f"v_add_f32 v{ACC+2*i}, v{ACC+2*i}, v{X}")
        a(f"v_add_f32 v{ACC+2*i+1}, v{ACC+2*i+1}, v{X+1}")
    P = 96
    for pr in range(2):
        t1, t2 = 2*pr, 2*pr+1
        p = P + 4*pr
        a(f"v_cvt_pk_bf16_f32 v{p}, v{ACC+4*t1}, v{ACC+4*t1+1}")
        a(f"v_cvt_pk_bf16_f32 v{p+1}, v{ACC+4*t1+2}, v{ACC+4*t1+3}")
        a(f"v_cvt_pk_bf16_f32 v{p+2}, v{ACC+4*t2}, v{ACC+4*t2+1}")
        a(f"v_cvt_pk_bf16_f32 v{p+3}, v{ACC+4*t2+2}, v{ACC+4*t2+3}")
        a("s_nop 1")
        a(f"v_permlane16_swap_b32 v{p}, v{p+2}")
        a(f"v_permlane16_swap_b32 v{p+1}, v{p+3}")
        a(f"buffer_store_dwordx4 {vr(p,4)}, v6, {S(SRD_WS)}, s28 offen offset:{1024*pr} sc1")
    a("s_lshr_b32 s28, s7, 6")
    a(f"s_mul_i32 s28, s28, {FSTR}")
    a("s_and_b32 s29, s7, 63")
    a("s_lshl_b32 s29, s29, 2")
    a("s_add_u32 s28, s28, s29")
    a("s_lshl_b32 s29, s33, 8")
    a("s_add_u32 s28, s28, s29")
    a(f"s_add_u32 s28, s28, {WS_FA}")
    a("s_waitcnt vmcnt(0)")
    publish(a, "s28", 3, 4)

def w2_voffs(a, V):
    a("v_lshrrev_b32 v2, 3, v1")
    a("v_and_b32 v3, 7, v1")
    a("v_bfe_u32 v4, v1, 4, 2")
    a("v_lshlrev_b32 v4, 1, v4")
    a("v_xor_b32 v3, v3, v4")
    a("v_lshlrev_b32 v2, 10, v2")
    a(f"v_lshl_add_u32 v{V}, v3, 4, v2")
    for k in range(1, 4):
        a(f"v_add_u32 v{V+k}, {k*7168}, v{V}")

def g2_map(a):
    a("s_bfe_u32 s4, s2, 0x20001")
    a("s_and_b32 s28, s2, 1")
    a("s_xor_b32 s28, s28, 1")
    a("s_lshl_b32 s28, s28, 2")
    a("s_add_u32 s4, s4, s28")
    a("s_lshl_b32 s4, s4, 2")
    a("s_lshr_b32 s5, s2, 3")
    a("s_and_b32 s28, s5, 3")
    a("s_add_u32 s4, s4, s28")
    a("s_lshr_b32 s5, s5, 2")

def gen_w2pre(a):
    V = 8
    a("s_lshl_b32 s7, s2, 1")
    a("s_add_u32 s7, s7, s6")
    a("s_lshl_b32 s28, s7, 1")
    a("v_mov_b32 v3, s28")
    a(f"global_load_ushort v{V_DSK}, v3, {pp(I_DSK)}")
    g2_map(a)
    w2_voffs(a, V)
    a("s_lshl_b32 s28, s6, 16")
    a("s_lshl_b32 s29, s5, 7")
    a("s_add_u32 s28, s28, s29")
    a("s_lshl_b32 s29, s6, 12")
    a(f"s_add_u32 s29, s29, {L2_W2}")
    a(f"v_mov_b32 v18, {FL_VALID}")
    a("v_mov_b32 v16, 0")
    a("v_mov_b32 v17, 1")
    a("s_mov_b32 s33, 0")
    a("s_cmp_lg_u32 s6, 0")
    a("s_cbranch_scc1 L_w2_part")
    a(f"global_load_dword v17, v16, {pp(I_DBG)} sc1")
    a.label("L_w2_part")
    a("s_cmp_eq_u32 s33, 2")
    a("s_cselect_b32 s31, 2, 6")
    a.label("L_w2_loop")
    a("s_mov_b32 m0, s29")
    a("s_add_u32 s29, s29, 8192")
    for k in range(4):
        a(f"buffer_load_dwordx4 v{V+k}, {S(SRD_W2)}, s28 offen offset:{k*1024} lds")
    a("s_add_u32 s28, s28, 131072")
    a("s_sub_u32 s31, s31, 1")
    a("s_cmp_lg_u32 s31, 0")
    a("s_cbranch_scc1 L_w2_loop")
    a("s_add_u32 s33, s33, 1")
    a("s_cmp_eq_u32 s33, 3")
    a("s_cbranch_scc1 L_w2_done")
    a("s_waitcnt vmcnt(24)")
    bar(a)
    a("s_cmp_lg_u32 s6, 0")
    a("s_cbranch_scc1 L_w2_part")
    a("s_cmp_lg_u32 s33, 2")
    a("s_cbranch_scc1 L_w2_part")
    a("v_cmp_eq_u32 vcc, 0, v17")
    a("s_cbranch_vccnz L_w2_part")
    a("ds_write_b32 v18, v17")
    a("s_branch L_w2_part")
    a.label("L_w2_done")
    a("s_lshl_b32 s28, s6, 2")
    a(f"s_add_u32 s29, s28, {FL_W2}")
    a(f"s_add_u32 s28, s28, {FL_EO}")
    a("s_lshl_b32 s30, s6, 13")
    a(f"s_add_u32 s30, s30, {L_SIDE}")
    a("s_waitcnt vmcnt(0)")
    lds_set(a, "s29", 1, 21, 22)
    a("s_cmp_lg_u32 s6, 0")
    a("s_cbranch_scc1 L_rd_3")
    a("v_cmp_eq_u32 vcc, 0, v17")
    a("s_cbranch_vccz L_rd_2")
    a.spin("L_rd_poll", 16)
    a(f"global_load_dword v17, v16, {pp(I_DBG)} sc1")
    a("s_waitcnt vmcnt(0)")
    a("v_cmp_eq_u32 vcc, 0, v17")
    a("s_cbranch_vccnz L_rd_poll")
    a.label("L_rd_2")
    a("ds_write_b32 v18, v17")
    a.label("L_rd_3")
    lds_wait(a, "s28", 1, 1, "w2eo", 17, 22, sleep=2)
W2P1 = 5
RPRE = 3

def gen_g2(a):
    ACC = 192; HF = 32; WF = 80; VW2 = 8; VH = 12; WA = 16
    HD = 3
    HSC = "" if "nosc1ld" in OPT else " sc1"
    def acc(nu, m): return ACC + 4*(nu*4+m)
    def hf(n, m): return HF + 16*(n % HD) + 4*m
    def wf(i, nu): return WF + 16*i + 4*nu
    def gs(i):
        if "g2st" in OPT: stamp(a, i, "any")
    g2_map(a)
    a("v_bfe_u32 v2, v1, 2, 2")
    a("v_and_b32 v3, 3, v1")
    a("v_lshrrev_b32 v4, 4, v1")
    a("v_lshl_add_u32 v6, v4, 2, v2")
    a("v_lshlrev_b32 v6, 7, v6")
    a("v_lshl_add_u32 v6, v3, 3, v6")
    a(f"s_mul_i32 s29, s3, 28672")
    a(f"s_add_u32 s29, s29, {L2_W2}")
    a("v_add_u32 v6, s29, v6")
    a("v_lshrrev_b32 v7, 1, v2")
    a("v_and_b32 v4, 1, v4")
    a("v_lshl_or_b32 v7, v4, 1, v7")
    for nu in range(4):
        a(f"v_xor_b32 v5, {nu}, v7")
        a(f"v_lshl_add_u32 v{WA+nu}, v5, 5, v6")
    lds_wait(a, FL_W2, 2, 1, "g2w2", 2, 4, sleep=1)
    gs(0)
    def trreads(i):
        for nu in range(4):
            for h in range(2):
                a(f"ds_read_b64_tr_b16 {vr(wf(i,nu)+2*h,2)}, v{WA+nu} offset:{i*4096+h*2048}")
    for i in range(7): trreads(i)
    w2_voffs(a, VW2)
    a(f"v_lshlrev_b32 v{VH}, 4, v1")
    for m in range(1, 4):
        a(f"v_add_u32 v{VH+m}, {m*57344}, v{VH}")
    a(f"s_mul_i32 s30, s4, {4*57344}")
    a(f"s_mul_i32 s31, s3, {14*1024}")
    a("s_add_u32 s30, s30, s31")
    a(f"s_mul_i32 s31, s3, {14*32768}")
    a("s_lshl_b32 s33, s5, 7")
    a("s_add_u32 s31, s31, s33")
    a("s_add_u32 s31, s31, 32768")
    a(f"s_mul_i32 s32, s4, {FSTR}")
    a("s_mul_i32 s33, s3, 28")
    a("s_add_u32 s32, s32, s33")
    a(f"s_add_u32 s32, s32, {WS_FH}")
    a(f"s_add_u32 s34, s32, {32*FSTR}")
    a("v_min_u32 v22, 6, v1")
    a("v_lshlrev_b32 v22, 2, v22")
    a("s_mul_i32 s33, s3, 24")
    a("s_sub_u32 s33, 112, s33")
    a("v_mov_b32 v25, s33")
    a("v_cmp_gt_u32 vcc, 7, v1")
    a("s_nop 1")
    a("v_cndmask_b32 v25, v25, v22, vcc")
    a("s_waitcnt vmcnt(0)")
    a("s_cmp_eq_u32 s35, 0")
    a("s_cbranch_scc1 L_g2_nopub")
    publish(a, "s35", 3, 4)
    a.label("L_g2_nopub")
    stamp(a, 5)
    gs(1)
    vm = VM(a)
    vm.q = ["pub"]
    def pollop(reg, soff, tag):
        va = 25 if tag == "fb" else 22
        vm.op(f"buffer_load_dword v{reg}, v{va}, {S(SRD_WS)}, {soff} offen sc1", tag)
    def pollchk(reg, soff, tag, sleep):
        va = 25 if tag == "fb" else 22
        vm.wait(tag)
        a(f"v_cmp_ne_u32 vcc, 1, v{reg}")
        a(f"s_cbranch_vccz L_g2_{tag}_ok")
        a.spin(f"L_g2_{tag}", sleep)
        a(f"buffer_load_dword v{reg}, v{va}, {S(SRD_WS)}, {soff} offen sc1")
        a("s_waitcnt vmcnt(0)")
        a(f"v_cmp_ne_u32 vcc, 1, v{reg}")
        a(f"s_cbranch_vccnz L_g2_{tag}")
        a.label(f"L_g2_{tag}_ok")
    def refill(i):
        a(f"s_add_u32 m0, s29, {i*4096}")
        a("s_nop 0")
        for k in range(4):
            vm.op(f"buffer_load_dwordx4 v{VW2+k}, {S(SRD_W2)}, s31 offen offset:{k*1024} lds", f"w_{i}")
        a("s_add_u32 s31, s31, 65536")
    def hload(n):
        for m in range(4):
            vm.op(f"buffer_load_dwordx4 {vr(hf(n,m),4)}, v{VH+m}, {S(SRD_WS)}, s30 offen{HSC}", f"h_{n}")
        if n == 6: a(f"s_sub_u32 s30, s30, {6*2048 - 1024}")
        else: a("s_add_u32 s30, s30, 2048")
    a("s_waitcnt lgkmcnt(0)")
    refill(0)
    pollop(23, "s32", "fa")
    for i in range(1, RPRE): refill(i)
    pollchk(23, "s32", "fa", 2)
    stamp(a, 6)
    gs(2)
    for n in range(HD): hload(n)
    nref = RPRE
    for n in range(14):
        i = n % 7
        if n >= 6 and n < 13:
            vm.wait(f"w_{(n+1)%7}")
            trreads((n+1) % 7)
        vm.wait(f"h_{n}")
        if n >= 7:
            a(f"s_waitcnt lgkmcnt({8 if n < 13 else 0})")
        for nu in range(4):
            for m in range(4):
                d = acc(nu, m)
                c = "0" if n == 0 else vr(d, 4)
                a(f"v_mfma_f32_16x16x32_bf16 {vr(d,4)}, {vr(wf(i,nu),4)}, {vr(hf(n,m),4)}, {c}")
        if n == 0: gs(3)
        if n == 6: gs(4)
        if n + HD == 7 - 2: pollop(24, "s34", "fb")
        if n + HD == 7: pollchk(24, "s34", "fb", 1)
        if n + HD < 14: hload(n + HD)
        if nref < 7:
            refill(nref); nref += 1
        if n == 7:
            a("s_lshl_b32 s33, s3, 6")
            a(f"s_mul_i32 s32, s5, {FSTR}")
            a("s_add_u32 s32, s32, s33")
            a("s_lshr_b32 s33, s4, 4")
            a("s_lshl_b32 s33, s33, 8")
            a("s_add_u32 s32, s32, s33")
            a(f"s_add_u32 s32, s32, {WS_FA}")
            a("v_and_b32 v22, 15, v1")
            a("v_lshlrev_b32 v22, 2, v22")
            a("v_lshrrev_b32 v2, 3, v1")
            a("v_and_b32 v3, 7, v1")
            a("v_bfe_u32 v4, v1, 4, 2")
            a("v_lshlrev_b32 v4, 1, v4")
            a("v_xor_b32 v3, v3, v4")
            a("v_lshlrev_b32 v2, 12, v2")
            a("v_lshl_add_u32 v26, v3, 4, v2")
            a(f"v_add_u32 v27, {8*4096-1024}, v26")
            a("v_and_b32 v28, 15, v1")
            a("v_lshlrev_b32 v28, 3, v28")
            a("s_lshl_b32 s34, s5, 18")
            a("s_lshl_b32 s33, s3, 16")
            a("s_add_u32 s34, s34, s33")
            a("s_lshl_b32 s33, s4, 7")
            a("s_add_u32 s34, s34, s33")
            a(f"s_add_u32 s34, s34, {WS_A}")
            a("s_lshl_b32 s31, s4, 9")
            a("s_lshl_b32 s33, s3, 7")
            a("s_add_u32 s31, s31, s33")
            a(f"s_add_u32 s31, s31, {WS_G}")
            vm.op(f"buffer_load_dwordx2 v[20:21], v28, {S(SRD_WS)}, s31 offen sc1", "g")
        if n == 10:
            pollop(23, "s32", "fc")
            gs(5)
    gs(6)
    stamp(a, 7)
    pollchk(23, "s32", "fc", 6)
    a("s_lshl_b32 s33, s3, 11")
    a(f"s_add_u32 m0, s33, {L2_AT}")
    a("s_nop 0")
    a(f"buffer_load_dwordx4 v26, {S(SRD_WS)}, s34 offen sc1 lds")
    a(f"buffer_load_dwordx4 v27, {S(SRD_WS)}, s34 offen offset:1024 sc1 lds")
    a("s_nop 3")
    a("v_lshl_add_u32 v5, v1, 4, s29")
    for m in range(4):
        for nu in range(4):
            a(f"ds_write_b128 v5, {vr(acc(nu,m),4)} offset:{(m*4+nu)*1024}")
    a("s_lshl_b32 s33, s3, 12")
    a(f"s_add_u32 s33, s33, {L2_W2}")
    a("v_lshl_add_u32 v6, v1, 4, s33")
    a(f"v_add_u32 v7, {2*28672}, v6")
    a("v_bfe_u32 v2, v1, 2, 2")
    a("v_and_b32 v3, 3, v1")
    a("v_lshrrev_b32 v4, 4, v1")
    a("v_lshl_add_u32 v8, v4, 2, v2")
    a("v_lshlrev_b32 v8, 7, v8")
    a("v_lshl_add_u32 v8, v3, 3, v8")
    a("v_lshrrev_b32 v9, 1, v2")
    a("v_and_b32 v4, 1, v4")
    a("v_lshl_or_b32 v9, v4, 1, v9")
    a("v_xor_b32 v9, s3, v9")
    a("v_lshl_add_u32 v8, v9, 5, v8")
    a(f"v_add_u32 v8, {L2_AT}, v8")
    a("s_mov_b32 s31, 0xffff0000")
    a("v_and_b32 v2, 15, v1")
    a("v_lshlrev_b32 v2, 10, v2")
    a("v_lshrrev_b32 v3, 4, v1")
    a("v_lshl_add_u32 v2, v3, 4, v2")
    a("s_lshl_b32 s32, s4, 16")
    a("s_lshl_b32 s33, s3, 14")
    a("s_add_u32 s32, s32, s33")
    a("s_lshl_b32 s33, s5, 7")
    a("s_add_u32 s32, s32, s33")
    a("s_waitcnt vmcnt(0) lgkmcnt(0)")
    gs(7)
    a("s_barrier")
    R = 64
    for ww in range(4):
        for nu in range(4):
            a(f"ds_read_b128 {vr(R+16*ww+4*nu,4)}, v{6 + ww//2} offset:{(ww%2)*28672 + nu*1024}")
    AT = 32
    for nu in range(4):
        a(f"ds_read_b64_tr_b16 {vr(AT+2*nu,2)}, v8 offset:{nu*2048}")
    a("s_waitcnt lgkmcnt(12)")
    for i in range(0, 16, 2):
        a(f"v_pk_add_f32 {vr(R+i,2)}, {vr(R+i,2)}, {vr(R+16+i,2)}")
    a("s_waitcnt lgkmcnt(4)")
    for i in range(0, 16, 2):
        a(f"v_pk_add_f32 {vr(R+32+i,2)}, {vr(R+32+i,2)}, {vr(R+48+i,2)}")
    for i in range(0, 16, 2):
        a(f"v_pk_add_f32 {vr(R+i,2)}, {vr(R+i,2)}, {vr(R+32+i,2)}")
    for i in range(0, 16, 2):
        a(f"v_pk_mul_f32 {vr(R+i,2)}, {vr(R+i,2)}, v[20:21] op_sel:[0,1] op_sel_hi:[1,1]")
    a("s_waitcnt lgkmcnt(0)")
    for i in range(8):
        a(f"v_lshlrev_b32 v40, 16, v{AT+i}")
        a(f"v_and_b32 v41, s31, v{AT+i}")
        a(f"v_fmac_f32 v{R+2*i}, v40, v20")
        a(f"v_fmac_f32 v{R+2*i+1}, v41, v20")
    P = 44
    for pr in range(2):
        p = P + 4*pr
        n0, n1 = 2*pr, 2*pr+1
        a(f"v_cvt_pk_bf16_f32 v{p}, v{R+4*n0}, v{R+4*n0+1}")
        a(f"v_cvt_pk_bf16_f32 v{p+1}, v{R+4*n0+2}, v{R+4*n0+3}")
        a(f"v_cvt_pk_bf16_f32 v{p+2}, v{R+4*n1}, v{R+4*n1+1}")
        a(f"v_cvt_pk_bf16_f32 v{p+3}, v{R+4*n1+2}, v{R+4*n1+3}")
        a("s_nop 1")
        a(f"v_permlane32_swap_b32 v{p}, v{p+2}")
        a(f"v_permlane32_swap_b32 v{p+1}, v{p+3}")
        a("s_nop 1")
        a(f"v_permlane16_swap_b32 v{p}, v{p+2}")
        a(f"v_permlane16_swap_b32 v{p+1}, v{p+3}")
        a(f"buffer_store_dwordx4 {vr(p,4)}, v2, {S(SRD_OUT)}, s32 offen offset:{64*pr}")

TR_RS = 1056
T2_BASE = 64*TR_RS
T2_RS = 144
TRX = 64
def gen_tr_loads(a):
    GW = 16
    a("s_sub_u32 s6, s2, 224")
    a("s_lshl_b32 s7, s6, 2")
    a("s_add_u32 s7, s7, s3")
    a("s_lshl_b32 s28, s7, 14")
    a("v_lshlrev_b32 v9, 4, v1")
    for r in range(16):
        a(f"buffer_load_dwordx4 {vr(TRX+4*r,4)}, v9, {S(SRD_X)}, s28 offen offset:{(r%4)*1024}")
        if r % 4 == 3: a("s_add_u32 s28, s28, 4096")
    a(f"global_load_dwordx4 {vr(GW,4)}, v9, {pp(I_GW)}")
    return 17

def gen_transpose(a):
    X = TRX; GW = 16
    a(f"s_mul_i32 s29, s3, {16*TR_RS}")
    a("v_add_u32 v3, s29, v9")
    for r in range(16):
        a(f"s_waitcnt vmcnt({16-r})")
        a(f"ds_write_b128 v3, {vr(X+4*r,4)} offset:{r*TR_RS}")
    a("v_bfe_u32 v4, v1, 2, 2")
    a("v_lshrrev_b32 v5, 4, v1")
    a("v_lshl_add_u32 v4, v5, 3, v4")
    a(f"v_mul_u32_u24 v4, {TR_RS}, v4")
    a("v_and_b32 v6, 3, v1")
    a("v_lshl_add_u32 v4, v6, 3, v4")
    a("s_lshl_b32 s29, s3, 8")
    a("v_add_u32 v4, s29, v4")
    a("v_and_b32 v6, 15, v1")
    a(f"v_mul_u32_u24 v6, {T2_RS}, v6")
    a("v_lshl_add_u32 v6, v5, 4, v6")
    a(f"s_mul_i32 s29, s3, {128*T2_RS}")
    a(f"s_add_u32 s29, s29, {T2_BASE}")
    a("v_add_u32 v6, s29, v6")
    a("v_lshrrev_b32 v7, 3, v1")
    a("v_and_b32 v11, 7, v1")
    a(f"v_mul_u32_u24 v13, {T2_RS}, v7")
    a("v_lshl_add_u32 v13, v11, 4, v13")
    a("v_add_u32 v13, s29, v13")
    a("v_lshlrev_b32 v7, 12, v7")
    a("v_lshl_add_u32 v7, v11, 4, v7")
    a("s_lshl_b32 s28, s3, 19")
    a("s_lshl_b32 s29, s6, 7")
    a("s_add_u32 s28, s28, s29")
    a(f"s_add_u32 s28, s28, {WS_UT}")
    a("s_waitcnt lgkmcnt(0)")
    a("s_barrier")
    O = 128
    n = 0
    for dt in range(8):
        for kh in range(2):
            for h in range(2):
                a(f"ds_read_b64_tr_b16 {vr(O+4*n+2*h,2)}, v4 offset:{(32*kh+4*h)*TR_RS + dt*32}")
            n += 1
    n = 0
    for dt in range(8):
        for kh in range(2):
            a(f"s_waitcnt lgkmcnt({min(15, 2*(15-n) + n)})")
            a(f"ds_write_b128 v6, {vr(O+4*n,4)} offset:{dt*16*T2_RS + kh*64}")
            n += 1
    O2 = 192
    for n in range(16):
        a(f"ds_read_b128 {vr(O2+4*n,4)}, v13 offset:{n*8*T2_RS}")
    for n in range(16):
        a(f"s_waitcnt lgkmcnt({15-n})")
        a(f"buffer_store_dwordx4 {vr(O2+4*n,4)}, v7, {S(SRD_WS)}, s28 offen sc1")
        a(f"s_add_u32 s28, s28, {8*4096}")
    stamp(a, 2)
    a("s_mov_b32 s31, 0xffff0000")
    a("s_waitcnt vmcnt(16)")
    for i in range(4):
        a(f"v_lshlrev_b32 v{20+2*i}, 16, v{GW+i}")
        a(f"v_and_b32 v{21+2*i}, s31, v{GW+i}")
    SS = 128
    def grow(r):
        T = 32 + 8*(r & 1)
        for i in range(4):
            a(f"v_lshlrev_b32 v{T+2*i}, 16, v{X+4*r+i}")
            a(f"v_and_b32 v{T+2*i+1}, s31, v{X+4*r+i}")
        for i in range(4):
            a(f"v_pk_mul_f32 {vr(T+2*i,2)}, {vr(T+2*i,2)}, {vr(20+2*i,2)}")
        for i in range(4):
            a(f"v_cvt_pk_bf16_f32 v{T+2*i}, v{T+2*i}, v{T+2*i+1}")
        for i in range(4):
            a(f"v_and_b32 v{T+2*i+1}, s31, v{T+2*i}")
            a(f"v_lshlrev_b32 v{T+2*i}, 16, v{T+2*i}")
        a(f"v_pk_add_f32 {vr(T,2)}, {vr(T,2)}, {vr(T+2,2)}")
        a(f"v_pk_add_f32 {vr(T+4,2)}, {vr(T+4,2)}, {vr(T+6,2)}")
        a(f"v_pk_add_f32 {vr(T,2)}, {vr(T,2)}, {vr(T+4,2)}")
        a(f"v_add_f32 v{SS+r}, v{T}, v{T+1}")
    a("s_lshl_b32 s28, s3, 2")
    a(f"s_add_u32 s28, s28, {FL_FREE}")
    lds_set(a, "s28", 1, 8, 10)
    for r in range(16):
        grow(r)
        if r == 2:
            a("s_waitcnt vmcnt(0)")
            a(f"ds_write_b32 v8, v10 offset:{FL_TR2 - FL_FREE}")
            a("s_cmp_lg_u32 s3, 0")
            a("s_cbranch_scc1 L_tr_nopub2")
            lds_wait(a, FL_TR2, 4, 1, "tr2", 12, 28, sleep=0)
            lds_wait(a, FL_VALID, 1, 1, "trv0", 12, 28, sleep=1)
            a(f"v_mul_u32_u24 v12, {FSTR}, v1")
            a("s_lshl_b32 s28, s6, 2")
            a(f"s_add_u32 s28, s28, {WS_FU}")
            a("s_mov_b32 s34, -1")
            a("s_mov_b32 s35, 0")
            a("s_mov_b64 exec, s[34:35]")
            a(f"buffer_store_dword v10, v12, {S(SRD_WS)}, s28 offen sc1")
            a("s_mov_b64 exec, -1")
            a.label("L_tr_nopub2")
            stamp(a, 3)
    a("s_nop 1")
    for i in range(8):
        a(f"v_permlane32_swap_b32 v{SS+i}, v{SS+8+i}")
    for i in range(8):
        a(f"v_add_f32 v{SS+i}, v{SS+i}, v{SS+8+i}")
    a("s_nop 1")
    for i in range(4):
        a(f"v_permlane16_swap_b32 v{SS+i}, v{SS+4+i}")
    for i in range(4):
        a(f"v_add_f32 v{SS+i}, v{SS+i}, v{SS+4+i}")
    for sh in (8, 4, 2, 1):
        a("s_nop 0")
        for i in range(4):
            a(f"v_add_f32_dpp v{SS+i}, v{SS+i}, v{SS+i} row_ror:{sh} row_mask:0xf bank_mask:0xf")
    a("v_and_b32 v7, 3, v1")
    for i in range(1, 4):
        a(f"v_cmp_eq_u32 vcc, {i}, v7")
        a("s_nop 1")
        a(f"v_cndmask_b32 v{SS}, v{SS}, v{SS+i}, vcc")
    a(f"v_cvt_pk_bf16_f32 v{SS}, v{SS}, v{SS}")
    a(f"v_and_b32 v{SS}, s31, v{SS}")
    a(f"v_mul_f32 v{SS}, {f2u(-LOG2E)}, v{SS}")
    a(f"v_exp_f32 v{SS}, v{SS}")
    a("s_nop 0")
    a(f"v_add_f32 v{SS}, 1.0, v{SS}")
    a(f"v_rcp_f32 v{SS}, v{SS}")
    a("s_nop 0")
    a(f"v_cvt_pk_bf16_f32 v{SS}, v{SS}, v{SS}")
    a(f"v_and_b32 v{SS}, s31, v{SS}")
    a(f"v_sub_f32 v{SS+1}, 1.0, v{SS}")
    a(f"v_cvt_pk_bf16_f32 v{SS+1}, v{SS+1}, v{SS+1}")
    a(f"v_and_b32 v{SS+1}, s31, v{SS+1}")
    a("v_lshl_add_u32 v7, v5, 2, v7")
    a("v_lshlrev_b32 v7, 3, v7")
    a("s_lshl_b32 s28, s7, 7")
    a(f"s_add_u32 s28, s28, {WS_G}")
    a("s_mov_b32 s34, 0x000f000f")
    a("s_mov_b32 s35, 0x000f000f")
    a("s_mov_b64 exec, s[34:35]")
    a(f"buffer_store_dwordx2 {vr(SS,2)}, v7, {S(SRD_WS)}, s28 offen sc1")
    a("s_mov_b64 exec, -1")
    a("s_waitcnt vmcnt(0)")
    stamp(a, 4)

def gen_kernel(a):
    a.raw(f".globl {KNAME}\n.p2align 8\n.type {KNAME},@function")
    a.label(KNAME)
    a(f"s_load_dwordx16 s[{P0}:{P0+15}], s[0:1], 0")
    a(f"s_load_dwordx16 s[{P0+16}:{P0+31}], s[0:1], 64")
    a(f"s_load_dwordx2 s[{P0+32}:{P0+33}], s[0:1], 128")
    a("s_cmp_ge_u32 s2, 256")
    a("s_cbranch_scc1 L_end")
    if "stamps" in OPT:
        a(f"s_memtime s[{ST0}:{ST0+1}]")
        a(f"s_memrealtime s[{ST0+2}:{ST0+3}]")
    if "nopf" not in OPT:
        a("s_getpc_b64 s[6:7]")
        a.label("L_pc0")
        a("v_lshlrev_b32 v1, 6, v0")
        a("v_min_u32 v1, L_codeend-L_pc0, v1")
        a("global_load_dword v31, v1, s[6:7]")
    a("v_lshrrev_b32 v2, 6, v0")
    a("v_and_b32 v1, 63, v0")
    a("v_readfirstlane_b32 s3, v2")
    a("s_and_b32 s6, s2, 7")
    a("s_lshr_b32 s7, s2, 3")
    a("s_and_b32 s4, s6, 1")
    a("s_lshl_b32 s4, s4, 2")
    a("s_and_b32 s30, s7, 3")
    a("s_add_u32 s4, s4, s30")
    a("s_lshr_b32 s5, s6, 1")
    a("s_mul_i32 s5, s5, 7")
    a("s_lshr_b32 s30, s7, 2")
    a("s_add_u32 s5, s5, s30")
    def common_srds():
        a("s_mov_b32 s0, 0x100000")
        srd(a, SRD_X, ptr(I_U), 2048*512*2)
        srd(a, SRD_W1, ptr(I_W1), 512*1792*2)
        srd(a, SRD_WS, ptr(I_WS), WS_SIZE)
        srd(a, SRD_W2, ptr(I_W2), 1792*512*2)
        srd(a, SRD_OUT, ptr(I_OUT), 2048*512*2)
    a("s_cmp_lt_u32 s3, 4")
    a("s_cbranch_scc1 L_w03")
    a("s_cmp_ge_u32 s3, 6")
    a("s_cbranch_scc1 L_kfin")
    a("s_cmp_lg_u32 s3, 4")
    a("s_cbranch_scc1 L_noinit")
    a("v_mov_b32 v3, 0")
    a(f"v_mov_b32 v4, {FLB}")
    a("v_lshl_add_u32 v4, v1, 2, v4")
    a("ds_write_b32 v4, v3")
    a.label("L_noinit")
    gen_loader_setup(a)
    a("s_waitcnt lgkmcnt(0)")
    common_srds()
    a("s_cmp_ge_u32 s2, 224")
    a("s_cbranch_scc1 L_spare45")
    gen_loader(a)
    a.label("L_ph2_loader")
    gen_w2pre(a)
    stamp(a, 2)
    stamp(a, 3)
    a("s_mov_b32 s33, 1")
    a("s_branch L_conv")
    a.label("L_w03")
    a("s_cmp_ge_u32 s2, 224")
    a("s_cbranch_scc1 L_tr")
    gen_g1_setup(a)
    a("s_waitcnt lgkmcnt(0)")
    common_srds()
    G1G2[0] = True
    gen_g1(a)
    a.label("L_g2")
    gen_g2(a)
    if "stamps" in OPT:
        a("s_waitcnt vmcnt(0)")
        stamp(a, 1)
    G1G2[0] = False
    amp = [o for o in OPT if o.startswith("amp")]
    if amp:
        i, j = int(amp[0][3]), int(amp[0][4])
        a("s_cmp_lg_u32 s2, 100")
        a("s_cbranch_scc1 L_ampskip")
        a("s_cmp_lg_u32 s3, 0")
        a("s_cbranch_scc1 L_ampskip")
        a(f"s_sub_u32 s28, s{ST0+2+4*j}, s{ST0+2+4*i}")
        a("s_lshl_b32 s28, s28, 3")
        a("s_min_u32 s28, s28, 100000")
        a.label("L_amp")
        a("s_memrealtime s[30:31]")
        a("s_waitcnt lgkmcnt(0)")
        a(f"s_sub_u32 s29, s30, s{ST0+2+4*1}")
        a("s_cmp_lt_u32 s29, s28")
        a("s_cbranch_scc1 L_amp")
        a.label("L_ampskip")
    else:
        stamp_flush(a, 8)
    a("s_endpgm")
    a.label("L_tr")
    a("s_waitcnt lgkmcnt(0)")
    common_srds()
    gen_tr_loads(a)
    gen_transpose(a)
    lds_wait(a, FL_VALID, 1, 1, "trv", 3, 4, sleep=4)
    a(f"s_mul_i32 s35, s6, {FSTR}")
    a("s_lshl_b32 s28, s3, 2")
    a("s_add_u32 s35, s35, s28")
    a(f"s_add_u32 s35, s35, {WS_FH + 32*FSTR + 112}")
    publish(a, "s35", 3, 4)
    a("s_mov_b32 s35, 0")
    a("s_branch L_g2")
    a.label("L_spare45")
    a("s_sub_u32 s6, s3, 4")
    a("s_cmp_lg_u32 s2, 255")
    a("s_cbranch_scc1 L_sp_bar")
    a("s_cmp_lg_u32 s3, 4")
    a("s_cbranch_scc1 L_sp_bar")
    for i in range(4):
        a(f"v_mov_b32 v{4+i}, 0")
    a("v_lshrrev_b32 v2, 3, v1")
    a(f"v_mul_u32_u24 v2, {FSTR}, v2")
    a("v_and_b32 v3, 7, v1")
    a("v_lshl_add_u32 v2, v3, 4, v2")
    a(f"s_mov_b32 s28, {WS_FH}")
    for i in range(12):
        a(f"buffer_store_dwordx4 v[4:7], v2, {S(SRD_WS)}, s28 offen sc1")
        a(f"s_add_u32 s28, s28, {8*FSTR}")
    a(f"s_mov_b32 s28, {WS_FA}")
    for i in range(4):
        a(f"buffer_store_dwordx4 v[4:7], v2, {S(SRD_WS)}, s28 offen offset:{i*128} sc1")
    a("v_mov_b32 v3, 1")
    a("s_waitcnt vmcnt(0)")
    a("s_mov_b64 exec, 1")
    a(f"global_store_dword v4, v3, {pp(I_DBG)} sc1")
    a("s_mov_b64 exec, -1")
    a.label("L_sp_bar")
    a("s_barrier")
    a("s_cmp_lg_u32 s6, 0")
    a("s_cbranch_scc1 L_sp_v")
    a("v_mov_b32 v16, 0")
    a.spin("L_sp_poll", 16)
    a(f"global_load_dword v17, v16, {pp(I_DBG)} sc1")
    a("s_waitcnt vmcnt(0)")
    a("v_cmp_eq_u32 vcc, 0, v17")
    a("s_cbranch_vccnz L_sp_poll")
    lds_set(a, FL_VALID, 1, 16, 17)
    a.label("L_sp_v")
    lds_wait(a, FL_FREE, 4, 1, "spring", 17, 22, sleep=4)
    a("s_branch L_ph2_loader")
    a.label("L_kfin")
    gen_ktab_addr(a)
    a("s_waitcnt lgkmcnt(0)")
    gen_ktab_loads(a)
    common_srds()
    gen_ktab(a)
    gen_kfin(a)
    stamp(a, 3)
    a("s_mov_b32 s33, 0")
    a.label("L_conv")
    gen_conv(a)
    stamp(a, 4)
    stamp_flush(a, 5)
    a.label("L_end")
    a.label("L_codeend")
    a("s_endpgm")

def kd(name, vgpr, sgpr=102):
    return f""".p2align 6
.amdhsa_kernel {name}
  .amdhsa_next_free_vgpr {vgpr}
  .amdhsa_next_free_sgpr {sgpr}
  .amdhsa_accum_offset {vgpr}
  .amdhsa_group_segment_fixed_size 0
  .amdhsa_kernarg_size 136
  .amdhsa_user_sgpr_count 2
  .amdhsa_user_sgpr_kernarg_segment_ptr 1
  .amdhsa_system_sgpr_workgroup_id_x 1
.end_amdhsa_kernel"""

def main():
    out = sys.argv[1] if len(sys.argv) > 1 else "k.s"
    if len(sys.argv) > 2:
        OPT.update(sys.argv[2].split(","))
    OPT.add("nowalk")
    a = Asm()
    a.raw(f"; @launch grid=(256,1,1) block=(512,1,1) lds={LDS_SIZE}")
    a.raw('.amdgcn_target "amdgcn-amd-amdhsa--gfx950"')
    a.raw(".text")
    gen_kernel(a)
    a.raw('.section .rodata,"a"')
    a.raw(kd(KNAME, 256))
    open(out, "w").write(a.text())

if __name__ == "__main__":
    main()
```

```python
import sys, struct, math

KNAME = "gated_mix__ssm_conv_s4__glu_gated_swiglu__prompt_kernel"
OPT = set()

def f2u(x):
    return struct.unpack("<I", struct.pack("<f", x))[0]

import re
def est_size(s):
    m = s.split()[0]
    lit = 0
    for tok in re.findall(r"(?<![\w\[:])(-?(?:0x[0-9a-fA-F]+|\d+))(?![\w\]:.])", s.split(None, 1)[1] if " " in s else ""):
        v = int(tok, 0)
        if not (-16 <= v <= 64): lit = 4
    if m.startswith(("ds_", "buffer_", "global_", "v_mfma", "v_pk_", "s_load", "s_mem")): return 8
    if m.startswith("s_"):
        if m in ("s_waitcnt", "s_nop", "s_sleep", "s_branch", "s_barrier", "s_setprio", "s_endpgm") or m.startswith("s_cbranch"): return 4
        return 4 + lit
    if m in ("v_fma_f32", "v_lshl_add_u32", "v_lshl_or_b32", "v_add3_u32", "v_bfe_u32", "v_min3_u32", "v_cvt_pk_bf16_f32", "v_perm_b32",
             "v_alignbit_b32", "v_and_or_b32", "v_mul_lo_u32") or "dpp" in m or "-v" in s: return 8
    return 4 + lit

HOP = 56
class Asm:
    def __init__(self):
        self.L = []
        self.walk = None
    def _hop(self):
        name, k, _ = self.walk
        self.L.append(f"Lh_{name}_{k}:")
        self.L.append(f"    s_cbranch_execz Lh_{name}_{k+1}")
        self.walk = [name, k+1, 4]
    def walk_begin(self, name):
        if "nowalk" in OPT: return
        self.walk = [name, 0, 0]
        self._hop()
    def walk_end(self, to="L_walk_ret"):
        if "nowalk" in OPT: return
        name, k, _ = self.walk
        self.L.append(f"Lh_{name}_{k}:")
        self.L.append(f"    s_cbranch_execz {to}")
        self.walk = None
    def __call__(self, s):
        self.L.append("    " + s)
        if self.walk is not None:
            self.walk[2] += est_size(s)
            if self.walk[2] >= HOP:
                self._hop()
    def label(self, s):
        self.L.append(s + ":")
    def spin(self, s, sleep=0):
        self.L.append(s + ":")
        self("s_sub_u32 s0, s0, 1")
        self("s_cbranch_scc1 L_end")
        if sleep:
            self(f"s_sleep {sleep}")
    def raw(self, s):
        self.L.append(s)
    def text(self):
        return "\n".join(self.L) + "\n"

RET = 34
def walk(a, label):
    if "nowalk" in OPT: return
    a("s_mov_b64 exec, 0")
    a(f"s_call_b64 s[{RET}:{RET+1}], {label}")
    a("s_mov_b64 exec, -1")

def vr(b, n):
    return f"v[{b}:{b+n-1}]" if n > 1 else f"v{b}"

class VM:
    def __init__(self, a):
        self.a = a; self.q = []
    def op(self, s, tag):
        self.a(s); self.q.append(tag)
    def wait(self, tag):
        idx = max(i for i, t in enumerate(self.q) if t == tag) if tag in self.q else -1
        if idx < 0: return
        n = len(self.q) - 1 - idx
        assert n <= 63
        self.a(f"s_waitcnt vmcnt({n})")
        self.q = self.q[idx+1:]

WS_H    = 0x000000
WS_UT   = 0x800000
WS_G    = 0xA00000
WS_A    = 0xB00000
FSTR    = 4352
WS_FH   = 0xE00000
WS_FA   = 0xE80000
WS_FU   = WS_FH + 64*FSTR
WS_STAMP = 0x1300000
WS_SIZE = 0x1400000
LOG2E = 1.4426950408889634

SRD_X, SRD_W1, SRD_W2, SRD_WS, SRD_OUT = 8, 12, 16, 20, 24
P0 = 36
def ptr(i): return P0 + 2*i
def pp(i): return f"s[{ptr(i)}:{ptr(i)+1}]"
(I_U, I_ARE, I_AIM, I_BRE, I_BIM, I_CRE, I_CIM, I_LDT, I_DSK, I_X, I_W1, I_W3, I_W2, I_GW, I_OUT, I_DBG, I_WS) = range(17)
ST0 = 70
def S(d): return f"s[{d}:{d+3}]"

G1G2 = [False]
def stamp(a, idx, grp="main"):
    if "stamps" not in OPT: return
    if ("kst" in OPT) != (grp == "kst") and grp != "any": return
    if ("itst" in OPT or "g2st" in OPT) and G1G2[0] and grp != "any": return
    a(f"s_memtime s[{ST0+4*idx}:{ST0+1+4*idx}]")
    a(f"s_memrealtime s[{ST0+2+4*idx}:{ST0+3+4*idx}]")
    a("s_waitcnt lgkmcnt(0)")
def stamp_flush(a, n):
    if "stamps" not in OPT or any(o.startswith("amp") for o in OPT): return
    a("s_waitcnt lgkmcnt(0)")
    a("s_lshl_b32 s34, s2, 3")
    a("s_add_u32 s34, s34, s3")
    a("s_lshl_b32 s34, s34, 6")
    a(f"s_add_u32 s34, s34, {WS_STAMP}")
    a("v_mov_b32 v1, 0")
    for i in range(n):
        a(f"v_mov_b32 v2, s{ST0+4*i}")
        a(f"v_mov_b32 v3, s{ST0+2+4*i}")
        a(f"buffer_store_dwordx2 v[2:3], v1, {S(SRD_WS)}, s34 offen offset:{8*i}")
        a("s_nop 1")

SLOT = 49152
L_SIDE = 3*SLOT
SIDE_U = 0
SIDE_C = 6144
SIDE_F = 7680
LDS_SIZE = 163840
FLB = L_SIDE + SIDE_F
FL_FULL = FLB + 0
FL_ISS = FLB + 8
FL_VALID = FLB + 12
FL_FREE = FLB + 16
FL_EO = FLB + 32
FL_W2 = FLB + 40
FL_TR = FLB + 48
FL_TR2 = FLB + 64
FL_KG = FLB + 80
FL_X = FLB + 96
L2_XB = 139520
SIDE_XA = 4608
KT_BASE = 0
UN_T1 = 17408
UN_T2 = 25600
KG_RS = 272
L2_W2 = 0
L2_EO = 114688
L2_AT = 131328
EO_O = 4160

def srd(a, d, base, nbytes):
    a(f"s_mov_b32 s{d}, s{base}")
    a(f"s_and_b32 s{d+1}, s{base+1}, 0xffff")
    a(f"s_mov_b32 s{d+2}, {nbytes}")
    a(f"s_mov_b32 s{d+3}, 0x00020000")

def lds_wait(a, addr, n, val, tag, va, vt, sleep=1):
    a(f"v_mov_b32 v{va}, {addr}")
    a.spin(f"L_lw_{tag}", sleep)
    if n == 1:
        a(f"ds_read_b32 v{vt}, v{va}")
        a("s_waitcnt lgkmcnt(0)")
    elif n == 2:
        a(f"ds_read_b64 {vr(vt,2)}, v{va}")
        a("s_waitcnt lgkmcnt(0)")
        a(f"v_min_u32 v{vt}, v{vt}, v{vt+1}")
    else:
        a(f"ds_read_b128 {vr(vt,4)}, v{va}")
        a("s_waitcnt lgkmcnt(0)")
        a(f"v_min_u32 v{vt}, v{vt}, v{vt+1}")
        a(f"v_min3_u32 v{vt}, v{vt}, v{vt+2}, v{vt+3}")
    a(f"v_cmp_gt_u32 vcc, {val}, v{vt}")
    a(f"s_cbranch_vccnz L_lw_{tag}")

BARN = [0]
def bar(a):
    BARN[0] += 1
    a("s_cmp_ge_u32 s2, 224")
    a(f"s_cbranch_scc1 L_bar{BARN[0]}")
    a("s_barrier")
    a.label(f"L_bar{BARN[0]}")

def lds_set(a, addr, val, va, vv):
    a(f"v_mov_b32 v{va}, {addr}")
    a(f"v_mov_b32 v{vv}, {val}")
    a(f"ds_write_b32 v{va}, v{vv}")

def publish(a, soff, va, vv):
    a(f"v_mov_b32 v{vv}, 1")
    a(f"v_mov_b32 v{va}, 0")
    a("s_mov_b64 exec, 1")
    a(f"buffer_store_dword v{vv}, v{va}, {S(SRD_WS)}, {soff} offen sc1")
    a("s_mov_b64 exec, -1")

def arrive(a, tag, va, vv):
    a(f"v_mov_b32 v{va}, 0")
    a(f"v_mov_b32 v{vv}, 1")
    a("s_mov_b64 exec, 1")
    a(f"global_atomic_add v{vv+1}, v{va}, v{vv}, {pp(I_DBG)} offset:128 sc0 sc1")
    a("s_waitcnt vmcnt(0)")
    a(f"v_cmp_eq_u32 vcc, 32, v{vv+1}")
    a(f"s_cbranch_vccz L_arr_{tag}")
    a(f"global_store_dword v{va}, v{vv}, {pp(I_DBG)} sc1")
    a.label(f"L_arr_{tag}")
    a("s_mov_b64 exec, -1")

def cmul(a, d, x, y):
    a(f"v_pk_mul_f32 {vr(d,2)}, {vr(x,2)}, {vr(y,2)} op_sel:[0,0] op_sel_hi:[0,1]")
    a(f"v_pk_fma_f32 {vr(d,2)}, {vr(x,2)}, {vr(y,2)}, {vr(d,2)} op_sel:[1,1,0] op_sel_hi:[1,0,1] neg_lo:[0,1,0]")

KT_U = 64
V_DSK = 20
def gen_ktab_addr(a):
    a("s_lshr_b32 s6, s3, 1")
    a("s_lshl_b32 s7, s2, 1")
    a("s_add_u32 s7, s7, s6")
    a("s_lshl_b32 s28, s7, 8")
    a("s_and_b32 s29, s3, 1")
    a("s_lshl_b32 s29, s29, 7")
    a("s_add_u32 s28, s28, s29")
    a("v_lshl_add_u32 v2, v1, 1, s28")
    a("s_lshl_b32 s29, s7, 1")
    a("v_mov_b32 v3, s29")

def gen_ktab_loads(a):
    for i in range(6):
        a(f"global_load_short_d16_hi v{KT_U+i}, v2, {pp(I_ARE+i)}")
    a(f"global_load_short_d16_hi v{KT_U+6}, v3, {pp(I_LDT)}")

def gen_ktab(a, nyoung):
    U = KT_U
    DT = 72; AP = 74; BP = 75
    W1, W4, W512 = 76, 78, 80
    T0 = 82
    W2, W128, W256, Y32 = 56, 58, 60, 62
    Z = 24
    YF = 64; XF = 80
    VWR, VRD = 21, 22
    a(f"s_mul_i32 s30, s3, 4352")
    a(f"s_add_u32 s30, s30, {KT_BASE}")
    a(f"v_lshl_add_u32 v{VWR}, v1, 4, s30")
    a("v_bfe_u32 v6, v1, 2, 2")
    a("v_lshrrev_b32 v7, 4, v1")
    a("v_lshl_add_u32 v6, v7, 3, v6")
    a(f"v_lshl_add_u32 v{VRD}, v6, 4, s30")
    a("v_and_b32 v6, 1, v1")
    a(f"v_lshl_add_u32 v{VRD}, v6, 3, v{VRD}")
    a("v_bfe_u32 v6, v1, 1, 1")
    a("v_mul_u32_u24 v6, 1088, v6")
    a(f"v_add_u32 v{VRD}, v6, v{VRD}")
    a("s_mov_b32 s31, 0xffff0000")
    a(f"s_mov_b32 s32, {f2u(LOG2E)}")
    L2E_HI = struct.unpack("<f", struct.pack("<f", LOG2E))[0]
    a(f"s_mov_b32 s33, {f2u(LOG2E - L2E_HI)}")
    a(f"s_mov_b32 s34, {f2u(1.0/(2*math.pi))}")
    a("s_cmp_ge_u32 s2, 224")
    a("s_cbranch_scc1 L_kt_w1")
    a("s_waitcnt vmcnt(1)")
    a.label("L_kt_w1")
    a(f"s_waitcnt vmcnt({nyoung})")
    stamp(a, 3, "kst")
    for i in range(7):
        a(f"v_and_b32 v{U+i}, s31, v{U+i}")
    L = U+6
    a(f"v_mul_f32 v{DT}, s32, v{L}")
    a(f"v_fma_f32 v{DT+1}, v{L}, s32, -v{DT}")
    a(f"v_fmac_f32 v{DT+1}, s33, v{L}")
    a(f"v_exp_f32 v{DT}, v{DT}")
    a(f"v_mul_f32 v{DT+1}, {f2u(math.log(2.0))}, v{DT+1}")
    a(f"v_fmac_f32 v{DT}, v{DT}, v{DT+1}")
    a(f"v_cvt_pk_bf16_f32 v{DT}, v{DT}, v{DT}")
    a(f"v_and_b32 v{DT}, s31, v{DT}")
    a(f"v_mul_f32 v{AP}, v{DT}, v{U}")
    a(f"v_mul_f32 v{BP}, v{DT}, v{U+1}")
    a(f"v_mul_f32 v{U+2}, v{DT}, v{U+2}")
    a(f"v_mul_f32 v{U+3}, v{DT}, v{U+3}")
    a(f"v_mul_f32 v{AP}, s32, v{AP}")
    a(f"v_mul_f32 v{BP}, s34, v{BP}")
    z = lambda c: Z + 2*c
    CB = z(4)
    def cmuls(lst):
        for d, x, y in lst:
            a(f"v_pk_mul_f32 {vr(d,2)}, {vr(x,2)}, {vr(y,2)} op_sel:[0,0] op_sel_hi:[0,1]")
        for d, x, y in lst:
            a(f"v_pk_fma_f32 {vr(d,2)}, {vr(x,2)}, {vr(y,2)}, {vr(d,2)} op_sel:[1,1,0] op_sel_hi:[1,0,1] neg_lo:[0,1,0]")
    cmuls([(CB, U+4, U+2)])
    dsts = [(z(1), 8, True), (W1, 1, False), (W128, 128, False)]
    for n, (dst, l, cj) in enumerate(dsts):
        lit = "1.0" if l == 1 else str(f2u(float(l)))
        a(f"v_mul_f32 v{T0+4*n}, {lit}, v{AP}")
        a(f"v_mul_f32 v{T0+4*n+1}, {lit}, v{BP}")
    for n in range(3):
        a(f"v_exp_f32 v{T0+4*n}, v{T0+4*n}")
        a(f"v_fract_f32 v{T0+4*n+1}, v{T0+4*n+1}")
    for n in range(3):
        a(f"v_cos_f32 v{T0+4*n+2}, v{T0+4*n+1}")
        a(f"v_sin_f32 v{T0+4*n+3}, v{T0+4*n+1}")
    a(f"v_mov_b32 v{z(0)}, 1.0")
    for n, (dst, l, cj) in enumerate(dsts):
        a(f"v_mul_f32 v{dst}, v{T0+4*n}, v{T0+4*n+2}")
        a(f"v_mul_f32 v{dst+1}, {'-' if cj else ''}v{T0+4*n}, v{T0+4*n+3}")
    a(f"v_mov_b32 v{z(0)+1}, 0")
    cmuls([(z(2), z(1), z(1)), (W2, W1, W1), (z(5), CB, W1), (z(6), CB, W128), (W256, W128, W128)])
    cmuls([(z(3), z(2), z(1)), (Y32, z(2), z(2)), (z(7), z(6), W1), (W4, W2, W2), (z(8), CB, W256), (z(9), z(6), W256), (W512, W256, W256)])
    cmuls([(z(10), z(8), W256), (T0, W512, W512)])
    cmuls([(z(11), z(10), W4), (z(13), T0, z(6)), (z(12), T0, CB)])
    mult = [Y32]*4 + [W2]*4 + [W2, W2, W128, W128] + [W256, W256]
    stamp(a, 4, "kst")
    SP = 1088
    E = 96
    PKK = 120
    pkn = [0]
    ev = lambda kk, it: E + 6*kk + 2*(it-1)
    def val(c0, kk, it):
        if c0 == 0 and kk == 0 and it == 1: return Y32
        return z(c0+kk) if it == 0 else ev(kk, it)
    def tile(c0, nch, extra=None):
        for it in range(1, 4):
            cmuls([(ev(kk, it), val(c0, kk, it-1), mult[c0+kk]) for kk in range(nch) if not (c0 == 0 and kk == 0 and it == 1)])
        if extra is not None:
            cmuls([(extra, ev(0, 3), mult[c0])])
        for pair in range(2):
            for pl in range(2):
                p = PKK + 4*(pkn[0] % 2); pkn[0] += 1
                if 2*pair >= nch:
                    a(f"v_cvt_pk_bf16_f32 v{p}, v{extra+pl}, v{extra+pl}")
                    a(f"ds_write_b32 v{VWR}, v{p} offset:{(2*pl+pair)*SP}")
                    continue
                for kk in range(2):
                    c = 2*pair + kk
                    a(f"v_cvt_pk_bf16_f32 v{p+2*kk}, v{val(c0,c,0)+pl}, v{val(c0,c,1)+pl}")
                    a(f"v_cvt_pk_bf16_f32 v{p+2*kk+1}, v{val(c0,c,2)+pl}, v{val(c0,c,3)+pl}")
                a(f"ds_write_b128 v{VWR}, {vr(p,4)} offset:{(2*pl+pair)*SP}")
    def readfr(dst):
        for pl in range(2):
            for nh in range(2):
                for h in range(2):
                    a(f"ds_read_b64_tr_b16 {vr(dst+8*pl+4*nh+2*h,2)}, v{VRD} offset:{2*pl*SP + nh*512 + h*64}")
    def mm(dd, xf):
        for kk in range(4):
            c = "0" if kk == 0 else vr(dd, 4)
            a(f"v_mfma_f32_16x16x32_bf16 {vr(dd,4)}, {vr(xf+4*kk,4)}, {vr(YF+4*kk,4)}, {c}")
    D = 24
    tile(0, 4)
    readfr(YF)
    tile(4, 4)
    readfr(XF)
    tile(8, 4)
    a("s_waitcnt lgkmcnt(4)")
    mm(D, XF)
    readfr(XF)
    tile(12, 2, extra=z(8))
    a("s_waitcnt lgkmcnt(4)")
    mm(D+4, XF)
    X2 = 96
    readfr(X2)
    stamp(a, 5, "kst")
    a("s_lshl_b32 s28, s6, 13")
    a("s_and_b32 s29, s3, 1")
    a("s_mul_i32 s29, s29, 3072")
    a("s_add_u32 s28, s28, s29")
    a(f"s_add_u32 s28, s28, {L_SIDE}")
    a("v_lshl_add_u32 v2, v1, 4, s28")
    a("s_lshl_b32 s28, s3, 2")
    a(f"s_add_u32 s28, s28, {FL_KG}")
    a("v_mov_b32 v3, s28")
    a("v_mov_b32 v4, 1")
    a(f"ds_write_b128 v2, {vr(D,4)}")
    a(f"ds_write_b128 v2, {vr(D+4,4)} offset:1024")
    a("s_waitcnt lgkmcnt(2)")
    mm(D+8, X2)
    a("s_nop 7")
    a(f"ds_write_b128 v2, {vr(D+8,4)} offset:2048")
    a("ds_write_b32 v3, v4")
    a("s_waitcnt lgkmcnt(0)")
    stamp(a, 6, "kst")

def gen_unit_load(a):
    w2_voffs(a, 8)
    a("s_lshr_b32 s28, s2, 3")
    a("s_lshl_b32 s28, s28, 16")
    a("s_and_b32 s29, s2, 7")
    a("s_lshl_b32 s29, s29, 7")
    a("s_add_u32 s28, s28, s29")
    for q in range(2):
        a(f"s_mov_b32 m0, {UN_T1 + q*4096}")
        a("s_nop 0")
        for k in range(4):
            a(f"buffer_load_dwordx4 v{8+k}, {S(SRD_X)}, s28 offen offset:{k*1024} lds")
        a("s_add_u32 s28, s28, 32768")

def gen_unit(a):
    a("v_bfe_u32 v2, v1, 2, 2")
    a("v_and_b32 v3, 3, v1")
    a("v_lshrrev_b32 v4, 4, v1")
    a("v_lshl_add_u32 v5, v4, 3, v2")
    a("v_lshlrev_b32 v5, 7, v5")
    a("v_lshl_add_u32 v5, v3, 3, v5")
    a(f"v_add_u32 v5, {UN_T1}, v5")
    a("v_lshrrev_b32 v6, 1, v2")
    TA = 64
    for x in range(4):
        a(f"v_xor_b32 v7, {x}, v6")
        a(f"v_lshl_add_u32 v{TA+x}, v7, 5, v5")
    a("v_and_b32 v6, 15, v1")
    a("v_mul_u32_u24 v6, 144, v6")
    a("v_lshl_add_u32 v6, v4, 4, v6")
    a(f"v_add_u32 v{TA+4}, {UN_T2}, v6")
    a("v_lshrrev_b32 v6, 3, v1")
    a("v_and_b32 v7, 7, v1")
    a("v_mul_u32_u24 v2, 144, v6")
    a("v_lshl_add_u32 v2, v7, 4, v2")
    a(f"v_add_u32 v{TA+5}, {UN_T2}, v2")
    a("v_lshlrev_b32 v6, 12, v6")
    a(f"v_lshl_add_u32 v{TA+6}, v7, 4, v6")
    a("s_and_b32 s28, s2, 7")
    a("s_lshl_b32 s28, s28, 18")
    a("s_lshr_b32 s29, s2, 3")
    a("s_lshl_b32 s29, s29, 7")
    a("s_add_u32 s28, s28, s29")
    a(f"s_add_u32 s28, s28, {WS_UT}")
    a("s_waitcnt vmcnt(0)")
    O = 72
    n = 0
    for nu in range(4):
        for kh in range(2):
            for h in range(2):
                a(f"ds_read_b64_tr_b16 {vr(O+4*n+2*h,2)}, v{TA + (nu ^ (2*h))} offset:{(32*kh+4*h)*128}")
            n += 1
    n = 0
    for nu in range(4):
        for kh in range(2):
            a(f"s_waitcnt lgkmcnt({min(15, 2*(7-n) + n)})")
            a(f"ds_write_b128 v{TA+4}, {vr(O+4*n,4)} offset:{nu*16*144 + kh*64}")
            n += 1
    O2 = 104
    for n in range(8):
        a(f"ds_read_b128 {vr(O2+4*n,4)}, v{TA+5} offset:{n*8*144}")
    for n in range(8):
        a(f"s_waitcnt lgkmcnt({7-n})")
        a(f"buffer_store_dwordx4 {vr(O2+4*n,4)}, v{TA+6}, {S(SRD_WS)}, s28 offen sc1")
        a(f"s_add_u32 s28, s28, {8*4096}")

def gen_unit_pub(a):
    a("s_and_b32 s28, s2, 7")
    a(f"s_mul_i32 s28, s28, {4*FSTR}")
    a("s_lshr_b32 s29, s2, 3")
    a("s_lshl_b32 s29, s29, 2")
    a("s_add_u32 s28, s28, s29")
    a(f"s_add_u32 s28, s28, {WS_FU}")
    a(f"v_mul_u32_u24 v2, {FSTR}, v1")
    a("v_mov_b32 v3, 1")
    lds_wait(a, FL_VALID, 1, 1, "unv", 4, 60, sleep=2)
    a("s_waitcnt vmcnt(0)")
    a("s_mov_b64 exec, 15")
    a(f"buffer_store_dword v3, v2, {S(SRD_WS)}, s28 offen sc1")
    a("s_mov_b64 exec, -1")

def gen_g1_setup(a):
    ACC = 128
    XF = 32; WF = 64; XA = 8; WA = 12
    a("v_and_b32 v2, 15, v1")
    a("v_lshrrev_b32 v3, 4, v1")
    a("v_bfe_u32 v4, v2, 1, 3")
    a("s_lshl_b32 s28, s3, 13")
    a(f"s_add_u32 s28, s28, {SLOT}")
    a("v_lshlrev_b32 v5, 7, v2")
    a("v_add_u32 v5, s28, v5")
    for sig in range(2):
        a(f"v_add_u32 v6, {4*sig}, v3")
        a("v_xor_b32 v6, v6, v4")
        a(f"v_lshl_add_u32 v{XA+sig}, v6, 4, v5")
    a("v_bfe_u32 v2, v1, 2, 2")
    a("v_and_b32 v3, 3, v1")
    a("v_lshrrev_b32 v4, 4, v1")
    a("v_lshl_add_u32 v6, v4, 3, v2")
    a("v_lshlrev_b32 v6, 7, v6")
    a("v_lshl_add_u32 v6, v3, 3, v6")
    a(f"v_add_u32 v6, {32768+SLOT}, v6")
    a("v_lshrrev_b32 v7, 1, v2")
    a("v_and_b32 v4, 1, v4")
    a("v_lshl_or_b32 v7, v4, 1, v7")
    for nu in range(4):
        a(f"v_xor_b32 v5, {nu}, v7")
        a(f"v_lshl_add_u32 v{WA+nu}, v5, 5, v6")
    for i in range(0, 128, 2):
        a(f"v_pk_mul_f32 {vr(ACC+i,2)}, 0, 0")
    a("s_lshl_b32 s28, s3, 2")
    a(f"s_add_u32 s28, s28, {FL_FREE}")
    a("v_mov_b32 v19, s28")
    a("v_mov_b32 v20, 0")

def gen_g1(a):
    ACC = 128
    XF = 32; WF = 64; XA = 8; WA = 12
    def acc(mat, nu, m): return ACC + 4*((mat*4+nu)*4+m)
    def xf(sig, m): return XF + 16*(sig & 1) + 4*m
    def wf(sig, mat, nu): return WF + 32*(sig & 1) + 4*(mat*4+nu)
    def reads(sig):
        r = []
        for m in range(4):
            r.append(f"ds_read_b128 {vr(xf(sig,m),4)}, v{XA+sig} offset:{m*2048}")
        for mat in range(2):
            for nu in range(4):
                for h in range(2):
                    r.append(f"ds_read_b64_tr_b16 {vr(wf(sig,mat,nu)+2*h,2)}, v{WA+nu} offset:{mat*8192+sig*4096+h*512}")
        return r
    def mfmas(sig):
        r = []
        for mat in range(2):
            for nu in range(4):
                for m in range(4):
                    d = acc(mat, nu, m)
                    r.append(f"v_mfma_f32_16x16x32_bf16 {vr(d,4)}, {vr(wf(sig,mat,nu),4)}, {vr(xf(sig,m),4)}, {vr(d,4)}")
        return r
    a("s_mov_b32 s7, 1")
    a("s_mov_b32 s28, 8")
    a(f"s_mov_b32 s30, {SLOT}")
    a("s_barrier")
    stamp(a, 2)
    for r in reads(0): a(r)
    a.label("L_g1_loop")
    a("s_add_u32 s7, s7, 1")
    a("s_cmp_eq_u32 s7, 3")
    a(f"s_cselect_b32 s29, {(-2*SLOT) & 0xffffffff}, s30")
    a("s_cselect_b32 s7, 0, s7")
    M = mfmas(0); R = reads(1)
    issued = 0
    for i in range(32):
        if i % 4 == 0:
            need = 4 + 2*(i//4 + 1)
            n = (20 - need) + issued
            a(f"s_waitcnt lgkmcnt({min(n,15)})")
        a(M[i])
        if issued < 20 and i >= 2:
            a(R[issued]); issued += 1
        if i == 24:
            a(f"v_add_u32 v{XA}, s29, v{XA}")
            a(f"v_add_u32 v{XA+1}, s29, v{XA+1}")
        if i in (25, 26):
            a(f"v_add_u32 v{WA+2*(i-25)}, s29, v{WA+2*(i-25)}")
            a(f"v_add_u32 v{WA+2*(i-25)+1}, s29, v{WA+2*(i-25)+1}")
        if i == 27:
            a("s_sub_u32 s28, s28, 1")
            a("s_cmp_eq_u32 s28, 0")
    assert issued == 20
    M = mfmas(1); R = reads(0)
    a("s_waitcnt lgkmcnt(0)")
    a(M[0]); a(M[1])
    a("s_barrier")
    a("s_cbranch_scc1 L_g1_last")
    issued = 0
    for i in range(2, 32):
        if issued < 20:
            a(R[issued]); issued += 1
        a(M[i])
    a("s_branch L_g1_loop")
    a.label("L_g1_last")
    for i in range(2, 32):
        a(M[i])
    stamp(a, 3)
    a(f"s_mov_b32 s6, {f2u(-LOG2E)}")
    a(f"s_mov_b32 s7, {f2u(-LOG2E)}")
    a("s_lshl_b32 s28, s4, 4")
    a("s_lshl_b32 s29, s3, 2")
    a("s_add_u32 s28, s28, s29")
    a("s_mul_i32 s28, s28, 56")
    a("s_lshl_b32 s29, s5, 1")
    a("s_add_u32 s28, s28, s29")
    a("s_lshl_b32 s28, s28, 10")
    for m in range(1, 4):
        a(f"s_add_u32 s{28+m}, s28, {m*56*1024}")
    a("v_lshlrev_b32 v2, 4, v1")
    a("s_lshl_b32 s32, s4, 2")
    a("s_add_u32 s32, s32, s3")
    a(f"s_mul_i32 s32, s32, {FSTR}")
    a("s_lshl_b32 s33, s5, 2")
    a("s_add_u32 s32, s32, s33")
    a(f"s_add_u32 s32, s32, {WS_FH}")
    a(f"s_add_u32 s33, s32, {32*FSTR}")
    T = 32
    cnt = 0
    for np_ in range(2):
        for m in range(4):
            E = T + 16*(cnt & 1)
            O = E + 8
            gs = [acc(0, 2*np_, m), acc(0, 2*np_, m)+2, acc(0, 2*np_+1, m), acc(0, 2*np_+1, m)+2]
            us = [acc(1, 2*np_, m), acc(1, 2*np_, m)+2, acc(1, 2*np_+1, m), acc(1, 2*np_+1, m)+2]
            for p in range(4):
                a(f"v_pk_mul_f32 {vr(E+2*p,2)}, {vr(gs[p],2)}, s[6:7]")
            for p in range(8):
                a(f"v_exp_f32 v{E+p}, v{E+p}")
            for p in range(4):
                a(f"v_pk_mul_f32 {vr(us[p],2)}, {vr(gs[p],2)}, {vr(us[p],2)}")
            for p in range(4):
                a(f"v_pk_add_f32 {vr(E+2*p,2)}, {vr(E+2*p,2)}, 1.0 op_sel_hi:[1,0]")
            for p in range(8):
                a(f"v_rcp_f32 v{E+p}, v{E+p}")
            a("s_nop 0")
            for p in range(4):
                a(f"v_pk_mul_f32 {vr(us[p],2)}, {vr(us[p],2)}, {vr(E+2*p,2)}")
            for p in range(4):
                a(f"v_cvt_pk_bf16_f32 v{O+p}, v{us[p]}, v{us[p]+1}")
            if cnt == 6:
                lds_wait(a, FL_VALID, 1, 1, "g1v", 3, 4, sleep=0)
                a("s_waitcnt vmcnt(2)")
                publish(a, "s32", 3, 4)
            a(f"buffer_store_dwordx4 {vr(O,4)}, v2, {S(SRD_WS)}, s{28+m} offen offset:{np_*1024} sc1")
            cnt += 1
    a("v_mov_b32 v20, 1")
    a("ds_write_b32 v19, v20")
    stamp(a, 4)
    a("s_mov_b32 s35, s33")
    a.walk_end()

VX = 8; VW = 12
def gen_loader_setup(a):
    a("v_lshrrev_b32 v2, 3, v1")
    a("v_and_b32 v3, 7, v1")
    a("v_lshrrev_b32 v4, 4, v1")
    a("v_xor_b32 v5, v3, v4")
    a("v_xor_b32 v6, 4, v5")
    a("v_lshlrev_b32 v7, 10, v2")
    a(f"v_lshl_add_u32 v{VX}, v5, 4, v7")
    a(f"v_lshl_add_u32 v{VX+1}, v6, 4, v7")
    a(f"v_add_u32 v{VX+2}, {2*7168}, v{VX}")
    a(f"v_add_u32 v{VX+3}, {3*7168}, v{VX+1}")
    a(f"v_add_u32 v{VX+1}, {7168}, v{VX+1}")
    a("v_and_b32 v4, 1, v4")
    a("v_lshlrev_b32 v4, 1, v4")
    a("v_xor_b32 v5, v3, v4")
    a("v_mul_u32_u24 v7, 3584, v2")
    a(f"v_lshl_add_u32 v{VW}, v5, 4, v7")
    a("v_xor_b32 v5, 4, v5")
    a(f"v_lshl_add_u32 v{VW+1}, v5, 4, v7")
    a(f"v_add_u32 v{VW+2}, {2*(28672-1024)}, v{VW}")
    a(f"v_add_u32 v{VW+3}, {3*(28672-1024)}, v{VW+1}")
    a(f"v_add_u32 v{VW+1}, {(28672-1024)}, v{VW+1}")

def gen_loader(a):
    NT1 = " nt" if "nt1" in OPT else ""
    a("s_sub_u32 s6, s3, 4")
    a("s_cmp_eq_u32 s6, 1")
    a(f"s_cselect_b32 s{SRD_W1}, s{ptr(I_W3)}, s{ptr(I_W1)}")
    a(f"s_cselect_b32 s{SRD_W1+1}, s{ptr(I_W3)+1}, s{ptr(I_W1)+1}")
    a(f"s_and_b32 s{SRD_W1+1}, s{SRD_W1+1}, 0xffff")
    a("s_lshl_b32 s28, s4, 18")
    a("s_lshl_b32 s7, s6, 17")
    a("s_add_u32 s28, s28, s7")
    a("s_lshl_b32 s29, s5, 7")
    a("s_lshl_b32 s34, s6, 14")
    a(f"s_add_u32 s34, s34, {SLOT}")
    a("s_lshl_b32 s35, s6, 13")
    a(f"s_add_u32 s35, s35, {SLOT+32768}")
    a("s_mov_b32 s31, 0")
    a("s_mov_b32 s30, 1")
    a.label("L_ld_loop")
    a(f"s_add_u32 s33, s29, {4*28672}")
    for q in range(2):
        a(f"s_add_u32 m0, s35, {q*4096}")
        a("s_nop 0")
        for k in range(4):
            a(f"buffer_load_dwordx4 v{VW+k}, {S(SRD_W1)}, s{29 if q == 0 else 33} offen offset:{k*1024}{NT1} lds")
    a("s_mov_b32 s33, s28")
    for q in range(4):
        a(f"s_add_u32 m0, s34, {q*4096}")
        a("s_nop 0")
        for k in range(4):
            a(f"buffer_load_dwordx4 v{VX+k}, {S(SRD_X)}, s33 offen offset:{k*1024}{NT1} lds")
        if q < 3: a("s_add_u32 s33, s33, 32768")
    a("s_add_u32 s28, s28, 128")
    a(f"s_add_u32 s29, s29, {64*3584}")
    a("s_add_u32 s30, s30, 1")
    a("s_cmp_eq_u32 s30, 3")
    a(f"s_cselect_b32 s7, {(-3*SLOT) & 0xffffffff}, 0")
    a("s_cselect_b32 s30, 0, s30")
    a(f"s_add_u32 s7, s7, {SLOT}")
    a("s_add_u32 s34, s34, s7")
    a("s_add_u32 s35, s35, s7")
    a("s_add_u32 s31, s31, 1")
    a("s_cmp_eq_u32 s31, 1")
    a("s_cbranch_scc1 L_ld_loop")
    a("s_waitcnt vmcnt(24)")
    a("s_barrier")
    a("s_cmp_lt_u32 s31, 8")
    a("s_cbranch_scc1 L_ld_loop")
    stamp(a, 1)

V_EO = 192
VC0, VC1, VC3 = 8, 16, 11
MU, EE, GB = 56, 57, 58
GA = 36
def gen_kfin_addr(a):
    a("v_and_b32 v6, 15, v1")
    a("v_lshrrev_b32 v7, 4, v1")
    a("v_and_b32 v2, 3, v6")
    a("v_lshrrev_b32 v3, 2, v6")
    a("v_lshl_add_u32 v6, v2, 2, v3")
    a("v_lshrrev_b32 v12, 1, v7")
    a("v_and_b32 v13, 1, v7")
    a(f"v_lshlrev_b32 v{VC0}, 8, v12")
    a(f"v_lshl_add_u32 v{VC0}, v13, 1, v{VC0}")
    a(f"v_lshl_add_u32 v{VC0}, v6, 4, v{VC0}")
    a(f"v_add_u32 v{VC0}, s30, v{VC0}")
    a("v_lshlrev_b32 v2, 7, v13")
    a("v_lshl_add_u32 v2, v6, 3, v2")
    a("v_lshlrev_b32 v3, 1, v13")
    a("v_lshl_add_u32 v3, v6, 2, v3")
    a("v_add_u32 v3, 256, v3")
    a("v_cmp_eq_u32 vcc, 0, v12")
    a("v_mul_u32_u24 v14, 62, v12")
    a("v_add_u32 v14, 2, v14")
    a(f"v_cndmask_b32 v{VC1}, v3, v2, vcc")
    a(f"v_add_u32 v{VC1}, s30, v{VC1}")
    for i in range(1, 4):
        a(f"v_add_u32 v{VC1+i}, v{VC1+i-1}, v14")
    a(f"v_lshlrev_b32 v{VC3}, 5, v7")
    a("v_mul_u32_u24 v2, 192, v12")
    a(f"v_add3_u32 v{VC3}, v{VC3}, v2, s30")
    a(f"v_lshl_add_u32 v{VC3}, v6, 1, v{VC3}")
    a(f"v_sub_u32 v{MU}, 63, v1")
    a(f"v_lshrrev_b32 v{EE}, 4, v{MU}")
    a(f"v_min_u32 v{EE}, 2, v{EE}")
    a(f"v_lshlrev_b32 v{GB}, 5, v{MU}")
    a(f"v_lshrrev_b32 v{GB}, v{EE}, v{GB}")
    a(f"v_lshl_add_u32 v{GB}, v{EE}, 8, v{GB}")
    a(f"v_add_u32 v{GB}, s30, v{GB}")
    a(f"v_lshlrev_b32 v{EE}, 3, v{EE}")
    def rne(o, e):
        if e == 0: return o
        return (o + ((1 << (e-1)) - 1) + ((o >> e) & 1)) >> e
    for o in range(17):
        tab = sum((2*rne(o, e)) << (8*e) for e in range(3))
        a(f"s_mov_b32 s35, {tab}")
        a(f"v_bfe_u32 v{GA+o}, s35, v{EE}, 8")
        a(f"v_add_u32 v{GA+o}, v{GA+o}, v{GB}")
    a(f"v_lshl_add_u32 v{MU}, v{MU}, 2, s30")

def gen_kfin(a):
    D = 96
    CP = 64
    a("v_lshl_add_u32 v5, v1, 4, s30")
    a("s_lshl_b32 s28, s6, 3")
    a(f"s_add_u32 s28, s28, {FL_KG}")
    lds_wait(a, "s28", 2, 1, "kf", 2, 60, sleep=1)
    a("v_mov_b32 v22, 0")
    a("s_cmp_lg_u32 s6, 0")
    a("s_cbranch_scc1 L_kf_nv0")
    a(f"global_load_dword v23, v22, {pp(I_DBG)} sc1")
    a.label("L_kf_nv0")
    for i in range(6):
        a(f"ds_read_b128 {vr(D+4*i,4)}, v5 offset:{i*1024}")
    a("s_waitcnt lgkmcnt(0)")
    for i in range(12):
        a(f"v_add_f32 v{D+i}, v{D+i}, v{D+12+i}")
    for i in range(6):
        a(f"v_cvt_pk_bf16_f32 v{CP+i}, v{D+2*i}, v{D+2*i+1}")
    for i in range(4):
        hi = "_d16_hi" if i & 1 else ""
        a(f"ds_write_b16{hi} v{VC0}, v{CP+i//2} offset:{SIDE_C+4*i}")
        a(f"ds_write_b16{hi} v{VC1+i}, v{CP+2+i//2} offset:{SIDE_C+512}")
        a(f"ds_write_b16{hi} v{VC3}, v{CP+4+i//2} offset:{SIDE_C+1024+64*i}")
    E0, O0, E1, O1 = V_EO, V_EO+8, V_EO+16, V_EO+24
    G0 = 72
    a(f"ds_read_b32 v{G0}, v{MU} offset:{SIDE_C+1024}")
    a(f"ds_read_u16 v{G0+1}, v{MU} offset:{SIDE_C+1024+4}")
    for m in range(8):
        a(f"ds_read_u16 v{E1+m}, v{GA+15-2*m} offset:{SIDE_C}")
        a(f"ds_read_u16 v{O1+m}, v{GA+14-2*m} offset:{SIDE_C}")
    a(f"ds_read_u16 v{G0+2}, v{GA+16} offset:{SIDE_C}")
    a("v_mov_b32 v2, 0")
    a("v_mov_b32 v3, 0")
    a("v_lshl_add_u32 v4, v1, 3, s30")
    a(f"ds_write_b64 v4, v[2:3] offset:{SIDE_U}")
    a("s_mov_b32 s28, 0x01000100")
    a("s_mov_b32 s29, 0x03020302")
    a("s_mov_b32 s35, 0x01000302")
    a("s_mov_b32 s33, 0x03020504")
    a("s_waitcnt lgkmcnt(15)")
    a(f"v_perm_b32 v{E0}, v{G0+1}, v{G0+1}, s28")
    a(f"v_perm_b32 v{E0+2}, v{G0}, v{G0}, s29")
    a(f"v_perm_b32 v{E0+6}, v{G0}, v{G0}, s28")
    a(f"v_perm_b32 v{E0+5}, v{G0}, v{G0}, s35")
    a(f"v_perm_b32 v{O0+2}, v{G0+1}, v{G0}, s33")
    for d_, s_ in ((E0+1, E0), (E0+3, E0+2), (E0+4, E0+2), (E0+7, E0+6), (O0, E0), (O0+1, E0), (O0+3, E0+2), (O0+4, E0+2),
                   (O0+5, E0+2), (O0+6, E0+6), (O0+7, E0+6)):
        a(f"v_mov_b32 v{d_}, v{s_}")
    a("s_waitcnt lgkmcnt(0)")
    for m in range(8):
        a(f"v_lshl_or_b32 v{E1+m}, v{O1+m}, 16, v{E1+m}")
    a(f"v_lshl_or_b32 v{O1}, v{E1}, 16, v{G0+2}")
    for m in range(1, 8):
        a(f"v_alignbit_b32 v{O1+m}, v{E1+m}, v{E1+m-1}, 16")
    a(f"v_lshrrev_b32 v8, 16, v{E1+7}")
    for i in range(9, 16):
        a(f"v_mov_b32 v{i}, 0")
    a("s_mul_i32 s29, s6, 8320")
    a(f"s_add_u32 s29, s29, {L2_EO}")
    a("v_lshl_add_u32 v4, v1, 5, s29")
    a("s_cmp_lg_u32 s6, 0")
    a("s_cbranch_scc1 L_kf_nv")
    a("s_waitcnt vmcnt(0)")
    a("v_cmp_eq_u32 vcc, 0, v23")
    a("s_cbranch_vccz L_kf_vok")
    a.spin("L_kf_vpoll", 8)
    a(f"global_load_dword v23, v22, {pp(I_DBG)} sc1")
    a("s_waitcnt vmcnt(0)")
    a("v_cmp_eq_u32 vcc, 0, v23")
    a("s_cbranch_vccnz L_kf_vpoll")
    a.label("L_kf_vok")
    lds_set(a, FL_VALID, 1, 16, 17)
    a.label("L_kf_nv")
    stamp(a, 1)
    a("s_lshr_b32 s29, s7, 6")
    a("s_lshl_b32 s29, s29, 2")
    a("s_and_b32 s28, s2, 3")
    a("s_add_u32 s29, s29, s28")
    a(f"s_mul_i32 s29, s29, {FSTR}")
    a(f"s_add_u32 s29, s29, {WS_FU}")
    a("v_and_b32 v54, 31, v1")
    a("v_lshlrev_b32 v54, 2, v54")
    a("s_lshl_b32 s31, s7, 12")
    a(f"s_add_u32 s31, s31, {WS_UT}")
    a("v_lshlrev_b32 v53, 4, v1")
    for i in range(UTB):
        bar(a)
        if i == 0:
            a("s_cmp_lg_u32 s6, 1")
            a("s_cbranch_scc1 L_kf_np")
            a("v_mov_b32 v21, v4")
            a("s_mov_b32 s34, s29")
            gen_unit_pub(a)
            a("v_mov_b32 v4, v21")
            a("s_mov_b32 s29, s34")
            a.label("L_kf_np")
        if i == W2PFB and "now2pf" not in OPT:
            a("s_mul_i32 s28, s7, 3584")
            a("v_lshlrev_b32 v2, 7, v1")
            a("s_mov_b64 exec, 0xfffffff")
            a(f"buffer_load_dword v3, v2, {S(SRD_W2)}, s28 offen")
            a("s_mov_b64 exec, -1")
    lds_wait(a, FL_VALID, 1, 1, "kfv", 5, 60, sleep=2)
    a(f"buffer_load_dword v55, v54, {S(SRD_WS)}, s29 offen sc1")
    bar(a)
    a("s_waitcnt vmcnt(0)")
    a("v_cmp_ne_u32 s[32:33], 1, v55")
    a("s_nop 2")
    a("s_cmp_lg_u64 s[32:33], 0")
    a("s_cbranch_scc1 L_kf_late")
    a(f"s_add_u32 m0, s30, {SIDE_U+512}")
    a("s_nop 0")
    for i in range(4):
        a(f"buffer_load_dwordx4 v53, {S(SRD_WS)}, s31 offen offset:{i*1024} sc1 lds")
    a.label("L_kf_late")
    for i in range(UTB+1, 9):
        bar(a)
    stamp(a, 2)
    a("s_cmp_lt_u32 s2, 224")
    a("s_cbranch_scc1 L_kf_ring")
    lds_wait(a, FL_KG, 4, 1, "kfring", 17, 60, sleep=2)
    a.label("L_kf_ring")
    for rnd, (E, O) in enumerate(((E0, O0), (E1, O1))):
        for h in range(2):
            a(f"ds_write_b128 v4, {vr(E+4*h,4)} offset:{rnd*2048+16*h}")
            a(f"ds_write_b128 v4, {vr(O+4*h,4)} offset:{EO_O+rnd*2048+16*h}")
    a("s_mov_b32 s28, 0")
    a("s_mov_b32 s29, 0x80000000")
    a("s_mov_b64 exec, s[28:29]")
    a(f"ds_write_b128 v4, v[12:15] offset:{2048+32}")
    a(f"ds_write_b128 v4, v[12:15] offset:{2048+48}")
    a(f"ds_write_b128 v4, v[8:11] offset:{EO_O+2048+32}")
    a(f"ds_write_b128 v4, v[12:15] offset:{EO_O+2048+48}")
    a("s_mov_b64 exec, -1")
    a("s_cmp_eq_u64 s[32:33], 0")
    a("s_cbranch_scc1 L_kf_uok")
    a("s_lshr_b32 s29, s7, 6")
    a("s_lshl_b32 s29, s29, 2")
    a("s_and_b32 s28, s2, 3")
    a("s_add_u32 s29, s29, s28")
    a(f"s_mul_i32 s29, s29, {FSTR}")
    a(f"s_add_u32 s29, s29, {WS_FU}")
    a.spin("L_kf_upoll", 8)
    a(f"buffer_load_dword v55, v54, {S(SRD_WS)}, s29 offen sc1")
    a("s_waitcnt vmcnt(0)")
    a("v_cmp_ne_u32 vcc, 1, v55")
    a("s_cbranch_vccnz L_kf_upoll")
    a(f"s_add_u32 m0, s30, {SIDE_U+512}")
    a("s_nop 0")
    for i in range(4):
        a(f"buffer_load_dwordx4 v53, {S(SRD_WS)}, s31 offen offset:{i*1024} sc1 lds")
    a.label("L_kf_uok")
    a("s_lshl_b32 s28, s6, 2")
    a(f"s_add_u32 s28, s28, {FL_EO}")
    a("s_waitcnt vmcnt(0)")
    lds_set(a, "s28", 1, 16, 17)

def gen_conv(a):
    tag = "cv"
    ACC = 24; FR = 64; AB = 8; UB = 12
    def af(st, aa): return FR + 64*st + 4*aa
    def bf(st, e): return FR + 64*st + 32 + 4*e
    a("v_and_b32 v2, 15, v1")
    a("v_lshrrev_b32 v3, 4, v1")
    a("s_lshl_b32 s32, s33, 8")
    a("s_mul_i32 s29, s6, 8320")
    a(f"s_add_u32 s29, s29, {L2_EO + 4*1016 + EO_O}")
    a("s_sub_u32 s29, s29, s32")
    a("v_add_u32 v4, 1, v2")
    a("v_lshrrev_b32 v4, 1, v4")
    a("v_lshlrev_b32 v5, 2, v3")
    a("v_sub_u32 v5, v5, v4")
    a("v_lshl_add_u32 v5, v5, 2, s29")
    a("v_and_b32 v4, 1, v2")
    a(f"v_mul_u32_u24 v4, {EO_O}, v4")
    a("v_sub_u32 v5, v5, v4")
    for b in range(4):
        a(f"v_subrev_u32 v{AB+b}, {512*(2*b+1)}, v5")
    a("v_lshlrev_b32 v4, 5, v2")
    a("v_lshl_add_u32 v4, v3, 4, v4")
    a(f"s_add_u32 s28, s30, {SIDE_U + 480}")
    a("s_sub_u32 s28, s28, s32")
    a(f"v_add_u32 v{UB}, s28, v4")
    for i in range(32):
        a(f"v_mov_b32 v{ACC+i}, 0")
    def reads(st):
        r = []
        for x in range(8):
            o = 128 if x % 2 == 0 else 0
            r.append(f"ds_read2_b32 {vr(af(st,x),2)}, v{AB+x//2} offset0:{o} offset1:{o+1}")
            r.append(f"ds_read2_b32 {vr(af(st,x)+2,2)}, v{AB+x//2} offset0:{o+2} offset1:{o+3}")
            r.append(f"ds_read_b128 {vr(bf(st,x),4)}, v{UB} offset:{512*x}")
        return r
    def adv():
        r = [f"v_subrev_u32 v{AB+b}, 64, v{AB+b}" for b in range(4)]
        r.append(f"v_subrev_u32 v{UB}, 64, v{UB}")
        return r
    def mf(st):
        r = []
        for aa in range(8):
            for e in range(8 - aa):
                d = ACC + 4*(aa+e)
                r.append(f"v_mfma_f32_16x16x32_bf16 {vr(d,4)}, {vr(af(st,aa),4)}, {vr(bf(st,e),4)}, {vr(d,4)}")
        return r
    for r in reads(0): a(r)
    for r in adv(): a(r)
    if "convearly" not in OPT:
        a("s_lshl_b32 s28, s3, 2")
        a(f"s_add_u32 s28, s28, {FL_FREE - 16}")
        lds_wait(a, "s28", 1, 1, tag+"e", 16, 18, sleep=2)
    stamp(a, 4)
    a("s_mov_b32 s28, 2")
    a.label(f"L_{tag}_loop")
    for st in range(2):
        a("s_waitcnt lgkmcnt(0)")
        M = mf(st); R = reads(1-st) + adv()
        for i, m in enumerate(M):
            a(m)
            if R: a(R.pop(0))
        assert not R
    a("s_sub_u32 s28, s28, 1")
    a("s_cmp_lg_u32 s28, 0")
    a(f"s_cbranch_scc1 L_{tag}_loop")
    stamp(a, 5)
    a(f"s_add_u32 s28, s30, {SIDE_XA}")
    a("s_lshl_b32 s29, s6, 11")
    a(f"s_add_u32 s29, s29, {L2_XB}")
    a("s_cmp_eq_u32 s33, 0")
    a("s_cselect_b32 s34, s28, s29")
    a("s_cselect_b32 s35, s29, s28")
    a("v_lshl_add_u32 v13, v1, 4, s34")
    a("v_lshl_add_u32 v14, v1, 4, s35")
    a("s_lshl_b32 s28, s6, 3")
    a("s_lshl_b32 s29, s33, 2")
    a("s_add_u32 s28, s28, s29")
    a(f"s_add_u32 s28, s28, {FL_X}")
    a("s_xor_b32 s29, s28, 4")
    a("v_lshlrev_b32 v4, 5, v2")
    a("v_lshl_add_u32 v4, v3, 3, v4")
    a("s_lshl_b32 s32, s33, 11")
    a(f"s_add_u32 s34, s30, {SIDE_U + 512}")
    a("s_add_u32 s34, s34, s32")
    a("v_add_u32 v5, s34, v4")
    a("s_waitcnt lgkmcnt(0)")
    UU = 64; PKX = 72; RX = 80
    for ti in range(4):
        a(f"ds_read_b64 {vr(UU+2*ti,2)}, v5 offset:{512*ti}")
    a("s_cmp_eq_u32 s33, 0")
    a("s_cbranch_scc1 L_cv_t0")
    for i in range(8):
        a(f"v_cvt_pk_bf16_f32 v{PKX+i}, v{ACC+2*i}, v{ACC+2*i+1}")
    for i in range(16):
        a(f"v_mov_b32 v{ACC+i}, v{ACC+16+i}")
    a("s_branch L_cv_t1")
    a.label("L_cv_t0")
    for i in range(8):
        a(f"v_cvt_pk_bf16_f32 v{PKX+i}, v{ACC+16+2*i}, v{ACC+16+2*i+1}")
    a.label("L_cv_t1")
    a(f"ds_write_b128 v13, {vr(PKX,4)}")
    a(f"ds_write_b128 v13, {vr(PKX+4,4)} offset:1024")
    lds_set(a, "s28", 1, 16, 17)
    a("s_mov_b32 s31, 0xffff0000")
    a(f"v_lshlrev_b32 v{V_DSK}, 16, v{V_DSK}")
    a("v_lshlrev_b32 v6, 5, v2")
    a("v_lshrrev_b32 v7, 1, v3")
    a("v_lshl_add_u32 v6, v7, 4, v6")
    a("v_and_b32 v7, 1, v3")
    a("v_lshl_add_u32 v6, v7, 9, v6")
    a("s_waitcnt lgkmcnt(3)")
    X = 90
    for ti in range(4):
        for h in range(2):
            a(f"v_lshlrev_b32 v{X}, 16, v{UU+2*ti+h}")
            a(f"v_and_b32 v{X+1}, s31, v{UU+2*ti+h}")
            a(f"v_fmac_f32 v{ACC+4*ti+2*h}, v{X}, v{V_DSK}")
            a(f"v_fmac_f32 v{ACC+4*ti+2*h+1}, v{X+1}, v{V_DSK}")
    lds_wait(a, "s29", 1, 1, "cvx", 16, 18, sleep=0)
    a(f"ds_read_b128 {vr(RX,4)}, v14")
    a(f"ds_read_b128 {vr(RX+4,4)}, v14 offset:1024")
    a("s_lshl_b32 s28, s7, 12")
    a("s_add_u32 s28, s28, s32")
    a(f"s_add_u32 s28, s28, {WS_A}")
    a("s_waitcnt lgkmcnt(0)")
    for i in range(8):
        a(f"v_lshlrev_b32 v{X}, 16, v{RX+i}")
        a(f"v_and_b32 v{X+1}, s31, v{RX+i}")
        a(f"v_add_f32 v{ACC+2*i}, v{ACC+2*i}, v{X}")
        a(f"v_add_f32 v{ACC+2*i+1}, v{ACC+2*i+1}, v{X+1}")
    P = 96
    for pr in range(2):
        t1, t2 = 2*pr, 2*pr+1
        p = P + 4*pr
        a(f"v_cvt_pk_bf16_f32 v{p}, v{ACC+4*t1}, v{ACC+4*t1+1}")
        a(f"v_cvt_pk_bf16_f32 v{p+1}, v{ACC+4*t1+2}, v{ACC+4*t1+3}")
        a(f"v_cvt_pk_bf16_f32 v{p+2}, v{ACC+4*t2}, v{ACC+4*t2+1}")
        a(f"v_cvt_pk_bf16_f32 v{p+3}, v{ACC+4*t2+2}, v{ACC+4*t2+3}")
        a("s_nop 1")
        a(f"v_permlane16_swap_b32 v{p}, v{p+2}")
        a(f"v_permlane16_swap_b32 v{p+1}, v{p+3}")
        a(f"buffer_store_dwordx4 {vr(p,4)}, v6, {S(SRD_WS)}, s28 offen offset:{1024*pr} sc1")
    stamp(a, 6)
    a("s_lshr_b32 s28, s7, 6")
    a(f"s_mul_i32 s28, s28, {FSTR}")
    a("s_and_b32 s29, s7, 63")
    a("s_lshl_b32 s29, s29, 2")
    a("s_add_u32 s28, s28, s29")
    a("s_lshl_b32 s29, s33, 8")
    a("s_add_u32 s28, s28, s29")
    a(f"s_add_u32 s28, s28, {WS_FA}")
    a("s_waitcnt vmcnt(0)")
    publish(a, "s28", 3, 4)

def w2_voffs(a, V):
    a("v_lshrrev_b32 v2, 3, v1")
    a("v_and_b32 v3, 7, v1")
    a("v_bfe_u32 v4, v1, 4, 2")
    a("v_lshlrev_b32 v4, 1, v4")
    a("v_xor_b32 v3, v3, v4")
    a("v_lshlrev_b32 v2, 10, v2")
    a(f"v_lshl_add_u32 v{V}, v3, 4, v2")
    for k in range(1, 4):
        a(f"v_add_u32 v{V+k}, {k*7168}, v{V}")

def g2_map(a):
    a("s_bfe_u32 s4, s2, 0x20001")
    a("s_and_b32 s28, s2, 1")
    a("s_xor_b32 s28, s28, 1")
    a("s_lshl_b32 s28, s28, 2")
    a("s_add_u32 s4, s4, s28")
    a("s_lshl_b32 s4, s4, 2")
    a("s_lshr_b32 s5, s2, 3")
    a("s_and_b32 s28, s5, 3")
    a("s_add_u32 s4, s4, s28")
    a("s_lshr_b32 s5, s5, 2")

def gen_w2pre(a):
    V = 8
    a("s_lshl_b32 s7, s2, 1")
    a("s_add_u32 s7, s7, s6")
    a("s_lshl_b32 s28, s7, 1")
    a("v_mov_b32 v3, s28")
    a(f"global_load_ushort v{V_DSK}, v3, {pp(I_DSK)}")
    g2_map(a)
    w2_voffs(a, V)
    a("s_lshl_b32 s28, s6, 16")
    a("s_lshl_b32 s29, s5, 7")
    a("s_add_u32 s28, s28, s29")
    a("s_lshl_b32 s29, s6, 12")
    a(f"s_add_u32 s29, s29, {L2_W2}")
    a(f"v_mov_b32 v18, {FL_VALID}")
    a("v_mov_b32 v16, 0")
    a("v_mov_b32 v17, 1")
    a("s_mov_b32 s33, 0")
    a.label("L_w2_part")
    a("s_cmp_eq_u32 s33, 2")
    a("s_cselect_b32 s31, 2, 6")
    a.label("L_w2_loop")
    a("s_mov_b32 m0, s29")
    a("s_add_u32 s29, s29, 8192")
    for k in range(4):
        a(f"buffer_load_dwordx4 v{V+k}, {S(SRD_W2)}, s28 offen offset:{k*1024} lds")
    a("s_add_u32 s28, s28, 131072")
    a("s_sub_u32 s31, s31, 1")
    a("s_cmp_lg_u32 s31, 0")
    a("s_cbranch_scc1 L_w2_loop")
    a("s_add_u32 s33, s33, 1")
    a("s_cmp_eq_u32 s33, 3")
    a("s_cbranch_scc1 L_w2_done")
    a("s_waitcnt vmcnt(24)")
    bar(a)
    a("s_branch L_w2_part")
    a.label("L_w2_done")
    a("s_lshl_b32 s28, s6, 2")
    a(f"s_add_u32 s29, s28, {FL_W2}")
    a(f"s_add_u32 s28, s28, {FL_EO}")
    a("s_lshl_b32 s30, s6, 13")
    a(f"s_add_u32 s30, s30, {L_SIDE}")
    a("s_waitcnt vmcnt(0)")
    lds_set(a, "s29", 1, 21, 22)
    lds_wait(a, "s28", 1, 1, "w2eo", 17, 22, sleep=2)
W2P1 = 5
RPRE = 3
PFDELAY = 0
W2PFB = 2
UTB = 5
VSLEEP = 32

def gen_g2(a):
    ACC = 192; HF = 32; WF = 80; VW2 = 8; VH = 12; WA = 16
    HD = 3
    HSC = "" if "nosc1ld" in OPT else " sc1"
    def acc(nu, m): return ACC + 4*(nu*4+m)
    def hf(n, m): return HF + 16*(n % HD) + 4*m
    def wf(i, nu): return WF + 16*i + 4*nu
    def gs(i):
        if "g2st" in OPT: stamp(a, i, "any")
    g2_map(a)
    a("v_bfe_u32 v2, v1, 2, 2")
    a("v_and_b32 v3, 3, v1")
    a("v_lshrrev_b32 v4, 4, v1")
    a("v_lshl_add_u32 v6, v4, 2, v2")
    a("v_lshlrev_b32 v6, 7, v6")
    a("v_lshl_add_u32 v6, v3, 3, v6")
    a(f"s_mul_i32 s29, s3, 28672")
    a(f"s_add_u32 s29, s29, {L2_W2}")
    a("v_add_u32 v6, s29, v6")
    a("v_lshrrev_b32 v7, 1, v2")
    a("v_and_b32 v4, 1, v4")
    a("v_lshl_or_b32 v7, v4, 1, v7")
    for nu in range(4):
        a(f"v_xor_b32 v5, {nu}, v7")
        a(f"v_lshl_add_u32 v{WA+nu}, v5, 5, v6")
    lds_wait(a, FL_W2, 2, 1, "g2w2", 2, 4, sleep=1)
    gs(0)
    def trreads(i):
        for nu in range(4):
            for h in range(2):
                a(f"ds_read_b64_tr_b16 {vr(wf(i,nu)+2*h,2)}, v{WA+nu} offset:{i*4096+h*2048}")
    for i in range(7): trreads(i)
    w2_voffs(a, VW2)
    a(f"v_lshlrev_b32 v{VH}, 4, v1")
    for m in range(1, 4):
        a(f"v_add_u32 v{VH+m}, {m*57344}, v{VH}")
    a(f"s_mul_i32 s30, s4, {4*57344}")
    a(f"s_mul_i32 s31, s3, {14*1024}")
    a("s_add_u32 s30, s30, s31")
    a(f"s_mul_i32 s31, s3, {14*32768}")
    a("s_lshl_b32 s33, s5, 7")
    a("s_add_u32 s31, s31, s33")
    a("s_add_u32 s31, s31, 32768")
    a(f"s_mul_i32 s32, s4, {FSTR}")
    a("s_mul_i32 s33, s3, 28")
    a("s_add_u32 s32, s32, s33")
    a(f"s_add_u32 s32, s32, {WS_FH}")
    a(f"s_add_u32 s34, s32, {32*FSTR}")
    a("v_min_u32 v22, 6, v1")
    a("v_lshlrev_b32 v22, 2, v22")
    a("s_mul_i32 s33, s3, 24")
    a("s_sub_u32 s33, 112, s33")
    a("v_mov_b32 v25, s33")
    a("v_cmp_gt_u32 vcc, 7, v1")
    a("s_nop 1")
    a("v_cndmask_b32 v25, v25, v22, vcc")
    a("s_waitcnt vmcnt(0)")
    a("s_cmp_eq_u32 s35, 0")
    a("s_cbranch_scc1 L_g2_nopub")
    publish(a, "s35", 3, 4)
    a.label("L_g2_nopub")
    stamp(a, 5)
    gs(1)
    vm = VM(a)
    vm.q = ["pub"]
    def pollop(reg, soff, tag):
        va = 25 if tag == "fb" else 22
        vm.op(f"buffer_load_dword v{reg}, v{va}, {S(SRD_WS)}, {soff} offen sc1", tag)
    def pollchk(reg, soff, tag, sleep):
        va = 25 if tag == "fb" else 22
        vm.wait(tag)
        a(f"v_cmp_ne_u32 vcc, 1, v{reg}")
        a(f"s_cbranch_vccz L_g2_{tag}_ok")
        a.spin(f"L_g2_{tag}", sleep)
        a(f"buffer_load_dword v{reg}, v{va}, {S(SRD_WS)}, {soff} offen sc1")
        a("s_waitcnt vmcnt(0)")
        a(f"v_cmp_ne_u32 vcc, 1, v{reg}")
        a(f"s_cbranch_vccnz L_g2_{tag}")
        a.label(f"L_g2_{tag}_ok")
    def refill(i):
        a(f"s_add_u32 m0, s29, {i*4096}")
        a("s_nop 0")
        for k in range(4):
            vm.op(f"buffer_load_dwordx4 v{VW2+k}, {S(SRD_W2)}, s31 offen offset:{k*1024} lds", f"w_{i}")
        a("s_add_u32 s31, s31, 65536")
    def hload(n):
        for m in range(4):
            vm.op(f"buffer_load_dwordx4 {vr(hf(n,m),4)}, v{VH+m}, {S(SRD_WS)}, s30 offen{HSC}", f"h_{n}")
        if n == 6: a(f"s_sub_u32 s30, s30, {6*2048 - 1024}")
        else: a("s_add_u32 s30, s30, 2048")
    a("s_waitcnt lgkmcnt(0)")
    refill(0)
    pollop(23, "s32", "fa")
    for i in range(1, RPRE): refill(i)
    pollchk(23, "s32", "fa", 2)
    stamp(a, 6)
    gs(2)
    for n in range(HD): hload(n)
    nref = RPRE
    for n in range(14):
        i = n % 7
        if n >= 6 and n < 13:
            vm.wait(f"w_{(n+1)%7}")
            trreads((n+1) % 7)
        vm.wait(f"h_{n}")
        if n >= 7:
            a(f"s_waitcnt lgkmcnt({8 if n < 13 else 0})")
        for nu in range(4):
            for m in range(4):
                d = acc(nu, m)
                c = "0" if n == 0 else vr(d, 4)
                a(f"v_mfma_f32_16x16x32_bf16 {vr(d,4)}, {vr(wf(i,nu),4)}, {vr(hf(n,m),4)}, {c}")
        if n == 0: gs(3)
        if n == 6: gs(4)
        if n + HD == 7 - 2: pollop(24, "s34", "fb")
        if n + HD == 7: pollchk(24, "s34", "fb", 1)
        if n + HD < 14: hload(n + HD)
        if nref < 7:
            refill(nref); nref += 1
        if n == 7:
            a("s_lshl_b32 s33, s3, 6")
            a(f"s_mul_i32 s32, s5, {FSTR}")
            a("s_add_u32 s32, s32, s33")
            a("s_lshr_b32 s33, s4, 4")
            a("s_lshl_b32 s33, s33, 8")
            a("s_add_u32 s32, s32, s33")
            a(f"s_add_u32 s32, s32, {WS_FA}")
            a("v_and_b32 v22, 15, v1")
            a("v_lshlrev_b32 v22, 2, v22")
            a("v_lshrrev_b32 v2, 3, v1")
            a("v_and_b32 v3, 7, v1")
            a("v_bfe_u32 v4, v1, 4, 2")
            a("v_lshlrev_b32 v4, 1, v4")
            a("v_xor_b32 v3, v3, v4")
            a("v_lshlrev_b32 v2, 12, v2")
            a("v_lshl_add_u32 v26, v3, 4, v2")
            a(f"v_add_u32 v27, {8*4096-1024}, v26")
            a("v_and_b32 v28, 15, v1")
            a("v_lshlrev_b32 v28, 3, v28")
            a("s_lshl_b32 s34, s5, 18")
            a("s_lshl_b32 s33, s3, 16")
            a("s_add_u32 s34, s34, s33")
            a("s_lshl_b32 s33, s4, 7")
            a("s_add_u32 s34, s34, s33")
            a(f"s_add_u32 s34, s34, {WS_A}")
            a("s_lshl_b32 s31, s4, 9")
            a("s_lshl_b32 s33, s3, 7")
            a("s_add_u32 s31, s31, s33")
            a(f"s_add_u32 s31, s31, {WS_G}")
            vm.op(f"buffer_load_dwordx2 v[20:21], v28, {S(SRD_WS)}, s31 offen sc1", "g")
        if n == 10:
            pollop(23, "s32", "fc")
            gs(5)
    gs(6)
    stamp(a, 7)
    pollchk(23, "s32", "fc", 6)
    a("s_lshl_b32 s33, s3, 11")
    a(f"s_add_u32 m0, s33, {L2_AT}")
    a("s_nop 0")
    a(f"buffer_load_dwordx4 v26, {S(SRD_WS)}, s34 offen sc1 lds")
    a(f"buffer_load_dwordx4 v27, {S(SRD_WS)}, s34 offen offset:1024 sc1 lds")
    a("s_nop 3")
    a("v_lshl_add_u32 v5, v1, 4, s29")
    for m in range(4):
        for nu in range(4):
            a(f"ds_write_b128 v5, {vr(acc(nu,m),4)} offset:{(m*4+nu)*1024}")
    a("s_lshl_b32 s33, s3, 12")
    a(f"s_add_u32 s33, s33, {L2_W2}")
    a("v_lshl_add_u32 v6, v1, 4, s33")
    a(f"v_add_u32 v7, {2*28672}, v6")
    a("v_bfe_u32 v2, v1, 2, 2")
    a("v_and_b32 v3, 3, v1")
    a("v_lshrrev_b32 v4, 4, v1")
    a("v_lshl_add_u32 v8, v4, 2, v2")
    a("v_lshlrev_b32 v8, 7, v8")
    a("v_lshl_add_u32 v8, v3, 3, v8")
    a("v_lshrrev_b32 v9, 1, v2")
    a("v_and_b32 v4, 1, v4")
    a("v_lshl_or_b32 v9, v4, 1, v9")
    a("v_xor_b32 v9, s3, v9")
    a("v_lshl_add_u32 v8, v9, 5, v8")
    a(f"v_add_u32 v8, {L2_AT}, v8")
    a("s_mov_b32 s31, 0xffff0000")
    a("v_and_b32 v2, 15, v1")
    a("v_lshlrev_b32 v2, 10, v2")
    a("v_lshrrev_b32 v3, 4, v1")
    a("v_lshl_add_u32 v2, v3, 4, v2")
    a("s_lshl_b32 s32, s4, 16")
    a("s_lshl_b32 s33, s3, 14")
    a("s_add_u32 s32, s32, s33")
    a("s_lshl_b32 s33, s5, 7")
    a("s_add_u32 s32, s32, s33")
    a("s_waitcnt vmcnt(0) lgkmcnt(0)")
    gs(7)
    a("s_barrier")
    R = 64
    for ww in range(4):
        for nu in range(4):
            a(f"ds_read_b128 {vr(R+16*ww+4*nu,4)}, v{6 + ww//2} offset:{(ww%2)*28672 + nu*1024}")
    AT = 32
    for nu in range(4):
        a(f"ds_read_b64_tr_b16 {vr(AT+2*nu,2)}, v8 offset:{nu*2048}")
    a("s_waitcnt lgkmcnt(12)")
    for i in range(0, 16, 2):
        a(f"v_pk_add_f32 {vr(R+i,2)}, {vr(R+i,2)}, {vr(R+16+i,2)}")
    a("s_waitcnt lgkmcnt(4)")
    for i in range(0, 16, 2):
        a(f"v_pk_add_f32 {vr(R+32+i,2)}, {vr(R+32+i,2)}, {vr(R+48+i,2)}")
    for i in range(0, 16, 2):
        a(f"v_pk_add_f32 {vr(R+i,2)}, {vr(R+i,2)}, {vr(R+32+i,2)}")
    for i in range(0, 16, 2):
        a(f"v_pk_mul_f32 {vr(R+i,2)}, {vr(R+i,2)}, v[20:21] op_sel:[0,1] op_sel_hi:[1,1]")
    a("s_waitcnt lgkmcnt(0)")
    for i in range(8):
        a(f"v_lshlrev_b32 v40, 16, v{AT+i}")
        a(f"v_and_b32 v41, s31, v{AT+i}")
        a(f"v_fmac_f32 v{R+2*i}, v40, v20")
        a(f"v_fmac_f32 v{R+2*i+1}, v41, v20")
    P = 44
    for pr in range(2):
        p = P + 4*pr
        n0, n1 = 2*pr, 2*pr+1
        a(f"v_cvt_pk_bf16_f32 v{p}, v{R+4*n0}, v{R+4*n0+1}")
        a(f"v_cvt_pk_bf16_f32 v{p+1}, v{R+4*n0+2}, v{R+4*n0+3}")
        a(f"v_cvt_pk_bf16_f32 v{p+2}, v{R+4*n1}, v{R+4*n1+1}")
        a(f"v_cvt_pk_bf16_f32 v{p+3}, v{R+4*n1+2}, v{R+4*n1+3}")
        a("s_nop 1")
        a(f"v_permlane32_swap_b32 v{p}, v{p+2}")
        a(f"v_permlane32_swap_b32 v{p+1}, v{p+3}")
        a("s_nop 1")
        a(f"v_permlane16_swap_b32 v{p}, v{p+2}")
        a(f"v_permlane16_swap_b32 v{p+1}, v{p+3}")
        a(f"buffer_store_dwordx4 {vr(p,4)}, v2, {S(SRD_OUT)}, s32 offen offset:{64*pr}")

TRX = 128
GW = 192
def gen_tr_loads(a):
    a("s_sub_u32 s24, s2, 224")
    a("s_lshl_b32 s25, s24, 2")
    a("s_add_u32 s25, s25, s3")
    a("s_lshl_b32 s28, s25, 14")
    a("v_lshlrev_b32 v9, 4, v1")
    for r in range(16):
        a(f"buffer_load_dwordx4 {vr(TRX+4*r,4)}, v9, {S(SRD_X)}, s28 offen offset:{(r%4)*1024}")
        if r % 4 == 3: a("s_add_u32 s28, s28, 4096")
    a(f"global_load_dwordx4 {vr(GW,4)}, v9, {pp(I_GW)}")
    return 17

def gen_transpose(a):
    X = TRX
    a("s_mov_b32 s6, s24")
    a("s_mov_b32 s7, s25")
    srd(a, SRD_OUT, ptr(I_OUT), 2048*512*2)
    a("v_lshrrev_b32 v5, 4, v1")
    a("s_mov_b32 s31, 0xffff0000")
    a("s_waitcnt vmcnt(0)")
    for i in range(4):
        a(f"v_lshlrev_b32 v{20+2*i}, 16, v{GW+i}")
        a(f"v_and_b32 v{21+2*i}, s31, v{GW+i}")
    SS = 64
    def grow(r):
        T = 32 + 8*(r & 1)
        for i in range(4):
            a(f"v_lshlrev_b32 v{T+2*i}, 16, v{X+4*r+i}")
            a(f"v_and_b32 v{T+2*i+1}, s31, v{X+4*r+i}")
        for i in range(4):
            a(f"v_pk_mul_f32 {vr(T+2*i,2)}, {vr(T+2*i,2)}, {vr(20+2*i,2)}")
        for i in range(4):
            a(f"v_cvt_pk_bf16_f32 v{T+2*i}, v{T+2*i}, v{T+2*i+1}")
        for i in range(4):
            a(f"v_and_b32 v{T+2*i+1}, s31, v{T+2*i}")
            a(f"v_lshlrev_b32 v{T+2*i}, 16, v{T+2*i}")
        a(f"v_pk_add_f32 {vr(T,2)}, {vr(T,2)}, {vr(T+2,2)}")
        a(f"v_pk_add_f32 {vr(T+4,2)}, {vr(T+4,2)}, {vr(T+6,2)}")
        a(f"v_pk_add_f32 {vr(T,2)}, {vr(T,2)}, {vr(T+4,2)}")
        a(f"v_add_f32 v{SS+r}, v{T}, v{T+1}")
    for r in range(16): grow(r)
    a("s_nop 1")
    for i in range(8):
        a(f"v_permlane32_swap_b32 v{SS+i}, v{SS+8+i}")
    for i in range(8):
        a(f"v_add_f32 v{SS+i}, v{SS+i}, v{SS+8+i}")
    a("s_nop 1")
    for i in range(4):
        a(f"v_permlane16_swap_b32 v{SS+i}, v{SS+4+i}")
    for i in range(4):
        a(f"v_add_f32 v{SS+i}, v{SS+i}, v{SS+4+i}")
    for sh in (8, 4, 2, 1):
        a("s_nop 0")
        for i in range(4):
            a(f"v_add_f32_dpp v{SS+i}, v{SS+i}, v{SS+i} row_ror:{sh} row_mask:0xf bank_mask:0xf")
    a("v_and_b32 v7, 3, v1")
    for i in range(1, 4):
        a(f"v_cmp_eq_u32 vcc, {i}, v7")
        a("s_nop 1")
        a(f"v_cndmask_b32 v{SS}, v{SS}, v{SS+i}, vcc")
    a(f"v_cvt_pk_bf16_f32 v{SS}, v{SS}, v{SS}")
    a(f"v_and_b32 v{SS}, s31, v{SS}")
    a(f"v_mul_f32 v{SS}, {f2u(-LOG2E)}, v{SS}")
    a(f"v_exp_f32 v{SS}, v{SS}")
    a("s_nop 0")
    a(f"v_add_f32 v{SS}, 1.0, v{SS}")
    a(f"v_rcp_f32 v{SS}, v{SS}")
    a("s_nop 0")
    a(f"v_cvt_pk_bf16_f32 v{SS}, v{SS}, v{SS}")
    a(f"v_and_b32 v{SS}, s31, v{SS}")
    a(f"v_sub_f32 v{SS+1}, 1.0, v{SS}")
    a(f"v_cvt_pk_bf16_f32 v{SS+1}, v{SS+1}, v{SS+1}")
    a(f"v_and_b32 v{SS+1}, s31, v{SS+1}")
    a("v_lshl_add_u32 v7, v5, 2, v7")
    a("v_lshlrev_b32 v7, 3, v7")
    a("s_lshl_b32 s28, s7, 7")
    a(f"s_add_u32 s28, s28, {WS_G}")
    a("s_mov_b32 s34, 0x000f000f")
    a("s_mov_b32 s35, 0x000f000f")
    a("s_mov_b64 exec, s[34:35]")
    a(f"buffer_store_dwordx2 {vr(SS,2)}, v7, {S(SRD_WS)}, s28 offen sc1")
    a("s_mov_b64 exec, -1")
    a("s_waitcnt vmcnt(0)")
    stamp(a, 4)

def gen_kernel(a):
    a.raw(f".globl {KNAME}\n.p2align 8\n.type {KNAME},@function")
    a.label(KNAME)
    a(f"s_load_dwordx16 s[{P0}:{P0+15}], s[0:1], 0")
    a(f"s_load_dwordx16 s[{P0+16}:{P0+31}], s[0:1], 64")
    a(f"s_load_dwordx2 s[{P0+32}:{P0+33}], s[0:1], 128")
    a("s_cmp_ge_u32 s2, 256")
    a("s_cbranch_scc1 L_end")
    if "stamps" in OPT:
        a(f"s_memtime s[{ST0}:{ST0+1}]")
        a(f"s_memrealtime s[{ST0+2}:{ST0+3}]")
    if "nopf" not in OPT:
        a("s_getpc_b64 s[6:7]")
        a.label("L_pc0")
        a("v_lshlrev_b32 v1, 6, v0")
        a("v_min_u32 v1, L_codeend-L_pc0, v1")
        a("global_load_dword v31, v1, s[6:7]")
    a("v_lshrrev_b32 v2, 6, v0")
    a("v_and_b32 v1, 63, v0")
    a("v_readfirstlane_b32 s3, v2")
    a("s_and_b32 s6, s2, 7")
    a("s_lshr_b32 s7, s2, 3")
    a("s_and_b32 s4, s6, 1")
    a("s_lshl_b32 s4, s4, 2")
    a("s_and_b32 s30, s7, 3")
    a("s_add_u32 s4, s4, s30")
    a("s_lshr_b32 s5, s6, 1")
    a("s_mul_i32 s5, s5, 7")
    a("s_lshr_b32 s30, s7, 2")
    a("s_add_u32 s5, s5, s30")
    def common_srds():
        a("s_mov_b32 s0, 0x100000")
        srd(a, SRD_X, ptr(I_U), 2048*512*2)
        srd(a, SRD_W1, ptr(I_W1), 512*1792*2)
        srd(a, SRD_WS, ptr(I_WS), WS_SIZE)
        srd(a, SRD_W2, ptr(I_W2), 1792*512*2)
        srd(a, SRD_OUT, ptr(I_OUT), 2048*512*2)
    a("s_cmp_lt_u32 s3, 4")
    a("s_cbranch_scc1 L_w03")
    a("s_cmp_ge_u32 s3, 6")
    a("s_cbranch_scc1 L_kfin")
    a("s_cmp_lg_u32 s3, 4")
    a("s_cbranch_scc1 L_noinit")
    a("v_mov_b32 v3, 0")
    a(f"v_mov_b32 v4, {FLB}")
    a("v_lshl_add_u32 v4, v1, 2, v4")
    a("ds_write_b32 v4, v3")
    a.label("L_noinit")
    gen_loader_setup(a)
    a("s_waitcnt lgkmcnt(0)")
    common_srds()
    a("s_barrier")
    a("s_cmp_ge_u32 s2, 224")
    a("s_cbranch_scc1 L_spare45")
    gen_loader(a)
    a.label("L_ph2_loader")
    gen_w2pre(a)
    stamp(a, 2)
    stamp(a, 3)
    a("s_mov_b32 s33, 1")
    a("s_branch L_conv")
    a.label("L_w03")
    gen_ktab_addr(a)
    a("v_lshrrev_b32 v21, 3, v1")
    a(f"v_mul_u32_u24 v21, {64*3584}, v21")
    a("v_and_b32 v22, 7, v1")
    a("v_lshl_add_u32 v21, v22, 7, v21")
    a("s_lshr_b32 s32, s3, 1")
    a("s_mul_i32 s32, s32, 3")
    a("s_add_u32 s32, s32, 2")
    a(f"s_mul_i32 s32, s32, {64*3584}")
    a("s_lshl_b32 s33, s2, 10")
    a("s_add_u32 s32, s32, s33")
    a("s_waitcnt lgkmcnt(0)")
    gen_ktab_loads(a)
    a("s_barrier")
    stamp(a, 1, "kst")
    common_srds()
    a("s_cmp_ge_u32 s2, 224")
    a("s_cbranch_scc1 L_tr")
    gen_g1_setup(a)
    a("s_bitcmp1_b32 s3, 0")
    a(f"s_cselect_b32 s{SRD_W1}, s{ptr(I_W3)}, s{ptr(I_W1)}")
    a(f"s_cselect_b32 s{SRD_W1+1}, s{ptr(I_W3)+1}, s{ptr(I_W1)+1}")
    a(f"s_and_b32 s{SRD_W1+1}, s{SRD_W1+1}, 0xffff")
    a("s_mov_b64 exec, 0xffffff")
    a(f"buffer_load_dword v23, v21, {S(SRD_W1)}, s32 offen")
    a("s_mov_b64 exec, -1")
    stamp(a, 2, "kst")
    a.label("L_kt")
    gen_ktab(a, 17)
    a("s_cmp_ge_u32 s2, 224")
    a("s_cbranch_scc1 L_tr_post")
    G1G2[0] = True
    gen_g1(a)
    a.label("L_g2")
    gen_g2(a)
    if "stamps" in OPT:
        a("s_waitcnt vmcnt(0)")
        stamp(a, 1)
    G1G2[0] = False
    amp = [o for o in OPT if o.startswith("amp")]
    if amp:
        i, j = int(amp[0][3]), int(amp[0][4])
        a("s_cmp_lg_u32 s2, 100")
        a("s_cbranch_scc1 L_ampskip")
        a("s_cmp_lg_u32 s3, 0")
        a("s_cbranch_scc1 L_ampskip")
        a(f"s_sub_u32 s28, s{ST0+2+4*j}, s{ST0+2+4*i}")
        a("s_lshl_b32 s28, s28, 3")
        a("s_min_u32 s28, s28, 100000")
        a.label("L_amp")
        a("s_memrealtime s[30:31]")
        a("s_waitcnt lgkmcnt(0)")
        a(f"s_sub_u32 s29, s30, s{ST0+2+4*1}")
        a("s_cmp_lt_u32 s29, s28")
        a("s_cbranch_scc1 L_amp")
        a.label("L_ampskip")
    else:
        stamp_flush(a, 8)
    a("s_endpgm")
    a.label("L_tr")
    gen_tr_loads(a)
    a("s_branch L_kt")
    a.label("L_tr_post")
    gen_transpose(a)
    a("s_lshl_b32 s28, s3, 2")
    a(f"s_add_u32 s28, s28, {FL_FREE}")
    lds_set(a, "s28", 1, 8, 10)
    lds_wait(a, FL_VALID, 1, 1, "trv", 3, 4, sleep=4)
    a(f"s_mul_i32 s35, s6, {FSTR}")
    a("s_lshl_b32 s28, s3, 2")
    a("s_add_u32 s35, s35, s28")
    a(f"s_add_u32 s35, s35, {WS_FH + 32*FSTR + 112}")
    publish(a, "s35", 3, 4)
    a("s_mov_b32 s35, 0")
    a("s_branch L_g2")
    a.label("L_spare45")
    a("s_sub_u32 s6, s3, 4")
    a("s_cmp_lg_u32 s2, 255")
    a("s_cbranch_scc1 L_sp_bar")
    a("s_cmp_lg_u32 s3, 4")
    a("s_cbranch_scc1 L_sp_bar")
    for i in range(4):
        a(f"v_mov_b32 v{4+i}, 0")
    a("v_lshrrev_b32 v2, 3, v1")
    a(f"v_mul_u32_u24 v2, {FSTR}, v2")
    a("v_and_b32 v3, 7, v1")
    a("v_lshl_add_u32 v2, v3, 4, v2")
    a(f"s_mov_b32 s28, {WS_FH}")
    for i in range(12):
        a(f"buffer_store_dwordx4 v[4:7], v2, {S(SRD_WS)}, s28 offen sc1")
        a(f"s_add_u32 s28, s28, {8*FSTR}")
    a(f"s_mov_b32 s28, {WS_FA}")
    for i in range(4):
        a(f"buffer_store_dwordx4 v[4:7], v2, {S(SRD_WS)}, s28 offen offset:{i*128} sc1")
    a("v_mov_b32 v3, 1")
    a("s_waitcnt vmcnt(0)")
    a("s_mov_b64 exec, 1")
    a(f"global_store_dword v4, v3, {pp(I_DBG)} sc1")
    a("s_mov_b64 exec, -1")
    a.label("L_sp_bar")
    lds_wait(a, FL_KG, 4, 1, "spring", 17, 22, sleep=4)
    lds_wait(a, FL_TR, 1, 1, "spun", 17, 22, sleep=4)
    a("s_branch L_ph2_loader")
    a.label("L_kfin")
    a("s_sub_u32 s6, s3, 6")
    a("s_lshl_b32 s7, s2, 1")
    a("s_add_u32 s7, s7, s6")
    a("s_lshl_b32 s30, s6, 13")
    a(f"s_add_u32 s30, s30, {L_SIDE}")
    a("s_lshl_b32 s28, s7, 1")
    a("v_mov_b32 v16, s28")
    a("s_waitcnt lgkmcnt(0)")
    common_srds()
    a(f"global_load_ushort v{V_DSK}, v16, {pp(I_DSK)}")
    a("s_cmp_eq_u32 s6, 0")
    a("s_cbranch_scc1 L_kf_w6")
    gen_unit_load(a)
    a("s_barrier")
    gen_unit(a)
    lds_set(a, FL_TR, 1, 2, 3)
    a("s_branch L_kf_go")
    a.label("L_kf_w6")
    a("s_barrier")
    a.label("L_kf_go")
    gen_kfin_addr(a)
    gen_kfin(a)
    stamp(a, 3)
    a("s_mov_b32 s33, 0")
    a.label("L_conv")
    gen_conv(a)
    stamp(a, 7)
    stamp_flush(a, 8)
    a.label("L_end")
    a.label("L_codeend")
    a("s_endpgm")

def kd(name, vgpr, sgpr=102):
    return f""".p2align 6
.amdhsa_kernel {name}
  .amdhsa_next_free_vgpr {vgpr}
  .amdhsa_next_free_sgpr {sgpr}
  .amdhsa_accum_offset {vgpr}
  .amdhsa_group_segment_fixed_size 0
  .amdhsa_kernarg_size 136
  .amdhsa_user_sgpr_count 2
  .amdhsa_user_sgpr_kernarg_segment_ptr 1
  .amdhsa_system_sgpr_workgroup_id_x 1
.end_amdhsa_kernel"""

def main():
    out = sys.argv[1] if len(sys.argv) > 1 else "k.s"
    if len(sys.argv) > 2:
        OPT.update(sys.argv[2].split(","))
    global PFDELAY
    for o in OPT:
        if o.startswith("pfd"): PFDELAY = int(o[3:])
    OPT.add("nowalk")
    a = Asm()
    a.raw(f"; @launch grid=(256,1,1) block=(512,1,1) lds={LDS_SIZE}")
    a.raw('.amdgcn_target "amdgcn-amd-amdhsa--gfx950"')
    a.raw(".text")
    gen_kernel(a)
    a.raw('.section .rodata,"a"')
    a.raw(kd(KNAME, 256))
    open(out, "w").write(a.text())

if __name__ == "__main__":
    main()
```

```python
import sys, struct, math

KNAME = "gated_mix__ssm_conv_s4__glu_gated_swiglu__prompt_kernel"
OPT = set()

def f2u(x):
    return struct.unpack("<I", struct.pack("<f", x))[0]

import re
def est_size(s):
    m = s.split()[0]
    lit = 0
    for tok in re.findall(r"(?<![\w\[:])(-?(?:0x[0-9a-fA-F]+|\d+))(?![\w\]:.])", s.split(None, 1)[1] if " " in s else ""):
        v = int(tok, 0)
        if not (-16 <= v <= 64): lit = 4
    if m.startswith(("ds_", "buffer_", "global_", "v_mfma", "v_pk_", "s_load", "s_mem")): return 8
    if m.startswith("s_"):
        if m in ("s_waitcnt", "s_nop", "s_sleep", "s_branch", "s_barrier", "s_setprio", "s_endpgm") or m.startswith("s_cbranch"): return 4
        return 4 + lit
    if m in ("v_fma_f32", "v_lshl_add_u32", "v_lshl_or_b32", "v_add3_u32", "v_bfe_u32", "v_min3_u32", "v_cvt_pk_bf16_f32", "v_perm_b32",
             "v_alignbit_b32", "v_and_or_b32", "v_mul_lo_u32") or "dpp" in m or "-v" in s: return 8
    return 4 + lit

HOP = 56
class Asm:
    def __init__(self):
        self.L = []
        self.walk = None
    def _hop(self):
        name, k, _ = self.walk
        self.L.append(f"Lh_{name}_{k}:")
        self.L.append(f"    s_cbranch_execz Lh_{name}_{k+1}")
        self.walk = [name, k+1, 4]
    def walk_begin(self, name):
        if "nowalk" in OPT: return
        self.walk = [name, 0, 0]
        self._hop()
    def walk_end(self, to="L_walk_ret"):
        if "nowalk" in OPT: return
        name, k, _ = self.walk
        self.L.append(f"Lh_{name}_{k}:")
        self.L.append(f"    s_cbranch_execz {to}")
        self.walk = None
    def __call__(self, s):
        self.L.append("    " + s)
        if self.walk is not None:
            self.walk[2] += est_size(s)
            if self.walk[2] >= HOP:
                self._hop()
    def label(self, s):
        self.L.append(s + ":")
    def spin(self, s, sleep=0):
        self.L.append(s + ":")
        self("s_sub_u32 s0, s0, 1")
        self("s_cbranch_scc1 L_end")
        if sleep:
            self(f"s_sleep {sleep}")
    def raw(self, s):
        self.L.append(s)
    def text(self):
        return "\n".join(self.L) + "\n"

RET = 34
def walk(a, label):
    if "nowalk" in OPT: return
    a("s_mov_b64 exec, 0")
    a(f"s_call_b64 s[{RET}:{RET+1}], {label}")
    a("s_mov_b64 exec, -1")

def vr(b, n):
    return f"v[{b}:{b+n-1}]" if n > 1 else f"v{b}"

class VM:
    def __init__(self, a):
        self.a = a; self.q = []
    def op(self, s, tag):
        self.a(s); self.q.append(tag)
    def wait(self, tag):
        idx = max(i for i, t in enumerate(self.q) if t == tag) if tag in self.q else -1
        if idx < 0: return
        n = len(self.q) - 1 - idx
        assert n <= 63
        self.a(f"s_waitcnt vmcnt({n})")
        self.q = self.q[idx+1:]

WS_H    = 0x000000
WS_UT   = 0x800000
WS_G    = 0xA00000
WS_A    = 0xB00000
FSTR    = 4352
WS_FH   = 0xE00000
WS_FA   = 0xE80000
WS_FU   = WS_FH + 64*FSTR
WS_STAMP = 0x1300000
WS_SIZE = 0x1400000
LOG2E = 1.4426950408889634

SRD_X, SRD_W1, SRD_W2, SRD_WS, SRD_OUT = 8, 12, 16, 20, 24
P0 = 36
def ptr(i): return P0 + 2*i
def pp(i): return f"s[{ptr(i)}:{ptr(i)+1}]"
(I_U, I_ARE, I_AIM, I_BRE, I_BIM, I_CRE, I_CIM, I_LDT, I_DSK, I_X, I_W1, I_W3, I_W2, I_GW, I_OUT, I_DBG, I_WS) = range(17)
ST0 = 70
def S(d): return f"s[{d}:{d+3}]"

G1G2 = [False]
def stamp(a, idx, grp="main"):
    if "stamps" not in OPT: return
    if ("kst" in OPT) != (grp == "kst") and grp != "any": return
    if ("itst" in OPT or "g2st" in OPT) and G1G2[0] and grp != "any": return
    a(f"s_memtime s[{ST0+4*idx}:{ST0+1+4*idx}]")
    a(f"s_memrealtime s[{ST0+2+4*idx}:{ST0+3+4*idx}]")
    a("s_waitcnt lgkmcnt(0)")
def stamp_flush(a, n):
    if "stamps" not in OPT or any(o.startswith("amp") for o in OPT): return
    a("s_waitcnt lgkmcnt(0)")
    a("s_lshl_b32 s34, s2, 3")
    a("s_add_u32 s34, s34, s3")
    a("s_lshl_b32 s34, s34, 6")
    a(f"s_add_u32 s34, s34, {WS_STAMP}")
    a("v_mov_b32 v1, 0")
    for i in range(n):
        a(f"v_mov_b32 v2, s{ST0+4*i}")
        a(f"v_mov_b32 v3, s{ST0+2+4*i}")
        a(f"buffer_store_dwordx2 v[2:3], v1, {S(SRD_WS)}, s34 offen offset:{8*i}")
        a("s_nop 1")

SLOT = 49152
L_SIDE = 3*SLOT
SIDE_U = 0
SIDE_C = 6144
SIDE_F = 7680
LDS_SIZE = 163840
FLB = L_SIDE + SIDE_F
FL_FULL = FLB + 0
FL_ISS = FLB + 8
FL_VALID = FLB + 12
FL_FREE = FLB + 16
FL_EO = FLB + 32
FL_W2 = FLB + 40
FL_TR = FLB + 48
FL_TR2 = FLB + 64
FL_KG = FLB + 80
FL_X = FLB + 96
L2_XB = 139520
SIDE_XA = 4608
KT_BASE = 0
UN_T1 = 17408
UN_T2 = 25600
KG_RS = 272
L2_W2 = 0
L2_EO = 114688
L2_AT = 131328
EO_O = 4160

def srd(a, d, base, nbytes):
    a(f"s_mov_b32 s{d}, s{base}")
    a(f"s_and_b32 s{d+1}, s{base+1}, 0xffff")
    a(f"s_mov_b32 s{d+2}, {nbytes}")
    a(f"s_mov_b32 s{d+3}, 0x00020000")

def lds_wait(a, addr, n, val, tag, va, vt, sleep=1):
    a(f"v_mov_b32 v{va}, {addr}")
    a.spin(f"L_lw_{tag}", sleep)
    if n == 1:
        a(f"ds_read_b32 v{vt}, v{va}")
        a("s_waitcnt lgkmcnt(0)")
    elif n == 2:
        a(f"ds_read_b64 {vr(vt,2)}, v{va}")
        a("s_waitcnt lgkmcnt(0)")
        a(f"v_min_u32 v{vt}, v{vt}, v{vt+1}")
    else:
        a(f"ds_read_b128 {vr(vt,4)}, v{va}")
        a("s_waitcnt lgkmcnt(0)")
        a(f"v_min_u32 v{vt}, v{vt}, v{vt+1}")
        a(f"v_min3_u32 v{vt}, v{vt}, v{vt+2}, v{vt+3}")
    a(f"v_cmp_gt_u32 vcc, {val}, v{vt}")
    a(f"s_cbranch_vccnz L_lw_{tag}")

BARN = [0]
def bar(a):
    BARN[0] += 1
    a("s_cmp_ge_u32 s2, 224")
    a(f"s_cbranch_scc1 L_bar{BARN[0]}")
    a("s_barrier")
    a.label(f"L_bar{BARN[0]}")

def lds_set(a, addr, val, va, vv):
    a(f"v_mov_b32 v{va}, {addr}")
    a(f"v_mov_b32 v{vv}, {val}")
    a(f"ds_write_b32 v{va}, v{vv}")

def publish(a, soff, va, vv):
    a(f"v_mov_b32 v{vv}, 1")
    a(f"v_mov_b32 v{va}, 0")
    a("s_mov_b64 exec, 1")
    a(f"buffer_store_dword v{vv}, v{va}, {S(SRD_WS)}, {soff} offen sc1")
    a("s_mov_b64 exec, -1")

def arrive(a, tag, va, vv):
    a(f"v_mov_b32 v{va}, 0")
    a(f"v_mov_b32 v{vv}, 1")
    a("s_mov_b64 exec, 1")
    a(f"global_atomic_add v{vv+1}, v{va}, v{vv}, {pp(I_DBG)} offset:128 sc0 sc1")
    a("s_waitcnt vmcnt(0)")
    a(f"v_cmp_eq_u32 vcc, 32, v{vv+1}")
    a(f"s_cbranch_vccz L_arr_{tag}")
    a(f"global_store_dword v{va}, v{vv}, {pp(I_DBG)} sc1")
    a.label(f"L_arr_{tag}")
    a("s_mov_b64 exec, -1")

def cmul(a, d, x, y):
    a(f"v_pk_mul_f32 {vr(d,2)}, {vr(x,2)}, {vr(y,2)} op_sel:[0,0] op_sel_hi:[0,1]")
    a(f"v_pk_fma_f32 {vr(d,2)}, {vr(x,2)}, {vr(y,2)}, {vr(d,2)} op_sel:[1,1,0] op_sel_hi:[1,0,1] neg_lo:[0,1,0]")

KT_U = 64
V_DSK = 20
def gen_ktab_addr(a):
    a("s_lshr_b32 s6, s3, 1")
    a("s_lshl_b32 s7, s2, 1")
    a("s_add_u32 s7, s7, s6")
    a("s_lshl_b32 s28, s7, 8")
    a("s_and_b32 s29, s3, 1")
    a("s_lshl_b32 s29, s29, 7")
    a("s_add_u32 s28, s28, s29")
    a("v_lshl_add_u32 v2, v1, 1, s28")
    a("s_lshl_b32 s29, s7, 1")
    a("v_mov_b32 v3, s29")

def gen_ktab_loads(a):
    for i in range(6):
        a(f"global_load_short_d16_hi v{KT_U+i}, v2, {pp(I_ARE+i)}")
    a(f"global_load_short_d16_hi v{KT_U+6}, v3, {pp(I_LDT)}")

def gen_ktab(a, nyoung):
    U = KT_U
    DT = 72; AP = 74; BP = 75
    W1, W4, W512 = 76, 78, 80
    T0 = 82
    W2, W128, W256, Y32 = 56, 58, 60, 62
    Z = 24
    YF = 64; XF = 80
    VWR, VRD = 21, 22
    a(f"s_mul_i32 s30, s3, 4352")
    a(f"s_add_u32 s30, s30, {KT_BASE}")
    a(f"v_lshl_add_u32 v{VWR}, v1, 4, s30")
    a("v_bfe_u32 v6, v1, 2, 2")
    a("v_lshrrev_b32 v7, 4, v1")
    a("v_lshl_add_u32 v6, v7, 3, v6")
    a(f"v_lshl_add_u32 v{VRD}, v6, 4, s30")
    a("v_and_b32 v6, 1, v1")
    a(f"v_lshl_add_u32 v{VRD}, v6, 3, v{VRD}")
    a("v_bfe_u32 v6, v1, 1, 1")
    a("v_mul_u32_u24 v6, 1088, v6")
    a(f"v_add_u32 v{VRD}, v6, v{VRD}")
    a("s_mov_b32 s31, 0xffff0000")
    a(f"s_mov_b32 s32, {f2u(LOG2E)}")
    L2E_HI = struct.unpack("<f", struct.pack("<f", LOG2E))[0]
    a(f"s_mov_b32 s33, {f2u(LOG2E - L2E_HI)}")
    a(f"s_mov_b32 s34, {f2u(1.0/(2*math.pi))}")
    a("s_cmp_lt_u32 s2, 224")
    a("s_cbranch_scc1 L_kt_w1")
    a("s_waitcnt vmcnt(0)")
    a.label("L_kt_w1")
    a("s_waitcnt vmcnt(1)")
    stamp(a, 3, "kst")
    for i in range(7):
        a(f"v_and_b32 v{U+i}, s31, v{U+i}")
    L = U+6
    a(f"v_mul_f32 v{DT}, s32, v{L}")
    a(f"v_fma_f32 v{DT+1}, v{L}, s32, -v{DT}")
    a(f"v_fmac_f32 v{DT+1}, s33, v{L}")
    a(f"v_exp_f32 v{DT}, v{DT}")
    a(f"v_mul_f32 v{DT+1}, {f2u(math.log(2.0))}, v{DT+1}")
    a(f"v_fmac_f32 v{DT}, v{DT}, v{DT+1}")
    a(f"v_cvt_pk_bf16_f32 v{DT}, v{DT}, v{DT}")
    a(f"v_and_b32 v{DT}, s31, v{DT}")
    a(f"v_mul_f32 v{AP}, v{DT}, v{U}")
    a(f"v_mul_f32 v{BP}, v{DT}, v{U+1}")
    a(f"v_mul_f32 v{U+2}, v{DT}, v{U+2}")
    a(f"v_mul_f32 v{U+3}, v{DT}, v{U+3}")
    a(f"v_mul_f32 v{AP}, s32, v{AP}")
    a(f"v_mul_f32 v{BP}, s34, v{BP}")
    z = lambda c: Z + 2*c
    CB = z(4)
    def cmuls(lst):
        for d, x, y in lst:
            a(f"v_pk_mul_f32 {vr(d,2)}, {vr(x,2)}, {vr(y,2)} op_sel:[0,0] op_sel_hi:[0,1]")
        for d, x, y in lst:
            a(f"v_pk_fma_f32 {vr(d,2)}, {vr(x,2)}, {vr(y,2)}, {vr(d,2)} op_sel:[1,1,0] op_sel_hi:[1,0,1] neg_lo:[0,1,0]")
    cmuls([(CB, U+4, U+2)])
    dsts = [(z(1), 8, True), (W1, 1, False), (W128, 128, False)]
    for n, (dst, l, cj) in enumerate(dsts):
        lit = "1.0" if l == 1 else str(f2u(float(l)))
        a(f"v_mul_f32 v{T0+4*n}, {lit}, v{AP}")
        a(f"v_mul_f32 v{T0+4*n+1}, {lit}, v{BP}")
    for n in range(3):
        a(f"v_exp_f32 v{T0+4*n}, v{T0+4*n}")
        a(f"v_fract_f32 v{T0+4*n+1}, v{T0+4*n+1}")
    for n in range(3):
        a(f"v_cos_f32 v{T0+4*n+2}, v{T0+4*n+1}")
        a(f"v_sin_f32 v{T0+4*n+3}, v{T0+4*n+1}")
    a(f"v_mov_b32 v{z(0)}, 1.0")
    for n, (dst, l, cj) in enumerate(dsts):
        a(f"v_mul_f32 v{dst}, v{T0+4*n}, v{T0+4*n+2}")
        a(f"v_mul_f32 v{dst+1}, {'-' if cj else ''}v{T0+4*n}, v{T0+4*n+3}")
    a(f"v_mov_b32 v{z(0)+1}, 0")
    cmuls([(z(2), z(1), z(1)), (W2, W1, W1), (z(5), CB, W1), (z(6), CB, W128), (W256, W128, W128)])
    cmuls([(z(3), z(2), z(1)), (Y32, z(2), z(2)), (z(7), z(6), W1), (W4, W2, W2), (z(8), CB, W256), (z(9), z(6), W256), (W512, W256, W256)])
    cmuls([(z(10), z(8), W256), (T0, W512, W512)])
    cmuls([(z(11), z(10), W4), (z(13), T0, z(6)), (z(12), T0, CB)])
    mult = [Y32]*4 + [W2]*4 + [W2, W2, W128, W128] + [W256, W256]
    stamp(a, 4, "kst")
    SP = 1088
    E = 96
    PKK = 120
    pkn = [0]
    ev = lambda kk, it: E + 6*kk + 2*(it-1)
    def val(c0, kk, it):
        if c0 == 0 and kk == 0 and it == 1: return Y32
        return z(c0+kk) if it == 0 else ev(kk, it)
    def tile(c0, nch, extra=None):
        for it in range(1, 4):
            cmuls([(ev(kk, it), val(c0, kk, it-1), mult[c0+kk]) for kk in range(nch) if not (c0 == 0 and kk == 0 and it == 1)])
        if extra is not None:
            cmuls([(extra, ev(0, 3), mult[c0])])
        for pair in range(2):
            for pl in range(2):
                p = PKK + 4*(pkn[0] % 2); pkn[0] += 1
                if 2*pair >= nch:
                    a(f"v_cvt_pk_bf16_f32 v{p}, v{extra+pl}, v{extra+pl}")
                    a(f"ds_write_b32 v{VWR}, v{p} offset:{(2*pl+pair)*SP}")
                    continue
                for kk in range(2):
                    c = 2*pair + kk
                    a(f"v_cvt_pk_bf16_f32 v{p+2*kk}, v{val(c0,c,0)+pl}, v{val(c0,c,1)+pl}")
                    a(f"v_cvt_pk_bf16_f32 v{p+2*kk+1}, v{val(c0,c,2)+pl}, v{val(c0,c,3)+pl}")
                a(f"ds_write_b128 v{VWR}, {vr(p,4)} offset:{(2*pl+pair)*SP}")
    def readfr(dst):
        for pl in range(2):
            for nh in range(2):
                for h in range(2):
                    a(f"ds_read_b64_tr_b16 {vr(dst+8*pl+4*nh+2*h,2)}, v{VRD} offset:{2*pl*SP + nh*512 + h*64}")
    def mm(dd, xf):
        for kk in range(4):
            c = "0" if kk == 0 else vr(dd, 4)
            a(f"v_mfma_f32_16x16x32_bf16 {vr(dd,4)}, {vr(xf+4*kk,4)}, {vr(YF+4*kk,4)}, {c}")
    D = 24
    tile(0, 4)
    readfr(YF)
    tile(4, 4)
    readfr(XF)
    tile(8, 4)
    a("s_waitcnt lgkmcnt(4)")
    mm(D, XF)
    readfr(XF)
    tile(12, 2, extra=z(8))
    a("s_waitcnt lgkmcnt(4)")
    mm(D+4, XF)
    X2 = 96
    readfr(X2)
    stamp(a, 5, "kst")
    a("s_lshl_b32 s28, s6, 13")
    a("s_and_b32 s29, s3, 1")
    a("s_mul_i32 s29, s29, 3072")
    a("s_add_u32 s28, s28, s29")
    a(f"s_add_u32 s28, s28, {L_SIDE}")
    a("v_lshl_add_u32 v2, v1, 4, s28")
    a("s_lshl_b32 s28, s3, 2")
    a(f"s_add_u32 s28, s28, {FL_KG}")
    a("v_mov_b32 v3, s28")
    a("v_mov_b32 v4, 1")
    a(f"ds_write_b128 v2, {vr(D,4)}")
    a(f"ds_write_b128 v2, {vr(D+4,4)} offset:1024")
    a("s_waitcnt lgkmcnt(2)")
    mm(D+8, X2)
    a("s_nop 7")
    a(f"ds_write_b128 v2, {vr(D+8,4)} offset:2048")
    a("ds_write_b32 v3, v4")
    a("s_waitcnt lgkmcnt(0)")
    stamp(a, 6, "kst")

def gen_unit_load(a):
    w2_voffs(a, 8)
    a("s_lshr_b32 s28, s2, 3")
    a("s_lshl_b32 s28, s28, 16")
    a("s_and_b32 s29, s2, 7")
    a("s_lshl_b32 s29, s29, 7")
    a("s_add_u32 s28, s28, s29")
    for q in range(2):
        a(f"s_mov_b32 m0, {UN_T1 + q*4096}")
        a("s_nop 0")
        for k in range(4):
            a(f"buffer_load_dwordx4 v{8+k}, {S(SRD_X)}, s28 offen offset:{k*1024} lds")
        a("s_add_u32 s28, s28, 32768")

def gen_unit(a):
    a("v_bfe_u32 v2, v1, 2, 2")
    a("v_and_b32 v3, 3, v1")
    a("v_lshrrev_b32 v4, 4, v1")
    a("v_lshl_add_u32 v5, v4, 3, v2")
    a("v_lshlrev_b32 v5, 7, v5")
    a("v_lshl_add_u32 v5, v3, 3, v5")
    a(f"v_add_u32 v5, {UN_T1}, v5")
    a("v_lshrrev_b32 v6, 1, v2")
    TA = 64
    for x in range(4):
        a(f"v_xor_b32 v7, {x}, v6")
        a(f"v_lshl_add_u32 v{TA+x}, v7, 5, v5")
    a("v_and_b32 v6, 15, v1")
    a("v_mul_u32_u24 v6, 144, v6")
    a("v_lshl_add_u32 v6, v4, 4, v6")
    a(f"v_add_u32 v{TA+4}, {UN_T2}, v6")
    a("v_lshrrev_b32 v6, 3, v1")
    a("v_and_b32 v7, 7, v1")
    a("v_mul_u32_u24 v2, 144, v6")
    a("v_lshl_add_u32 v2, v7, 4, v2")
    a(f"v_add_u32 v{TA+5}, {UN_T2}, v2")
    a("s_waitcnt vmcnt(0)")
    O = 72
    n = 0
    for nu in range(4):
        for kh in range(2):
            for h in range(2):
                a(f"ds_read_b64_tr_b16 {vr(O+4*n+2*h,2)}, v{TA + (nu ^ (2*h))} offset:{(32*kh+4*h)*128}")
            n += 1
    n = 0
    for nu in range(4):
        for kh in range(2):
            a(f"s_waitcnt lgkmcnt({min(15, 2*(7-n) + n)})")
            a(f"ds_write_b128 v{TA+4}, {vr(O+4*n,4)} offset:{nu*16*144 + kh*64}")
            n += 1
    O2 = 224
    for n in range(8):
        a(f"ds_read_b128 {vr(O2+4*n,4)}, v{TA+5} offset:{n*8*144}")
    a("s_waitcnt lgkmcnt(0)")

def gen_unit_store(a):
    O2 = 224
    a("v_lshrrev_b32 v24, 3, v1")
    a("v_and_b32 v25, 7, v1")
    a("v_lshlrev_b32 v24, 12, v24")
    a("v_lshl_add_u32 v24, v25, 4, v24")
    a("s_and_b32 s28, s2, 7")
    a("s_lshl_b32 s28, s28, 18")
    a("s_lshr_b32 s34, s2, 3")
    a("s_lshl_b32 s34, s34, 7")
    a("s_add_u32 s28, s28, s34")
    a(f"s_add_u32 s28, s28, {WS_UT}")
    for n in range(8):
        a(f"buffer_store_dwordx4 {vr(O2+4*n,4)}, v24, {S(SRD_WS)}, s28 offen sc1")
        a(f"s_add_u32 s28, s28, {8*4096}")

def gen_unit_pub(a):
    a("s_and_b32 s28, s2, 7")
    a(f"s_mul_i32 s28, s28, {4*FSTR}")
    a("s_lshr_b32 s29, s2, 3")
    a("s_lshl_b32 s29, s29, 2")
    a("s_add_u32 s28, s28, s29")
    a(f"s_add_u32 s28, s28, {WS_FU}")
    a(f"v_mul_u32_u24 v2, {FSTR}, v1")
    a("v_mov_b32 v3, 1")
    lds_wait(a, FL_VALID, 1, 1, "unv", 4, 60, sleep=2)
    a("s_waitcnt vmcnt(0)")
    a("s_mov_b64 exec, 15")
    a(f"buffer_store_dword v3, v2, {S(SRD_WS)}, s28 offen sc1")
    a("s_mov_b64 exec, -1")

def gen_g1_setup(a):
    ACC = 128
    XF = 32; WF = 64; XA = 8; WA = 12
    a("v_and_b32 v2, 15, v1")
    a("v_lshrrev_b32 v3, 4, v1")
    a("v_bfe_u32 v4, v2, 1, 3")
    a("s_lshl_b32 s28, s3, 13")
    a(f"s_add_u32 s28, s28, {SLOT}")
    a("v_lshlrev_b32 v5, 7, v2")
    a("v_add_u32 v5, s28, v5")
    for sig in range(2):
        a(f"v_add_u32 v6, {4*sig}, v3")
        a("v_xor_b32 v6, v6, v4")
        a(f"v_lshl_add_u32 v{XA+sig}, v6, 4, v5")
    a("v_bfe_u32 v2, v1, 2, 2")
    a("v_and_b32 v3, 3, v1")
    a("v_lshrrev_b32 v4, 4, v1")
    a("v_lshl_add_u32 v6, v4, 3, v2")
    a("v_lshlrev_b32 v6, 7, v6")
    a("v_lshl_add_u32 v6, v3, 3, v6")
    a(f"v_add_u32 v6, {32768+SLOT}, v6")
    a("v_lshrrev_b32 v7, 1, v2")
    a("v_and_b32 v4, 1, v4")
    a("v_lshl_or_b32 v7, v4, 1, v7")
    for nu in range(4):
        a(f"v_xor_b32 v5, {nu}, v7")
        a(f"v_lshl_add_u32 v{WA+nu}, v5, 5, v6")
    for i in range(0, 128, 2):
        a(f"v_pk_mul_f32 {vr(ACC+i,2)}, 0, 0")
    a("s_lshl_b32 s28, s3, 2")
    a(f"s_add_u32 s28, s28, {FL_FREE}")
    a("v_mov_b32 v19, s28")
    a("v_mov_b32 v20, 0")

def gen_g1(a):
    ACC = 128
    XF = 32; WF = 64; XA = 8; WA = 12
    def acc(mat, nu, m): return ACC + 4*((mat*4+nu)*4+m)
    def xf(sig, m): return XF + 16*(sig & 1) + 4*m
    def wf(sig, mat, nu): return WF + 32*(sig & 1) + 4*(mat*4+nu)
    def reads(sig):
        r = []
        for m in range(4):
            r.append(f"ds_read_b128 {vr(xf(sig,m),4)}, v{XA+sig} offset:{m*2048}")
        for mat in range(2):
            for nu in range(4):
                for h in range(2):
                    r.append(f"ds_read_b64_tr_b16 {vr(wf(sig,mat,nu)+2*h,2)}, v{WA+nu} offset:{mat*8192+sig*4096+h*512}")
        return r
    def mfmas(sig):
        r = []
        for mat in range(2):
            for nu in range(4):
                for m in range(4):
                    d = acc(mat, nu, m)
                    r.append(f"v_mfma_f32_16x16x32_bf16 {vr(d,4)}, {vr(wf(sig,mat,nu),4)}, {vr(xf(sig,m),4)}, {vr(d,4)}")
        return r
    a("s_mov_b32 s7, 1")
    a("s_mov_b32 s28, 8")
    a(f"s_mov_b32 s30, {SLOT}")
    a("s_barrier")
    stamp(a, 2)
    for r in reads(0): a(r)
    a.label("L_g1_loop")
    a("s_add_u32 s7, s7, 1")
    a("s_cmp_eq_u32 s7, 3")
    a(f"s_cselect_b32 s29, {(-2*SLOT) & 0xffffffff}, s30")
    a("s_cselect_b32 s7, 0, s7")
    M = mfmas(0); R = reads(1)
    issued = 0
    for i in range(32):
        if i % 4 == 0:
            need = 4 + 2*(i//4 + 1)
            n = (20 - need) + issued
            a(f"s_waitcnt lgkmcnt({min(n,15)})")
        a(M[i])
        if issued < 20 and i >= 2:
            a(R[issued]); issued += 1
        if i == 24:
            a(f"v_add_u32 v{XA}, s29, v{XA}")
            a(f"v_add_u32 v{XA+1}, s29, v{XA+1}")
        if i in (25, 26):
            a(f"v_add_u32 v{WA+2*(i-25)}, s29, v{WA+2*(i-25)}")
            a(f"v_add_u32 v{WA+2*(i-25)+1}, s29, v{WA+2*(i-25)+1}")
        if i == 27:
            a("s_sub_u32 s28, s28, 1")
            a("s_cmp_eq_u32 s28, 0")
    assert issued == 20
    M = mfmas(1); R = reads(0)
    a("s_waitcnt lgkmcnt(0)")
    a(M[0]); a(M[1])
    a("s_barrier")
    a("s_cbranch_scc1 L_g1_last")
    issued = 0
    for i in range(2, 32):
        if issued < 20:
            a(R[issued]); issued += 1
        a(M[i])
    a("s_branch L_g1_loop")
    a.label("L_g1_last")
    for i in range(2, 32):
        a(M[i])
    stamp(a, 3)
    a(f"s_mov_b32 s6, {f2u(-LOG2E)}")
    a(f"s_mov_b32 s7, {f2u(-LOG2E)}")
    a("s_lshl_b32 s28, s4, 4")
    a("s_lshl_b32 s29, s3, 2")
    a("s_add_u32 s28, s28, s29")
    a("s_mul_i32 s28, s28, 56")
    a("s_lshl_b32 s29, s5, 1")
    a("s_add_u32 s28, s28, s29")
    a("s_lshl_b32 s28, s28, 10")
    for m in range(1, 4):
        a(f"s_add_u32 s{28+m}, s28, {m*56*1024}")
    a("v_lshlrev_b32 v2, 4, v1")
    a("s_lshl_b32 s32, s4, 2")
    a("s_add_u32 s32, s32, s3")
    a(f"s_mul_i32 s32, s32, {FSTR}")
    a("s_lshl_b32 s33, s5, 2")
    a("s_add_u32 s32, s32, s33")
    a(f"s_add_u32 s32, s32, {WS_FH}")
    a(f"s_add_u32 s33, s32, {32*FSTR}")
    T = 32
    cnt = 0
    for np_ in range(2):
        for m in range(4):
            E = T + 16*(cnt & 1)
            O = E + 8
            gs = [acc(0, 2*np_, m), acc(0, 2*np_, m)+2, acc(0, 2*np_+1, m), acc(0, 2*np_+1, m)+2]
            us = [acc(1, 2*np_, m), acc(1, 2*np_, m)+2, acc(1, 2*np_+1, m), acc(1, 2*np_+1, m)+2]
            for p in range(4):
                a(f"v_pk_mul_f32 {vr(E+2*p,2)}, {vr(gs[p],2)}, s[6:7]")
            for p in range(8):
                a(f"v_exp_f32 v{E+p}, v{E+p}")
            for p in range(4):
                a(f"v_pk_mul_f32 {vr(us[p],2)}, {vr(gs[p],2)}, {vr(us[p],2)}")
            for p in range(4):
                a(f"v_pk_add_f32 {vr(E+2*p,2)}, {vr(E+2*p,2)}, 1.0 op_sel_hi:[1,0]")
            for p in range(8):
                a(f"v_rcp_f32 v{E+p}, v{E+p}")
            a("s_nop 0")
            for p in range(4):
                a(f"v_pk_mul_f32 {vr(us[p],2)}, {vr(us[p],2)}, {vr(E+2*p,2)}")
            for p in range(4):
                a(f"v_cvt_pk_bf16_f32 v{O+p}, v{us[p]}, v{us[p]+1}")
            if cnt == 6:
                lds_wait(a, FL_VALID, 1, 1, "g1v", 3, 4, sleep=0)
                a("s_waitcnt vmcnt(2)")
                publish(a, "s32", 3, 4)
            a(f"buffer_store_dwordx4 {vr(O,4)}, v2, {S(SRD_WS)}, s{28+m} offen offset:{np_*1024} sc1")
            cnt += 1
    a("v_mov_b32 v20, 1")
    a("ds_write_b32 v19, v20")
    stamp(a, 4)
    a("s_mov_b32 s35, s33")
    a.walk_end()

VX = 8; VW = 12
def gen_loader_setup(a):
    a("v_lshrrev_b32 v2, 3, v1")
    a("v_and_b32 v3, 7, v1")
    a("v_lshrrev_b32 v4, 4, v1")
    a("v_xor_b32 v5, v3, v4")
    a("v_xor_b32 v6, 4, v5")
    a("v_lshlrev_b32 v7, 10, v2")
    a(f"v_lshl_add_u32 v{VX}, v5, 4, v7")
    a(f"v_lshl_add_u32 v{VX+1}, v6, 4, v7")
    a(f"v_add_u32 v{VX+2}, {2*7168}, v{VX}")
    a(f"v_add_u32 v{VX+3}, {3*7168}, v{VX+1}")
    a(f"v_add_u32 v{VX+1}, {7168}, v{VX+1}")
    a("v_and_b32 v4, 1, v4")
    a("v_lshlrev_b32 v4, 1, v4")
    a("v_xor_b32 v5, v3, v4")
    a("v_mul_u32_u24 v7, 3584, v2")
    a(f"v_lshl_add_u32 v{VW}, v5, 4, v7")
    a("v_xor_b32 v5, 4, v5")
    a(f"v_lshl_add_u32 v{VW+1}, v5, 4, v7")
    a(f"v_add_u32 v{VW+2}, {2*(28672-1024)}, v{VW}")
    a(f"v_add_u32 v{VW+3}, {3*(28672-1024)}, v{VW+1}")
    a(f"v_add_u32 v{VW+1}, {(28672-1024)}, v{VW+1}")

def gen_loader(a):
    NT1 = " nt" if "nt1" in OPT else ""
    a("s_sub_u32 s6, s3, 4")
    a("s_cmp_eq_u32 s6, 1")
    a(f"s_cselect_b32 s{SRD_W1}, s{ptr(I_W3)}, s{ptr(I_W1)}")
    a(f"s_cselect_b32 s{SRD_W1+1}, s{ptr(I_W3)+1}, s{ptr(I_W1)+1}")
    a(f"s_and_b32 s{SRD_W1+1}, s{SRD_W1+1}, 0xffff")
    a("s_lshl_b32 s28, s4, 18")
    a("s_lshl_b32 s7, s6, 17")
    a("s_add_u32 s28, s28, s7")
    a("s_lshl_b32 s29, s5, 7")
    a("s_lshl_b32 s34, s6, 14")
    a(f"s_add_u32 s34, s34, {SLOT}")
    a("s_lshl_b32 s35, s6, 13")
    a(f"s_add_u32 s35, s35, {SLOT+32768}")
    a("s_mov_b32 s31, 0")
    a("s_mov_b32 s30, 1")
    a.label("L_ld_loop")
    a(f"s_add_u32 s33, s29, {4*28672}")
    for q in range(2):
        a(f"s_add_u32 m0, s35, {q*4096}")
        a("s_nop 0")
        for k in range(4):
            a(f"buffer_load_dwordx4 v{VW+k}, {S(SRD_W1)}, s{29 if q == 0 else 33} offen offset:{k*1024}{NT1} lds")
    a("s_mov_b32 s33, s28")
    for q in range(4):
        a(f"s_add_u32 m0, s34, {q*4096}")
        a("s_nop 0")
        for k in range(4):
            a(f"buffer_load_dwordx4 v{VX+k}, {S(SRD_X)}, s33 offen offset:{k*1024}{NT1} lds")
        if q < 3: a("s_add_u32 s33, s33, 32768")
    a("s_add_u32 s28, s28, 128")
    a(f"s_add_u32 s29, s29, {64*3584}")
    a("s_add_u32 s30, s30, 1")
    a("s_cmp_eq_u32 s30, 3")
    a(f"s_cselect_b32 s7, {(-3*SLOT) & 0xffffffff}, 0")
    a("s_cselect_b32 s30, 0, s30")
    a(f"s_add_u32 s7, s7, {SLOT}")
    a("s_add_u32 s34, s34, s7")
    a("s_add_u32 s35, s35, s7")
    a("s_add_u32 s31, s31, 1")
    a("s_cmp_eq_u32 s31, 1")
    a("s_cbranch_scc1 L_ld_loop")
    a("s_waitcnt vmcnt(24)")
    a("s_barrier")
    a("s_cmp_lt_u32 s31, 8")
    a("s_cbranch_scc1 L_ld_loop")
    stamp(a, 1)

V_EO = 192
VC0, VC1, VC3 = 8, 16, 11
MU, EE, GB = 56, 57, 58
GA = 36
def gen_kfin_addr(a):
    a("v_and_b32 v6, 15, v1")
    a("v_lshrrev_b32 v7, 4, v1")
    a("v_and_b32 v2, 3, v6")
    a("v_lshrrev_b32 v3, 2, v6")
    a("v_lshl_add_u32 v6, v2, 2, v3")
    a("v_lshrrev_b32 v12, 1, v7")
    a("v_and_b32 v13, 1, v7")
    a(f"v_lshlrev_b32 v{VC0}, 8, v12")
    a(f"v_lshl_add_u32 v{VC0}, v13, 1, v{VC0}")
    a(f"v_lshl_add_u32 v{VC0}, v6, 4, v{VC0}")
    a(f"v_add_u32 v{VC0}, s30, v{VC0}")
    a("v_lshlrev_b32 v2, 7, v13")
    a("v_lshl_add_u32 v2, v6, 3, v2")
    a("v_lshlrev_b32 v3, 1, v13")
    a("v_lshl_add_u32 v3, v6, 2, v3")
    a("v_add_u32 v3, 256, v3")
    a("v_cmp_eq_u32 vcc, 0, v12")
    a("v_mul_u32_u24 v14, 62, v12")
    a("v_add_u32 v14, 2, v14")
    a(f"v_cndmask_b32 v{VC1}, v3, v2, vcc")
    a(f"v_add_u32 v{VC1}, s30, v{VC1}")
    for i in range(1, 4):
        a(f"v_add_u32 v{VC1+i}, v{VC1+i-1}, v14")
    a(f"v_lshlrev_b32 v{VC3}, 5, v7")
    a("v_mul_u32_u24 v2, 192, v12")
    a(f"v_add3_u32 v{VC3}, v{VC3}, v2, s30")
    a(f"v_lshl_add_u32 v{VC3}, v6, 1, v{VC3}")
    a(f"v_sub_u32 v{MU}, 63, v1")
    a(f"v_lshrrev_b32 v{EE}, 4, v{MU}")
    a(f"v_min_u32 v{EE}, 2, v{EE}")
    a(f"v_lshlrev_b32 v{GB}, 5, v{MU}")
    a(f"v_lshrrev_b32 v{GB}, v{EE}, v{GB}")
    a(f"v_lshl_add_u32 v{GB}, v{EE}, 8, v{GB}")
    a(f"v_add_u32 v{GB}, s30, v{GB}")
    a(f"v_lshlrev_b32 v{EE}, 3, v{EE}")
    def rne(o, e):
        if e == 0: return o
        return (o + ((1 << (e-1)) - 1) + ((o >> e) & 1)) >> e
    for o in range(17):
        tab = sum((2*rne(o, e)) << (8*e) for e in range(3))
        a(f"s_mov_b32 s35, {tab}")
        a(f"v_bfe_u32 v{GA+o}, s35, v{EE}, 8")
        a(f"v_add_u32 v{GA+o}, v{GA+o}, v{GB}")
    a(f"v_lshl_add_u32 v{MU}, v{MU}, 2, s30")

def gen_kfin(a):
    D = 96
    CP = 64
    E0, O0, E1, O1 = V_EO, V_EO+8, V_EO+16, V_EO+24
    G0 = 72
    a("v_lshl_add_u32 v5, v1, 4, s30")
    a("s_lshr_b32 s29, s7, 6")
    a("s_lshl_b32 s29, s29, 2")
    a("s_and_b32 s28, s2, 3")
    a("s_add_u32 s29, s29, s28")
    a(f"s_mul_i32 s29, s29, {FSTR}")
    a(f"s_add_u32 s35, s29, {WS_FU}")
    a("v_and_b32 v54, 31, v1")
    a("v_lshlrev_b32 v54, 2, v54")
    a("s_lshl_b32 s31, s7, 12")
    a(f"s_add_u32 s31, s31, {WS_UT}")
    a("v_lshlrev_b32 v53, 4, v1")
    a("s_lshl_b32 s28, s6, 3")
    a(f"s_add_u32 s28, s28, {FL_KG}")
    lds_wait(a, "s28", 2, 1, "kf", 2, 60, sleep=1)
    for j in range(6):
        a(f"ds_read_b128 {vr(D+4*j,4)}, v5 offset:{j*1024}")
    a("s_waitcnt lgkmcnt(0)")
    for j in range(12):
        a(f"v_add_f32 v{D+j}, v{D+j}, v{D+12+j}")
    for j in range(6):
        a(f"v_cvt_pk_bf16_f32 v{CP+j}, v{D+2*j}, v{D+2*j+1}")
    for i in range(4):
        hi = "_d16_hi" if i & 1 else ""
        a(f"ds_write_b16{hi} v{VC0}, v{CP+i//2} offset:{SIDE_C+4*i}")
        a(f"ds_write_b16{hi} v{VC1+i}, v{CP+2+i//2} offset:{SIDE_C+512}")
        a(f"ds_write_b16{hi} v{VC3}, v{CP+4+i//2} offset:{SIDE_C+1024+64*i}")
    a("v_mov_b32 v2, 0")
    a("v_mov_b32 v3, 0")
    a("v_lshl_add_u32 v4, v1, 3, s30")
    a(f"ds_write_b64 v4, v[2:3] offset:{SIDE_U}")
    a(f"ds_read_b32 v{G0}, v{MU} offset:{SIDE_C+1024}")
    a(f"ds_read_u16 v{G0+1}, v{MU} offset:{SIDE_C+1024+4}")
    for m in range(8):
        a(f"ds_read_u16 v{E1+m}, v{GA+15-2*m} offset:{SIDE_C}")
        a(f"ds_read_u16 v{O1+m}, v{GA+14-2*m} offset:{SIDE_C}")
    a(f"ds_read_u16 v{G0+2}, v{GA+16} offset:{SIDE_C}")
    stamp(a, 1)
    for i in range(UTB):
        bar(a)
        if i == 0:
            a("s_cmp_lg_u32 s6, 1")
            a("s_cbranch_scc1 L_kf_ns")
            gen_unit_store(a)
            a.label("L_kf_ns")
        if i == 1:
            a("v_mov_b32 v22, 0")
            a("s_cmp_lg_u32 s6, 0")
            a("s_cbranch_scc1 L_kf_nv0")
            a(f"global_load_dword v23, v22, {pp(I_DBG)} sc1")
            a.label("L_kf_nv0")
            a("s_mov_b32 s28, 0x01000100")
            a("s_mov_b32 s29, 0x03020302")
            a("s_mov_b32 s34, 0x01000302")
            a("s_mov_b32 s1, 0x03020504")
            a("s_waitcnt lgkmcnt(0)")
            a(f"v_perm_b32 v{E0}, v{G0+1}, v{G0+1}, s28")
            a(f"v_perm_b32 v{E0+2}, v{G0}, v{G0}, s29")
            a(f"v_perm_b32 v{E0+6}, v{G0}, v{G0}, s28")
            a(f"v_perm_b32 v{E0+5}, v{G0}, v{G0}, s34")
            a(f"v_perm_b32 v{O0+2}, v{G0+1}, v{G0}, s1")
            for d_, s_ in ((E0+1, E0), (E0+3, E0+2), (E0+4, E0+2), (E0+7, E0+6), (O0, E0), (O0+1, E0), (O0+3, E0+2), (O0+4, E0+2),
                           (O0+5, E0+2), (O0+6, E0+6), (O0+7, E0+6)):
                a(f"v_mov_b32 v{d_}, v{s_}")
            for m in range(8):
                a(f"v_lshl_or_b32 v{E1+m}, v{O1+m}, 16, v{E1+m}")
            a(f"v_lshl_or_b32 v{O1}, v{E1}, 16, v{G0+2}")
            for m in range(1, 8):
                a(f"v_alignbit_b32 v{O1+m}, v{E1+m}, v{E1+m-1}, 16")
            a(f"v_lshrrev_b32 v8, 16, v{E1+7}")
            for ii in range(9, 16):
                a(f"v_mov_b32 v{ii}, 0")
            a("s_mul_i32 s29, s6, 8320")
            a(f"s_add_u32 s29, s29, {L2_EO}")
            a("v_lshl_add_u32 v21, v1, 5, s29")
        if i == 2:
            a("s_cmp_lg_u32 s6, 0")
            a("s_cbranch_scc1 L_kf_nv")
            a("s_waitcnt vmcnt(0)")
            a("v_cmp_eq_u32 vcc, 0, v23")
            a("s_cbranch_vccz L_kf_vok")
            a.spin("L_kf_vpoll", 8)
            a(f"global_load_dword v23, v22, {pp(I_DBG)} sc1")
            a("s_waitcnt vmcnt(0)")
            a("v_cmp_eq_u32 vcc, 0, v23")
            a("s_cbranch_vccnz L_kf_vpoll")
            a.label("L_kf_vok")
            lds_set(a, FL_VALID, 1, 2, 3)
            a.label("L_kf_nv")
        if i == 3:
            a("s_cmp_lg_u32 s6, 1")
            a("s_cbranch_scc1 L_kf_np")
            gen_unit_pub(a)
            a.label("L_kf_np")
        if i == W2PFB and "now2pf" not in OPT:
            a("s_mul_i32 s28, s7, 3584")
            a("v_lshlrev_b32 v2, 7, v1")
            a("s_mov_b64 exec, 0xfffffff")
            a(f"buffer_load_dword v3, v2, {S(SRD_W2)}, s28 offen")
            a("s_mov_b64 exec, -1")
    lds_wait(a, FL_VALID, 1, 1, "kfv", 5, 60, sleep=2)
    a(f"buffer_load_dword v55, v54, {S(SRD_WS)}, s35 offen sc1")
    bar(a)
    a("s_waitcnt vmcnt(0)")
    a("v_cmp_ne_u32 s[32:33], 1, v55")
    a("s_nop 2")
    a("s_cmp_lg_u64 s[32:33], 0")
    a("s_cbranch_scc1 L_kf_late")
    a(f"s_add_u32 m0, s30, {SIDE_U+512}")
    a("s_nop 0")
    for i in range(4):
        a(f"buffer_load_dwordx4 v53, {S(SRD_WS)}, s31 offen offset:{i*1024} sc1 lds")
    a.label("L_kf_late")
    for i in range(UTB+1, 9):
        bar(a)
    stamp(a, 2)
    for rnd, (E, O) in enumerate(((E0, O0), (E1, O1))):
        for h in range(2):
            a(f"ds_write_b128 v21, {vr(E+4*h,4)} offset:{rnd*2048+16*h}")
            a(f"ds_write_b128 v21, {vr(O+4*h,4)} offset:{EO_O+rnd*2048+16*h}")
    a("s_mov_b32 s28, 0")
    a("s_mov_b32 s29, 0x80000000")
    a("s_mov_b64 exec, s[28:29]")
    a(f"ds_write_b128 v21, v[12:15] offset:{2048+32}")
    a(f"ds_write_b128 v21, v[12:15] offset:{2048+48}")
    a(f"ds_write_b128 v21, v[8:11] offset:{EO_O+2048+32}")
    a(f"ds_write_b128 v21, v[12:15] offset:{EO_O+2048+48}")
    a("s_mov_b64 exec, -1")
    a("s_cmp_eq_u64 s[32:33], 0")
    a("s_cbranch_scc1 L_kf_uok")
    a.spin("L_kf_upoll", 8)
    a(f"buffer_load_dword v55, v54, {S(SRD_WS)}, s35 offen sc1")
    a("s_waitcnt vmcnt(0)")
    a("v_cmp_ne_u32 vcc, 1, v55")
    a("s_cbranch_vccnz L_kf_upoll")
    a(f"s_add_u32 m0, s30, {SIDE_U+512}")
    a("s_nop 0")
    for i in range(4):
        a(f"buffer_load_dwordx4 v53, {S(SRD_WS)}, s31 offen offset:{i*1024} sc1 lds")
    a.label("L_kf_uok")
    a("s_lshl_b32 s28, s6, 2")
    a(f"s_add_u32 s28, s28, {FL_EO}")
    a("s_waitcnt vmcnt(0)")
    lds_set(a, "s28", 1, 16, 17)

def gen_conv(a):
    tag = "cv"
    ACC = 24; FR = 64; AB = 8; UB = 12
    def af(st, aa): return FR + 64*st + 4*aa
    def bf(st, e): return FR + 64*st + 32 + 4*e
    a("v_and_b32 v2, 15, v1")
    a("v_lshrrev_b32 v3, 4, v1")
    a("s_lshl_b32 s32, s33, 8")
    a("s_mul_i32 s29, s6, 8320")
    a(f"s_add_u32 s29, s29, {L2_EO + 4*1016 + EO_O}")
    a("s_sub_u32 s29, s29, s32")
    a("v_add_u32 v4, 1, v2")
    a("v_lshrrev_b32 v4, 1, v4")
    a("v_lshlrev_b32 v5, 2, v3")
    a("v_sub_u32 v5, v5, v4")
    a("v_lshl_add_u32 v5, v5, 2, s29")
    a("v_and_b32 v4, 1, v2")
    a(f"v_mul_u32_u24 v4, {EO_O}, v4")
    a("v_sub_u32 v5, v5, v4")
    for b in range(4):
        a(f"v_subrev_u32 v{AB+b}, {512*(2*b+1)}, v5")
    a("v_lshlrev_b32 v4, 5, v2")
    a("v_lshl_add_u32 v4, v3, 4, v4")
    a(f"s_add_u32 s28, s30, {SIDE_U + 480}")
    a("s_sub_u32 s28, s28, s32")
    a(f"v_add_u32 v{UB}, s28, v4")
    for i in range(32):
        a(f"v_mov_b32 v{ACC+i}, 0")
    def reads(st):
        r = []
        for x in range(8):
            o = 128 if x % 2 == 0 else 0
            r.append(f"ds_read2_b32 {vr(af(st,x),2)}, v{AB+x//2} offset0:{o} offset1:{o+1}")
            r.append(f"ds_read2_b32 {vr(af(st,x)+2,2)}, v{AB+x//2} offset0:{o+2} offset1:{o+3}")
            r.append(f"ds_read_b128 {vr(bf(st,x),4)}, v{UB} offset:{512*x}")
        return r
    def adv():
        r = [f"v_subrev_u32 v{AB+b}, 64, v{AB+b}" for b in range(4)]
        r.append(f"v_subrev_u32 v{UB}, 64, v{UB}")
        return r
    def mf(st):
        r = []
        for aa in range(8):
            for e in range(8 - aa):
                d = ACC + 4*(aa+e)
                r.append(f"v_mfma_f32_16x16x32_bf16 {vr(d,4)}, {vr(af(st,aa),4)}, {vr(bf(st,e),4)}, {vr(d,4)}")
        return r
    for r in reads(0): a(r)
    for r in adv(): a(r)
    if "convearly" not in OPT:
        a("s_lshl_b32 s28, s3, 2")
        a(f"s_add_u32 s28, s28, {FL_FREE - 16}")
        lds_wait(a, "s28", 1, 1, tag+"e", 16, 18, sleep=2)
    stamp(a, 4)
    a("s_mov_b32 s28, 2")
    a.label(f"L_{tag}_loop")
    for st in range(2):
        a("s_waitcnt lgkmcnt(0)")
        M = mf(st); R = reads(1-st) + adv()
        for i, m in enumerate(M):
            a(m)
            if R: a(R.pop(0))
        assert not R
    a("s_sub_u32 s28, s28, 1")
    a("s_cmp_lg_u32 s28, 0")
    a(f"s_cbranch_scc1 L_{tag}_loop")
    stamp(a, 5)
    a(f"s_add_u32 s28, s30, {SIDE_XA}")
    a("s_lshl_b32 s29, s6, 11")
    a(f"s_add_u32 s29, s29, {L2_XB}")
    a("s_cmp_eq_u32 s33, 0")
    a("s_cselect_b32 s34, s28, s29")
    a("s_cselect_b32 s35, s29, s28")
    a("v_lshl_add_u32 v13, v1, 4, s34")
    a("v_lshl_add_u32 v14, v1, 4, s35")
    a("s_lshl_b32 s28, s6, 3")
    a("s_lshl_b32 s29, s33, 2")
    a("s_add_u32 s28, s28, s29")
    a(f"s_add_u32 s28, s28, {FL_X}")
    a("s_xor_b32 s29, s28, 4")
    a("v_lshlrev_b32 v4, 5, v2")
    a("v_lshl_add_u32 v4, v3, 3, v4")
    a("s_lshl_b32 s32, s33, 11")
    a(f"s_add_u32 s34, s30, {SIDE_U + 512}")
    a("s_add_u32 s34, s34, s32")
    a("v_add_u32 v5, s34, v4")
    a("s_waitcnt lgkmcnt(0)")
    UU = 64; PKX = 72; RX = 80
    for ti in range(4):
        a(f"ds_read_b64 {vr(UU+2*ti,2)}, v5 offset:{512*ti}")
    a("s_cmp_eq_u32 s33, 0")
    a("s_cbranch_scc1 L_cv_t0")
    for i in range(8):
        a(f"v_cvt_pk_bf16_f32 v{PKX+i}, v{ACC+2*i}, v{ACC+2*i+1}")
    for i in range(16):
        a(f"v_mov_b32 v{ACC+i}, v{ACC+16+i}")
    a("s_branch L_cv_t1")
    a.label("L_cv_t0")
    for i in range(8):
        a(f"v_cvt_pk_bf16_f32 v{PKX+i}, v{ACC+16+2*i}, v{ACC+16+2*i+1}")
    a.label("L_cv_t1")
    a(f"ds_write_b128 v13, {vr(PKX,4)}")
    a(f"ds_write_b128 v13, {vr(PKX+4,4)} offset:1024")
    lds_set(a, "s28", 1, 16, 17)
    a("s_mov_b32 s31, 0xffff0000")
    a(f"v_lshlrev_b32 v{V_DSK}, 16, v{V_DSK}")
    a("v_lshlrev_b32 v6, 5, v2")
    a("v_lshrrev_b32 v7, 1, v3")
    a("v_lshl_add_u32 v6, v7, 4, v6")
    a("v_and_b32 v7, 1, v3")
    a("v_lshl_add_u32 v6, v7, 9, v6")
    a("s_waitcnt lgkmcnt(3)")
    X = 90
    for ti in range(4):
        for h in range(2):
            a(f"v_lshlrev_b32 v{X}, 16, v{UU+2*ti+h}")
            a(f"v_and_b32 v{X+1}, s31, v{UU+2*ti+h}")
            a(f"v_fmac_f32 v{ACC+4*ti+2*h}, v{X}, v{V_DSK}")
            a(f"v_fmac_f32 v{ACC+4*ti+2*h+1}, v{X+1}, v{V_DSK}")
    lds_wait(a, "s29", 1, 1, "cvx", 16, 18, sleep=0)
    a(f"ds_read_b128 {vr(RX,4)}, v14")
    a(f"ds_read_b128 {vr(RX+4,4)}, v14 offset:1024")
    a("s_lshl_b32 s28, s7, 12")
    a("s_add_u32 s28, s28, s32")
    a(f"s_add_u32 s28, s28, {WS_A}")
    a("s_waitcnt lgkmcnt(0)")
    for i in range(8):
        a(f"v_lshlrev_b32 v{X}, 16, v{RX+i}")
        a(f"v_and_b32 v{X+1}, s31, v{RX+i}")
        a(f"v_add_f32 v{ACC+2*i}, v{ACC+2*i}, v{X}")
        a(f"v_add_f32 v{ACC+2*i+1}, v{ACC+2*i+1}, v{X+1}")
    P = 96
    for pr in range(2):
        t1, t2 = 2*pr, 2*pr+1
        p = P + 4*pr
        a(f"v_cvt_pk_bf16_f32 v{p}, v{ACC+4*t1}, v{ACC+4*t1+1}")
        a(f"v_cvt_pk_bf16_f32 v{p+1}, v{ACC+4*t1+2}, v{ACC+4*t1+3}")
        a(f"v_cvt_pk_bf16_f32 v{p+2}, v{ACC+4*t2}, v{ACC+4*t2+1}")
        a(f"v_cvt_pk_bf16_f32 v{p+3}, v{ACC+4*t2+2}, v{ACC+4*t2+3}")
        a("s_nop 1")
        a(f"v_permlane16_swap_b32 v{p}, v{p+2}")
        a(f"v_permlane16_swap_b32 v{p+1}, v{p+3}")
        a(f"buffer_store_dwordx4 {vr(p,4)}, v6, {S(SRD_WS)}, s28 offen offset:{1024*pr} sc1")
    stamp(a, 6)
    a("s_lshr_b32 s28, s7, 6")
    a(f"s_mul_i32 s28, s28, {FSTR}")
    a("s_and_b32 s29, s7, 63")
    a("s_lshl_b32 s29, s29, 2")
    a("s_add_u32 s28, s28, s29")
    a("s_lshl_b32 s29, s33, 8")
    a("s_add_u32 s28, s28, s29")
    a(f"s_add_u32 s28, s28, {WS_FA}")
    a("s_waitcnt vmcnt(0)")
    publish(a, "s28", 3, 4)

def w2_voffs(a, V):
    a("v_lshrrev_b32 v2, 3, v1")
    a("v_and_b32 v3, 7, v1")
    a("v_bfe_u32 v4, v1, 4, 2")
    a("v_lshlrev_b32 v4, 1, v4")
    a("v_xor_b32 v3, v3, v4")
    a("v_lshlrev_b32 v2, 10, v2")
    a(f"v_lshl_add_u32 v{V}, v3, 4, v2")
    for k in range(1, 4):
        a(f"v_add_u32 v{V+k}, {k*7168}, v{V}")

def g2_map(a):
    a("s_bfe_u32 s4, s2, 0x20001")
    a("s_and_b32 s28, s2, 1")
    a("s_xor_b32 s28, s28, 1")
    a("s_lshl_b32 s28, s28, 2")
    a("s_add_u32 s4, s4, s28")
    a("s_lshl_b32 s4, s4, 2")
    a("s_lshr_b32 s5, s2, 3")
    a("s_and_b32 s28, s5, 3")
    a("s_add_u32 s4, s4, s28")
    a("s_lshr_b32 s5, s5, 2")

def gen_w2pre(a):
    V = 8
    a("s_lshl_b32 s7, s2, 1")
    a("s_add_u32 s7, s7, s6")
    a("s_lshl_b32 s28, s7, 1")
    a("v_mov_b32 v3, s28")
    a(f"global_load_ushort v{V_DSK}, v3, {pp(I_DSK)}")
    g2_map(a)
    w2_voffs(a, V)
    a("s_lshl_b32 s28, s6, 16")
    a("s_lshl_b32 s29, s5, 7")
    a("s_add_u32 s28, s28, s29")
    a("s_lshl_b32 s29, s6, 12")
    a(f"s_add_u32 s29, s29, {L2_W2}")
    a(f"v_mov_b32 v18, {FL_VALID}")
    a("v_mov_b32 v16, 0")
    a("v_mov_b32 v17, 1")
    a("s_mov_b32 s33, 0")
    a.label("L_w2_part")
    a("s_cmp_eq_u32 s33, 2")
    a("s_cselect_b32 s31, 2, 6")
    a.label("L_w2_loop")
    a("s_mov_b32 m0, s29")
    a("s_add_u32 s29, s29, 8192")
    for k in range(4):
        a(f"buffer_load_dwordx4 v{V+k}, {S(SRD_W2)}, s28 offen offset:{k*1024} lds")
    a("s_add_u32 s28, s28, 131072")
    a("s_sub_u32 s31, s31, 1")
    a("s_cmp_lg_u32 s31, 0")
    a("s_cbranch_scc1 L_w2_loop")
    a("s_add_u32 s33, s33, 1")
    a("s_cmp_eq_u32 s33, 3")
    a("s_cbranch_scc1 L_w2_done")
    a("s_waitcnt vmcnt(24)")
    bar(a)
    a("s_branch L_w2_part")
    a.label("L_w2_done")
    a("s_lshl_b32 s28, s6, 2")
    a(f"s_add_u32 s29, s28, {FL_W2}")
    a(f"s_add_u32 s28, s28, {FL_EO}")
    a("s_lshl_b32 s30, s6, 13")
    a(f"s_add_u32 s30, s30, {L_SIDE}")
    a("s_waitcnt vmcnt(0)")
    lds_set(a, "s29", 1, 21, 22)
    lds_wait(a, "s28", 1, 1, "w2eo", 17, 22, sleep=2)
W2P1 = 5
RPRE = 3
PFDELAY = 0
W2PFB = 3
UTB = 6
APOLL = 9
VSLEEP = 32

def gen_g2(a):
    ACC = 192; HF = 32; WF = 80; VW2 = 8; VH = 12; WA = 16
    HD = 3
    HSC = "" if "nosc1ld" in OPT else " sc1"
    def acc(nu, m): return ACC + 4*(nu*4+m)
    def hf(n, m): return HF + 16*(n % HD) + 4*m
    def wf(i, nu): return WF + 16*i + 4*nu
    def gs(i):
        if "g2st" in OPT: stamp(a, i, "any")
    g2_map(a)
    a("v_bfe_u32 v2, v1, 2, 2")
    a("v_and_b32 v3, 3, v1")
    a("v_lshrrev_b32 v4, 4, v1")
    a("v_lshl_add_u32 v6, v4, 2, v2")
    a("v_lshlrev_b32 v6, 7, v6")
    a("v_lshl_add_u32 v6, v3, 3, v6")
    a(f"s_mul_i32 s29, s3, 28672")
    a(f"s_add_u32 s29, s29, {L2_W2}")
    a("v_add_u32 v6, s29, v6")
    a("v_lshrrev_b32 v7, 1, v2")
    a("v_and_b32 v4, 1, v4")
    a("v_lshl_or_b32 v7, v4, 1, v7")
    for nu in range(4):
        a(f"v_xor_b32 v5, {nu}, v7")
        a(f"v_lshl_add_u32 v{WA+nu}, v5, 5, v6")
    lds_wait(a, FL_W2, 2, 1, "g2w2", 2, 4, sleep=1)
    gs(0)
    def trreads(i):
        for nu in range(4):
            for h in range(2):
                a(f"ds_read_b64_tr_b16 {vr(wf(i,nu)+2*h,2)}, v{WA+nu} offset:{i*4096+h*2048}")
    for i in range(7): trreads(i)
    w2_voffs(a, VW2)
    a(f"v_lshlrev_b32 v{VH}, 4, v1")
    for m in range(1, 4):
        a(f"v_add_u32 v{VH+m}, {m*57344}, v{VH}")
    a(f"s_mul_i32 s30, s4, {4*57344}")
    a(f"s_mul_i32 s31, s3, {14*1024}")
    a("s_add_u32 s30, s30, s31")
    a(f"s_mul_i32 s31, s3, {14*32768}")
    a("s_lshl_b32 s33, s5, 7")
    a("s_add_u32 s31, s31, s33")
    a("s_add_u32 s31, s31, 32768")
    a(f"s_mul_i32 s32, s4, {FSTR}")
    a("s_mul_i32 s33, s3, 28")
    a("s_add_u32 s32, s32, s33")
    a(f"s_add_u32 s32, s32, {WS_FH}")
    a(f"s_add_u32 s34, s32, {32*FSTR}")
    a("v_min_u32 v22, 6, v1")
    a("v_lshlrev_b32 v22, 2, v22")
    a("s_mul_i32 s33, s3, 24")
    a("s_sub_u32 s33, 112, s33")
    a("v_mov_b32 v25, s33")
    a("v_cmp_gt_u32 vcc, 7, v1")
    a("s_nop 1")
    a("v_cndmask_b32 v25, v25, v22, vcc")
    a("s_waitcnt vmcnt(0)")
    a("s_cmp_eq_u32 s35, 0")
    a("s_cbranch_scc1 L_g2_nopub")
    publish(a, "s35", 3, 4)
    a.label("L_g2_nopub")
    stamp(a, 5)
    gs(1)
    vm = VM(a)
    vm.q = ["pub"]
    def pollop(reg, soff, tag):
        va = 25 if tag == "fb" else 22
        vm.op(f"buffer_load_dword v{reg}, v{va}, {S(SRD_WS)}, {soff} offen sc1", tag)
    def pollchk(reg, soff, tag, sleep):
        va = 25 if tag == "fb" else 22
        vm.wait(tag)
        a(f"v_cmp_ne_u32 vcc, 1, v{reg}")
        a(f"s_cbranch_vccz L_g2_{tag}_ok")
        a.spin(f"L_g2_{tag}", sleep)
        a(f"buffer_load_dword v{reg}, v{va}, {S(SRD_WS)}, {soff} offen sc1")
        a("s_waitcnt vmcnt(0)")
        a(f"v_cmp_ne_u32 vcc, 1, v{reg}")
        a(f"s_cbranch_vccnz L_g2_{tag}")
        a.label(f"L_g2_{tag}_ok")
    def refill(i):
        a(f"s_add_u32 m0, s29, {i*4096}")
        a("s_nop 0")
        for k in range(4):
            vm.op(f"buffer_load_dwordx4 v{VW2+k}, {S(SRD_W2)}, s31 offen offset:{k*1024} lds", f"w_{i}")
        a("s_add_u32 s31, s31, 65536")
    def hload(n):
        for m in range(4):
            vm.op(f"buffer_load_dwordx4 {vr(hf(n,m),4)}, v{VH+m}, {S(SRD_WS)}, s30 offen{HSC}", f"h_{n}")
        if n == 6: a(f"s_sub_u32 s30, s30, {6*2048 - 1024}")
        else: a("s_add_u32 s30, s30, 2048")
    a("s_waitcnt lgkmcnt(0)")
    refill(0)
    pollop(23, "s32", "fa")
    for i in range(1, RPRE): refill(i)
    pollchk(23, "s32", "fa", 2)
    stamp(a, 6)
    gs(2)
    for n in range(HD): hload(n)
    nref = RPRE
    for n in range(14):
        i = n % 7
        if n >= 6 and n < 13:
            vm.wait(f"w_{(n+1)%7}")
            trreads((n+1) % 7)
        vm.wait(f"h_{n}")
        if n >= 7:
            a(f"s_waitcnt lgkmcnt({8 if n < 13 else 0})")
        for nu in range(4):
            for m in range(4):
                d = acc(nu, m)
                c = "0" if n == 0 else vr(d, 4)
                a(f"v_mfma_f32_16x16x32_bf16 {vr(d,4)}, {vr(wf(i,nu),4)}, {vr(hf(n,m),4)}, {c}")
        if n == 0: gs(3)
        if n == 6: gs(4)
        if n + HD == 7 - 2: pollop(24, "s34", "fb")
        if n + HD == 7: pollchk(24, "s34", "fb", 1)
        if n + HD < 14: hload(n + HD)
        if nref < 7:
            refill(nref); nref += 1
        if n == 7:
            a("s_lshl_b32 s33, s3, 6")
            a(f"s_mul_i32 s32, s5, {FSTR}")
            a("s_add_u32 s32, s32, s33")
            a("s_lshr_b32 s33, s4, 4")
            a("s_lshl_b32 s33, s33, 8")
            a("s_add_u32 s32, s32, s33")
            a(f"s_add_u32 s32, s32, {WS_FA}")
            a("v_and_b32 v22, 15, v1")
            a("v_lshlrev_b32 v22, 2, v22")
            a("v_lshrrev_b32 v2, 3, v1")
            a("v_and_b32 v3, 7, v1")
            a("v_bfe_u32 v4, v1, 4, 2")
            a("v_lshlrev_b32 v4, 1, v4")
            a("v_xor_b32 v3, v3, v4")
            a("v_lshlrev_b32 v2, 12, v2")
            a("v_lshl_add_u32 v26, v3, 4, v2")
            a(f"v_add_u32 v27, {8*4096-1024}, v26")
            a("v_and_b32 v28, 15, v1")
            a("v_lshlrev_b32 v28, 3, v28")
            a("s_lshl_b32 s34, s5, 18")
            a("s_lshl_b32 s33, s3, 16")
            a("s_add_u32 s34, s34, s33")
            a("s_lshl_b32 s33, s4, 7")
            a("s_add_u32 s34, s34, s33")
            a(f"s_add_u32 s34, s34, {WS_A}")
            a("s_lshl_b32 s31, s4, 9")
            a("s_lshl_b32 s33, s3, 7")
            a("s_add_u32 s31, s31, s33")
            a(f"s_add_u32 s31, s31, {WS_G}")
            vm.op(f"buffer_load_dwordx2 v[20:21], v28, {S(SRD_WS)}, s31 offen sc1", "g")
        if n == APOLL:
            pollop(23, "s32", "fc")
            gs(5)
        if n == APOLL + 2:
            vm.wait("fc")
            a("v_cmp_ne_u32 s[6:7], 1, v23")
            a("s_lshl_b32 s33, s3, 11")
            a(f"s_add_u32 m0, s33, {L2_AT}")
            a("s_nop 1")
            a("s_cmp_lg_u64 s[6:7], 0")
            a(f"s_cselect_b32 s35, 0x7ffffff0, s34")
            vm.op(f"buffer_load_dwordx4 v26, {S(SRD_WS)}, s35 offen sc1 lds", "at")
            vm.op(f"buffer_load_dwordx4 v27, {S(SRD_WS)}, s35 offen offset:1024 sc1 lds", "at")
    gs(6)
    stamp(a, 7)
    a("s_cmp_eq_u64 s[6:7], 0")
    a("s_cbranch_scc1 L_g2_fc_ok")
    a.spin("L_g2_fc", 0)
    a(f"buffer_load_dword v23, v22, {S(SRD_WS)}, s32 offen sc1")
    a("s_waitcnt vmcnt(0)")
    a("v_cmp_ne_u32 vcc, 1, v23")
    a("s_cbranch_vccz L_g2_fc2")
    a("s_sleep 6")
    a("s_branch L_g2_fc")
    a.label("L_g2_fc2")
    a(f"buffer_load_dwordx4 v26, {S(SRD_WS)}, s34 offen sc1 lds")
    a(f"buffer_load_dwordx4 v27, {S(SRD_WS)}, s34 offen offset:1024 sc1 lds")
    a.label("L_g2_fc_ok")
    a("s_nop 7")
    a("v_lshl_add_u32 v5, v1, 4, s29")
    for m in range(4):
        for nu in range(4):
            a(f"ds_write_b128 v5, {vr(acc(nu,m),4)} offset:{(m*4+nu)*1024}")
    a("s_lshl_b32 s33, s3, 12")
    a(f"s_add_u32 s33, s33, {L2_W2}")
    a("v_lshl_add_u32 v6, v1, 4, s33")
    a(f"v_add_u32 v7, {2*28672}, v6")
    a("v_bfe_u32 v2, v1, 2, 2")
    a("v_and_b32 v3, 3, v1")
    a("v_lshrrev_b32 v4, 4, v1")
    a("v_lshl_add_u32 v8, v4, 2, v2")
    a("v_lshlrev_b32 v8, 7, v8")
    a("v_lshl_add_u32 v8, v3, 3, v8")
    a("v_lshrrev_b32 v9, 1, v2")
    a("v_and_b32 v4, 1, v4")
    a("v_lshl_or_b32 v9, v4, 1, v9")
    a("v_xor_b32 v9, s3, v9")
    a("v_lshl_add_u32 v8, v9, 5, v8")
    a(f"v_add_u32 v8, {L2_AT}, v8")
    a("s_mov_b32 s31, 0xffff0000")
    a("v_and_b32 v2, 15, v1")
    a("v_lshlrev_b32 v2, 10, v2")
    a("v_lshrrev_b32 v3, 4, v1")
    a("v_lshl_add_u32 v2, v3, 4, v2")
    a("s_lshl_b32 s32, s4, 16")
    a("s_lshl_b32 s33, s3, 14")
    a("s_add_u32 s32, s32, s33")
    a("s_lshl_b32 s33, s5, 7")
    a("s_add_u32 s32, s32, s33")
    a("s_waitcnt vmcnt(0) lgkmcnt(0)")
    gs(7)
    a("s_barrier")
    R = 64
    for ww in range(4):
        for nu in range(4):
            a(f"ds_read_b128 {vr(R+16*ww+4*nu,4)}, v{6 + ww//2} offset:{(ww%2)*28672 + nu*1024}")
    AT = 32
    for nu in range(4):
        a(f"ds_read_b64_tr_b16 {vr(AT+2*nu,2)}, v8 offset:{nu*2048}")
    a("s_waitcnt lgkmcnt(12)")
    for i in range(0, 16, 2):
        a(f"v_pk_add_f32 {vr(R+i,2)}, {vr(R+i,2)}, {vr(R+16+i,2)}")
    a("s_waitcnt lgkmcnt(4)")
    for i in range(0, 16, 2):
        a(f"v_pk_add_f32 {vr(R+32+i,2)}, {vr(R+32+i,2)}, {vr(R+48+i,2)}")
    for i in range(0, 16, 2):
        a(f"v_pk_add_f32 {vr(R+i,2)}, {vr(R+i,2)}, {vr(R+32+i,2)}")
    for i in range(0, 16, 2):
        a(f"v_pk_mul_f32 {vr(R+i,2)}, {vr(R+i,2)}, v[20:21] op_sel:[0,1] op_sel_hi:[1,1]")
    a("s_waitcnt lgkmcnt(0)")
    for i in range(8):
        a(f"v_lshlrev_b32 v40, 16, v{AT+i}")
        a(f"v_and_b32 v41, s31, v{AT+i}")
        a(f"v_fmac_f32 v{R+2*i}, v40, v20")
        a(f"v_fmac_f32 v{R+2*i+1}, v41, v20")
    P = 44
    for pr in range(2):
        p = P + 4*pr
        n0, n1 = 2*pr, 2*pr+1
        a(f"v_cvt_pk_bf16_f32 v{p}, v{R+4*n0}, v{R+4*n0+1}")
        a(f"v_cvt_pk_bf16_f32 v{p+1}, v{R+4*n0+2}, v{R+4*n0+3}")
        a(f"v_cvt_pk_bf16_f32 v{p+2}, v{R+4*n1}, v{R+4*n1+1}")
        a(f"v_cvt_pk_bf16_f32 v{p+3}, v{R+4*n1+2}, v{R+4*n1+3}")
        a("s_nop 1")
        a(f"v_permlane32_swap_b32 v{p}, v{p+2}")
        a(f"v_permlane32_swap_b32 v{p+1}, v{p+3}")
        a("s_nop 1")
        a(f"v_permlane16_swap_b32 v{p}, v{p+2}")
        a(f"v_permlane16_swap_b32 v{p+1}, v{p+3}")
        a(f"buffer_store_dwordx4 {vr(p,4)}, v2, {S(SRD_OUT)}, s32 offen offset:{64*pr}")

TRX = 128
GW = 192
def gen_tr_loads(a):
    a("s_sub_u32 s24, s2, 224")
    a("s_lshl_b32 s25, s24, 2")
    a("s_add_u32 s25, s25, s3")
    a("s_lshl_b32 s28, s25, 14")
    a("v_lshlrev_b32 v9, 4, v1")
    for r in range(16):
        a(f"buffer_load_dwordx4 {vr(TRX+4*r,4)}, v9, {S(SRD_X)}, s28 offen offset:{(r%4)*1024}")
        if r % 4 == 3: a("s_add_u32 s28, s28, 4096")
    a(f"global_load_dwordx4 {vr(GW,4)}, v9, {pp(I_GW)}")
    return 17

def gen_transpose(a):
    X = TRX
    a("s_mov_b32 s6, s24")
    a("s_mov_b32 s7, s25")
    srd(a, SRD_OUT, ptr(I_OUT), 2048*512*2)
    a("v_lshrrev_b32 v5, 4, v1")
    a("s_mov_b32 s31, 0xffff0000")
    a("s_waitcnt vmcnt(0)")
    for i in range(4):
        a(f"v_lshlrev_b32 v{20+2*i}, 16, v{GW+i}")
        a(f"v_and_b32 v{21+2*i}, s31, v{GW+i}")
    SS = 64
    def grow(r):
        T = 32 + 8*(r & 1)
        for i in range(4):
            a(f"v_lshlrev_b32 v{T+2*i}, 16, v{X+4*r+i}")
            a(f"v_and_b32 v{T+2*i+1}, s31, v{X+4*r+i}")
        for i in range(4):
            a(f"v_pk_mul_f32 {vr(T+2*i,2)}, {vr(T+2*i,2)}, {vr(20+2*i,2)}")
        for i in range(4):
            a(f"v_cvt_pk_bf16_f32 v{T+2*i}, v{T+2*i}, v{T+2*i+1}")
        for i in range(4):
            a(f"v_and_b32 v{T+2*i+1}, s31, v{T+2*i}")
            a(f"v_lshlrev_b32 v{T+2*i}, 16, v{T+2*i}")
        a(f"v_pk_add_f32 {vr(T,2)}, {vr(T,2)}, {vr(T+2,2)}")
        a(f"v_pk_add_f32 {vr(T+4,2)}, {vr(T+4,2)}, {vr(T+6,2)}")
        a(f"v_pk_add_f32 {vr(T,2)}, {vr(T,2)}, {vr(T+4,2)}")
        a(f"v_add_f32 v{SS+r}, v{T}, v{T+1}")
    for r in range(16): grow(r)
    a("s_nop 1")
    for i in range(8):
        a(f"v_permlane32_swap_b32 v{SS+i}, v{SS+8+i}")
    for i in range(8):
        a(f"v_add_f32 v{SS+i}, v{SS+i}, v{SS+8+i}")
    a("s_nop 1")
    for i in range(4):
        a(f"v_permlane16_swap_b32 v{SS+i}, v{SS+4+i}")
    for i in range(4):
        a(f"v_add_f32 v{SS+i}, v{SS+i}, v{SS+4+i}")
    for sh in (8, 4, 2, 1):
        a("s_nop 0")
        for i in range(4):
            a(f"v_add_f32_dpp v{SS+i}, v{SS+i}, v{SS+i} row_ror:{sh} row_mask:0xf bank_mask:0xf")
    a("v_and_b32 v7, 3, v1")
    for i in range(1, 4):
        a(f"v_cmp_eq_u32 vcc, {i}, v7")
        a("s_nop 1")
        a(f"v_cndmask_b32 v{SS}, v{SS}, v{SS+i}, vcc")
    a(f"v_cvt_pk_bf16_f32 v{SS}, v{SS}, v{SS}")
    a(f"v_and_b32 v{SS}, s31, v{SS}")
    a(f"v_mul_f32 v{SS}, {f2u(-LOG2E)}, v{SS}")
    a(f"v_exp_f32 v{SS}, v{SS}")
    a("s_nop 0")
    a(f"v_add_f32 v{SS}, 1.0, v{SS}")
    a(f"v_rcp_f32 v{SS}, v{SS}")
    a("s_nop 0")
    a(f"v_cvt_pk_bf16_f32 v{SS}, v{SS}, v{SS}")
    a(f"v_and_b32 v{SS}, s31, v{SS}")
    a(f"v_sub_f32 v{SS+1}, 1.0, v{SS}")
    a(f"v_cvt_pk_bf16_f32 v{SS+1}, v{SS+1}, v{SS+1}")
    a(f"v_and_b32 v{SS+1}, s31, v{SS+1}")
    a("v_lshl_add_u32 v7, v5, 2, v7")
    a("v_lshlrev_b32 v7, 3, v7")
    a("s_lshl_b32 s28, s7, 7")
    a(f"s_add_u32 s28, s28, {WS_G}")
    a("s_mov_b32 s34, 0x000f000f")
    a("s_mov_b32 s35, 0x000f000f")
    a("s_mov_b64 exec, s[34:35]")
    a(f"buffer_store_dwordx2 {vr(SS,2)}, v7, {S(SRD_WS)}, s28 offen sc1")
    a("s_mov_b64 exec, -1")
    a("s_waitcnt vmcnt(0)")
    stamp(a, 4)

def gen_kernel(a):
    a.raw(f".globl {KNAME}\n.p2align 8\n.type {KNAME},@function")
    a.label(KNAME)
    a(f"s_load_dwordx16 s[{P0}:{P0+15}], s[0:1], 0")
    a(f"s_load_dwordx16 s[{P0+16}:{P0+31}], s[0:1], 64")
    a(f"s_load_dwordx2 s[{P0+32}:{P0+33}], s[0:1], 128")
    a("s_cmp_ge_u32 s2, 256")
    a("s_cbranch_scc1 L_end")
    if "stamps" in OPT:
        a(f"s_memtime s[{ST0}:{ST0+1}]")
        a(f"s_memrealtime s[{ST0+2}:{ST0+3}]")
    if "nopf" not in OPT:
        a("s_getpc_b64 s[6:7]")
        a.label("L_pc0")
        a("v_lshlrev_b32 v1, 6, v0")
        a("v_min_u32 v1, L_codeend-L_pc0, v1")
        a("global_load_dword v31, v1, s[6:7]")
    a("v_lshrrev_b32 v2, 6, v0")
    a("v_and_b32 v1, 63, v0")
    a("v_readfirstlane_b32 s3, v2")
    a("s_and_b32 s6, s2, 7")
    a("s_lshr_b32 s7, s2, 3")
    a("s_and_b32 s4, s6, 1")
    a("s_lshl_b32 s4, s4, 2")
    a("s_and_b32 s30, s7, 3")
    a("s_add_u32 s4, s4, s30")
    a("s_lshr_b32 s5, s6, 1")
    a("s_mul_i32 s5, s5, 7")
    a("s_lshr_b32 s30, s7, 2")
    a("s_add_u32 s5, s5, s30")
    def common_srds():
        a("s_mov_b32 s0, 0x100000")
        srd(a, SRD_X, ptr(I_U), 2048*512*2)
        srd(a, SRD_W1, ptr(I_W1), 512*1792*2)
        srd(a, SRD_WS, ptr(I_WS), WS_SIZE)
        srd(a, SRD_W2, ptr(I_W2), 1792*512*2)
        srd(a, SRD_OUT, ptr(I_OUT), 2048*512*2)
    a("s_cmp_lt_u32 s3, 4")
    a("s_cbranch_scc1 L_w03")
    a("s_cmp_ge_u32 s3, 6")
    a("s_cbranch_scc1 L_kfin")
    a("s_cmp_lg_u32 s3, 4")
    a("s_cbranch_scc1 L_noinit")
    a("v_mov_b32 v3, 0")
    a(f"v_mov_b32 v4, {FLB}")
    a("v_lshl_add_u32 v4, v1, 2, v4")
    a("ds_write_b32 v4, v3")
    a.label("L_noinit")
    gen_loader_setup(a)
    a("s_waitcnt lgkmcnt(0)")
    common_srds()
    a("s_barrier")
    a("s_cmp_ge_u32 s2, 224")
    a("s_cbranch_scc1 L_spare45")
    gen_loader(a)
    a.label("L_ph2_loader")
    gen_w2pre(a)
    stamp(a, 2)
    stamp(a, 3)
    a("s_mov_b32 s33, 1")
    a("s_branch L_conv")
    a.label("L_w03")
    gen_ktab_addr(a)
    a("v_lshrrev_b32 v21, 3, v1")
    a(f"v_mul_u32_u24 v21, {64*3584}, v21")
    a("v_and_b32 v22, 7, v1")
    a("v_lshl_add_u32 v21, v22, 7, v21")
    a("s_lshr_b32 s32, s3, 1")
    a("s_mul_i32 s32, s32, 3")
    a("s_add_u32 s32, s32, 2")
    a(f"s_mul_i32 s32, s32, {64*3584}")
    a("s_lshl_b32 s33, s2, 10")
    a("s_add_u32 s32, s32, s33")
    a("s_waitcnt lgkmcnt(0)")
    gen_ktab_loads(a)
    a("s_barrier")
    stamp(a, 1, "kst")
    common_srds()
    a("s_cmp_ge_u32 s2, 224")
    a("s_cbranch_scc1 L_kt")
    gen_g1_setup(a)
    a("s_bitcmp1_b32 s3, 0")
    a(f"s_cselect_b32 s{SRD_W1}, s{ptr(I_W3)}, s{ptr(I_W1)}")
    a(f"s_cselect_b32 s{SRD_W1+1}, s{ptr(I_W3)+1}, s{ptr(I_W1)+1}")
    a(f"s_and_b32 s{SRD_W1+1}, s{SRD_W1+1}, 0xffff")
    if "latewpf" in OPT:
        a("v_mov_b32 v17, v21")
        a("s_mov_b32 s1, s32")
    if "nowpf" in OPT or "latewpf" in OPT: a("s_mov_b32 s32, 0x7ffffff0")
    a("s_mov_b64 exec, 0xffffff")
    a(f"buffer_load_dword v23, v21, {S(SRD_W1)}, s32 offen")
    a("s_mov_b64 exec, -1")
    stamp(a, 2, "kst")
    a.label("L_kt")
    gen_ktab(a, 17)
    a("s_cmp_ge_u32 s2, 224")
    a("s_cbranch_scc1 L_tr_post")
    if "latewpf" in OPT:
        a("s_mov_b64 exec, 0xffffff")
        a(f"buffer_load_dword v23, v17, {S(SRD_W1)}, s1 offen")
        a("s_mov_b64 exec, -1")
    G1G2[0] = True
    gen_g1(a)
    a.label("L_g2")
    ampx = [o for o in OPT if o.startswith("ampx")]
    if ampx:
        wa = int(ampx[0][5:8])
        a(f"s_cmp_lg_u32 s2, {wa}")
        a("s_cbranch_scc1 L_ampx")
        a("s_cmp_lg_u32 s3, 0")
        a("s_cbranch_scc1 L_ampx")
        a("v_mov_b32 v2, 0")
        a(f"v_mov_b32 v3, s{ST0+2}")
        a(f"global_store_dword v2, v3, {pp(I_DBG)} offset:160 sc1")
        a.label("L_ampx")
    gen_g2(a)
    if "stamps" in OPT:
        a("s_waitcnt vmcnt(0)")
        stamp(a, 1)
    G1G2[0] = False
    amp = [o for o in OPT if o.startswith("amp")]
    if amp and amp[0][3] == "x":
        j = int(amp[0][4]); wa = int(amp[0][5:8]); wb = int(amp[0][8:11])
        a(f"s_cmp_lg_u32 s2, {wb}")
        a("s_cbranch_scc1 L_ampskip")
        a("s_cmp_lg_u32 s3, 0")
        a("s_cbranch_scc1 L_ampskip")
        a("v_mov_b32 v1, 0")
        a(f"global_load_dword v2, v1, {pp(I_DBG)} offset:160 sc1")
        a("s_waitcnt vmcnt(0)")
        a("v_readfirstlane_b32 s28, v2")
        a("s_nop 3")
        a(f"s_sub_u32 s28, s{ST0+2+4*j}, s28")
        a("s_add_u32 s28, s28, 200")
        a("s_lshl_b32 s28, s28, 3")
        a("s_min_u32 s28, s28, 100000")
        a.label("L_amp")
        a("s_memrealtime s[30:31]")
        a("s_waitcnt lgkmcnt(0)")
        a(f"s_sub_u32 s29, s30, s{ST0+2+4*1}")
        a("s_cmp_lt_u32 s29, s28")
        a("s_cbranch_scc1 L_amp")
        a.label("L_ampskip")
    elif amp:
        i, j = int(amp[0][3]), int(amp[0][4])
        a("s_cmp_lg_u32 s2, 100")
        a("s_cbranch_scc1 L_ampskip")
        a("s_cmp_lg_u32 s3, 0")
        a("s_cbranch_scc1 L_ampskip")
        a(f"s_sub_u32 s28, s{ST0+2+4*j}, s{ST0+2+4*i}")
        a("s_lshl_b32 s28, s28, 3")
        a("s_min_u32 s28, s28, 100000")
        a.label("L_amp")
        a("s_memrealtime s[30:31]")
        a("s_waitcnt lgkmcnt(0)")
        a(f"s_sub_u32 s29, s30, s{ST0+2+4*1}")
        a("s_cmp_lt_u32 s29, s28")
        a("s_cbranch_scc1 L_amp")
        a.label("L_ampskip")
    else:
        stamp_flush(a, 8)
    a("s_endpgm")
    a.label("L_tr_post")
    gen_tr_loads(a)
    gen_transpose(a)
    a("s_lshl_b32 s28, s3, 2")
    a(f"s_add_u32 s28, s28, {FL_FREE}")
    lds_set(a, "s28", 1, 8, 10)
    lds_wait(a, FL_VALID, 1, 1, "trv", 3, 4, sleep=4)
    a(f"s_mul_i32 s35, s6, {FSTR}")
    a("s_lshl_b32 s28, s3, 2")
    a("s_add_u32 s35, s35, s28")
    a(f"s_add_u32 s35, s35, {WS_FH + 32*FSTR + 112}")
    publish(a, "s35", 3, 4)
    a("s_mov_b32 s35, 0")
    a("s_branch L_g2")
    a.label("L_spare45")
    a("s_sub_u32 s6, s3, 4")
    a("s_cmp_lg_u32 s2, 255")
    a("s_cbranch_scc1 L_sp_bar")
    a("s_cmp_lg_u32 s3, 4")
    a("s_cbranch_scc1 L_sp_bar")
    for i in range(4):
        a(f"v_mov_b32 v{4+i}, 0")
    a("v_lshrrev_b32 v2, 3, v1")
    a(f"v_mul_u32_u24 v2, {FSTR}, v2")
    a("v_and_b32 v3, 7, v1")
    a("v_lshl_add_u32 v2, v3, 4, v2")
    a(f"s_mov_b32 s28, {WS_FH}")
    for i in range(12):
        a(f"buffer_store_dwordx4 v[4:7], v2, {S(SRD_WS)}, s28 offen sc1")
        a(f"s_add_u32 s28, s28, {8*FSTR}")
    a(f"s_mov_b32 s28, {WS_FA}")
    for i in range(4):
        a(f"buffer_store_dwordx4 v[4:7], v2, {S(SRD_WS)}, s28 offen offset:{i*128} sc1")
    a("v_mov_b32 v3, 1")
    a("s_waitcnt vmcnt(0)")
    a("s_mov_b64 exec, 1")
    a(f"global_store_dword v4, v3, {pp(I_DBG)} sc1")
    a("s_mov_b64 exec, -1")
    a.label("L_sp_bar")
    lds_wait(a, FL_KG, 4, 1, "spring", 17, 22, sleep=4)
    lds_wait(a, FL_TR, 1, 1, "spun", 17, 22, sleep=4)
    a("s_branch L_ph2_loader")
    a.label("L_kfin")
    a("s_sub_u32 s6, s3, 6")
    a("s_lshl_b32 s7, s2, 1")
    a("s_add_u32 s7, s7, s6")
    a("s_lshl_b32 s30, s6, 13")
    a(f"s_add_u32 s30, s30, {L_SIDE}")
    a("s_lshl_b32 s28, s7, 1")
    a("v_mov_b32 v16, s28")
    a("s_waitcnt lgkmcnt(0)")
    common_srds()
    a(f"global_load_ushort v{V_DSK}, v16, {pp(I_DSK)}")
    a("s_cmp_eq_u32 s6, 0")
    a("s_cbranch_scc1 L_kf_w6")
    gen_unit_load(a)
    a("s_barrier")
    gen_unit(a)
    lds_set(a, FL_TR, 1, 2, 3)
    a("s_branch L_kf_go")
    a.label("L_kf_w6")
    a("s_barrier")
    a.label("L_kf_go")
    gen_kfin_addr(a)
    gen_kfin(a)
    stamp(a, 3)
    a("s_mov_b32 s33, 0")
    a.label("L_conv")
    gen_conv(a)
    stamp(a, 7)
    stamp_flush(a, 8)
    a.label("L_end")
    a.label("L_codeend")
    a("s_endpgm")

def kd(name, vgpr, sgpr=102):
    return f""".p2align 6
.amdhsa_kernel {name}
  .amdhsa_next_free_vgpr {vgpr}
  .amdhsa_next_free_sgpr {sgpr}
  .amdhsa_accum_offset {vgpr}
  .amdhsa_group_segment_fixed_size 0
  .amdhsa_kernarg_size 136
  .amdhsa_user_sgpr_count 2
  .amdhsa_user_sgpr_kernarg_segment_ptr 1
  .amdhsa_system_sgpr_workgroup_id_x 1
.end_amdhsa_kernel"""

def main():
    out = sys.argv[1] if len(sys.argv) > 1 else "k.s"
    if len(sys.argv) > 2:
        OPT.update(sys.argv[2].split(","))
    global PFDELAY
    for o in OPT:
        if o.startswith("pfd"): PFDELAY = int(o[3:])
        if o.startswith("apoll"): globals()["APOLL"] = int(o[5:])
        if o.startswith("rpre"): globals()["RPRE"] = int(o[4:])
        if o.startswith("hd"): globals()["HDEPTH"] = int(o[2:])
    OPT.add("nowalk")
    a = Asm()
    a.raw(f"; @launch grid=(256,1,1) block=(512,1,1) lds={LDS_SIZE}")
    a.raw('.amdgcn_target "amdgcn-amd-amdhsa--gfx950"')
    a.raw(".text")
    gen_kernel(a)
    a.raw('.section .rodata,"a"')
    a.raw(kd(KNAME, 256))
    open(out, "w").write(a.text())

if __name__ == "__main__":
    main()
```

```python
import sys, struct, math

KNAME = "gated_mix__ssm_conv_s4__glu_gated_swiglu__prompt_kernel"
OPT = set()

def f2u(x):
    return struct.unpack("<I", struct.pack("<f", x))[0]

import re
def est_size(s):
    m = s.split()[0]
    lit = 0
    for tok in re.findall(r"(?<![\w\[:])(-?(?:0x[0-9a-fA-F]+|\d+))(?![\w\]:.])", s.split(None, 1)[1] if " " in s else ""):
        v = int(tok, 0)
        if not (-16 <= v <= 64): lit = 4
    if m.startswith(("ds_", "buffer_", "global_", "v_mfma", "v_pk_", "s_load", "s_mem")): return 8
    if m.startswith("s_"):
        if m in ("s_waitcnt", "s_nop", "s_sleep", "s_branch", "s_barrier", "s_setprio", "s_endpgm") or m.startswith("s_cbranch"): return 4
        return 4 + lit
    if m in ("v_fma_f32", "v_lshl_add_u32", "v_lshl_or_b32", "v_add3_u32", "v_bfe_u32", "v_min3_u32", "v_cvt_pk_bf16_f32", "v_perm_b32",
             "v_alignbit_b32", "v_and_or_b32", "v_mul_lo_u32") or "dpp" in m or "-v" in s: return 8
    return 4 + lit

HOP = 56
class Asm:
    def __init__(self):
        self.L = []
        self.walk = None
    def _hop(self):
        name, k, _ = self.walk
        self.L.append(f"Lh_{name}_{k}:")
        self.L.append(f"    s_cbranch_execz Lh_{name}_{k+1}")
        self.walk = [name, k+1, 4]
    def walk_begin(self, name):
        if "nowalk" in OPT: return
        self.walk = [name, 0, 0]
        self._hop()
    def walk_end(self, to="L_walk_ret"):
        if "nowalk" in OPT: return
        name, k, _ = self.walk
        self.L.append(f"Lh_{name}_{k}:")
        self.L.append(f"    s_cbranch_execz {to}")
        self.walk = None
    def __call__(self, s):
        self.L.append("    " + s)
        if self.walk is not None:
            self.walk[2] += est_size(s)
            if self.walk[2] >= HOP:
                self._hop()
    def label(self, s):
        self.L.append(s + ":")
    def spin(self, s, sleep=0):
        self.L.append(s + ":")
        self("s_sub_u32 s0, s0, 1")
        self("s_cbranch_scc1 L_end")
        if sleep:
            self(f"s_sleep {sleep}")
    def raw(self, s):
        self.L.append(s)
    def text(self):
        return "\n".join(self.L) + "\n"

RET = 34
def walk(a, label):
    if "nowalk" in OPT: return
    a("s_mov_b64 exec, 0")
    a(f"s_call_b64 s[{RET}:{RET+1}], {label}")
    a("s_mov_b64 exec, -1")

def vr(b, n):
    return f"v[{b}:{b+n-1}]" if n > 1 else f"v{b}"

class VM:
    def __init__(self, a):
        self.a = a; self.q = []
    def op(self, s, tag):
        self.a(s); self.q.append(tag)
    def wait(self, tag):
        idx = max(i for i, t in enumerate(self.q) if t == tag) if tag in self.q else -1
        if idx < 0: return
        n = len(self.q) - 1 - idx
        assert n <= 63
        self.a(f"s_waitcnt vmcnt({n})")
        self.q = self.q[idx+1:]

WS_H    = 0x000000
WS_UT   = 0x800000
WS_G    = 0xA00000
WS_A    = 0xB00000
FSTR    = 4352
WS_FH   = 0xE00000
WS_FA   = 0xE80000
WS_FU   = WS_FH + 64*FSTR
WS_STAMP = 0x1300000
WS_SIZE = 0x1400000
LOG2E = 1.4426950408889634

SRD_X, SRD_W1, SRD_W2, SRD_WS, SRD_OUT = 8, 12, 16, 20, 24
P0 = 36
def ptr(i): return P0 + 2*i
def pp(i): return f"s[{ptr(i)}:{ptr(i)+1}]"
(I_U, I_ARE, I_AIM, I_BRE, I_BIM, I_CRE, I_CIM, I_LDT, I_DSK, I_X, I_W1, I_W3, I_W2, I_GW, I_OUT, I_DBG, I_WS) = range(17)
ST0 = 70
def S(d): return f"s[{d}:{d+3}]"

G1G2 = [False]
def stamp(a, idx, grp="main"):
    if "stamps" not in OPT: return
    if ("kst" in OPT) != (grp == "kst") and grp != "any": return
    if ("itst" in OPT or "g2st" in OPT) and G1G2[0] and grp != "any": return
    a(f"s_memtime s[{ST0+4*idx}:{ST0+1+4*idx}]")
    a(f"s_memrealtime s[{ST0+2+4*idx}:{ST0+3+4*idx}]")
    a("s_waitcnt lgkmcnt(0)")
def stamp_flush(a, n):
    if "stamps" not in OPT or any(o.startswith("amp") for o in OPT): return
    a("s_waitcnt lgkmcnt(0)")
    a("s_lshl_b32 s34, s2, 3")
    a("s_add_u32 s34, s34, s3")
    a("s_lshl_b32 s34, s34, 6")
    a(f"s_add_u32 s34, s34, {WS_STAMP}")
    a("v_mov_b32 v1, 0")
    for i in range(n):
        a(f"v_mov_b32 v2, s{ST0+4*i}")
        a(f"v_mov_b32 v3, s{ST0+2+4*i}")
        a(f"buffer_store_dwordx2 v[2:3], v1, {S(SRD_WS)}, s34 offen offset:{8*i}")
        a("s_nop 1")

SLOT = 49152
L_SIDE = 3*SLOT
SIDE_U = 0
SIDE_C = 6144
SIDE_F = 7680
LDS_SIZE = 163840
FLB = L_SIDE + SIDE_F
FL_FULL = FLB + 0
FL_ISS = FLB + 8
FL_VALID = FLB + 12
FL_FREE = FLB + 16
FL_EO = FLB + 32
FL_W2 = FLB + 40
FL_TR = FLB + 48
FL_TR2 = FLB + 64
FL_KG = FLB + 80
FL_X = FLB + 96
L2_XB = 139520
SIDE_XA = 4608
KT_BASE = 0
UN_T1 = 17408
UN_T2 = 25600
KG_RS = 272
L2_W2 = 0
L2_EO = 114688
L2_AT = 131328
EO_O = 4160

def srd(a, d, base, nbytes):
    a(f"s_mov_b32 s{d}, s{base}")
    a(f"s_and_b32 s{d+1}, s{base+1}, 0xffff")
    a(f"s_mov_b32 s{d+2}, {nbytes}")
    a(f"s_mov_b32 s{d+3}, 0x00020000")

def lds_wait(a, addr, n, val, tag, va, vt, sleep=1):
    a(f"v_mov_b32 v{va}, {addr}")
    a.spin(f"L_lw_{tag}", sleep)
    if n == 1:
        a(f"ds_read_b32 v{vt}, v{va}")
        a("s_waitcnt lgkmcnt(0)")
    elif n == 2:
        a(f"ds_read_b64 {vr(vt,2)}, v{va}")
        a("s_waitcnt lgkmcnt(0)")
        a(f"v_min_u32 v{vt}, v{vt}, v{vt+1}")
    else:
        a(f"ds_read_b128 {vr(vt,4)}, v{va}")
        a("s_waitcnt lgkmcnt(0)")
        a(f"v_min_u32 v{vt}, v{vt}, v{vt+1}")
        a(f"v_min3_u32 v{vt}, v{vt}, v{vt+2}, v{vt+3}")
    a(f"v_cmp_gt_u32 vcc, {val}, v{vt}")
    a(f"s_cbranch_vccnz L_lw_{tag}")

BARN = [0]
def bar(a):
    BARN[0] += 1
    a("s_cmp_ge_u32 s2, 224")
    a(f"s_cbranch_scc1 L_bar{BARN[0]}")
    a("s_barrier")
    a.label(f"L_bar{BARN[0]}")

def lds_set(a, addr, val, va, vv):
    a(f"v_mov_b32 v{va}, {addr}")
    a(f"v_mov_b32 v{vv}, {val}")
    a(f"ds_write_b32 v{va}, v{vv}")

def publish(a, soff, va, vv, sc=" sc1"):
    a(f"v_mov_b32 v{vv}, 1")
    a(f"v_mov_b32 v{va}, 0")
    a("s_mov_b64 exec, 1")
    a(f"buffer_store_dword v{vv}, v{va}, {S(SRD_WS)}, {soff} offen{sc}")
    a("s_mov_b64 exec, -1")

def arrive(a, tag, va, vv):
    a(f"v_mov_b32 v{va}, 0")
    a(f"v_mov_b32 v{vv}, 1")
    a("s_mov_b64 exec, 1")
    a(f"global_atomic_add v{vv+1}, v{va}, v{vv}, {pp(I_DBG)} offset:128 sc0 sc1")
    a("s_waitcnt vmcnt(0)")
    a(f"v_cmp_eq_u32 vcc, 32, v{vv+1}")
    a(f"s_cbranch_vccz L_arr_{tag}")
    a(f"global_store_dword v{va}, v{vv}, {pp(I_DBG)} sc1")
    a.label(f"L_arr_{tag}")
    a("s_mov_b64 exec, -1")

def cmul(a, d, x, y):
    a(f"v_pk_mul_f32 {vr(d,2)}, {vr(x,2)}, {vr(y,2)} op_sel:[0,0] op_sel_hi:[0,1]")
    a(f"v_pk_fma_f32 {vr(d,2)}, {vr(x,2)}, {vr(y,2)}, {vr(d,2)} op_sel:[1,1,0] op_sel_hi:[1,0,1] neg_lo:[0,1,0]")

KT_U = 64
V_DSK = 20
def gen_ktab_addr(a):
    a("s_lshr_b32 s6, s3, 1")
    a("s_lshl_b32 s7, s2, 1")
    a("s_add_u32 s7, s7, s6")
    a("s_lshl_b32 s28, s7, 8")
    a("s_and_b32 s29, s3, 1")
    a("s_lshl_b32 s29, s29, 7")
    a("s_add_u32 s28, s28, s29")
    a("v_lshl_add_u32 v2, v1, 1, s28")
    a("s_lshl_b32 s29, s7, 1")
    a("v_mov_b32 v3, s29")

def gen_ktab_loads(a):
    for i in range(6):
        a(f"global_load_short_d16_hi v{KT_U+i}, v2, {pp(I_ARE+i)}")
    a(f"global_load_short_d16_hi v{KT_U+6}, v3, {pp(I_LDT)}")

def gen_ktab(a, nyoung):
    U = KT_U
    DT = 72; AP = 74; BP = 75
    W1, W4, W512 = 76, 78, 80
    T0 = 82
    W2, W128, W256, Y32 = 56, 58, 60, 62
    Z = 24
    YF = 64; XF = 80
    VWR, VRD = 21, 22
    a(f"s_mul_i32 s30, s3, 4352")
    a(f"s_add_u32 s30, s30, {KT_BASE}")
    a(f"v_lshl_add_u32 v{VWR}, v1, 4, s30")
    a("v_bfe_u32 v6, v1, 2, 2")
    a("v_lshrrev_b32 v7, 4, v1")
    a("v_lshl_add_u32 v6, v7, 3, v6")
    a(f"v_lshl_add_u32 v{VRD}, v6, 4, s30")
    a("v_and_b32 v6, 1, v1")
    a(f"v_lshl_add_u32 v{VRD}, v6, 3, v{VRD}")
    a("v_bfe_u32 v6, v1, 1, 1")
    a("v_mul_u32_u24 v6, 1088, v6")
    a(f"v_add_u32 v{VRD}, v6, v{VRD}")
    a("s_mov_b32 s31, 0xffff0000")
    a(f"s_mov_b32 s32, {f2u(LOG2E)}")
    L2E_HI = struct.unpack("<f", struct.pack("<f", LOG2E))[0]
    a(f"s_mov_b32 s33, {f2u(LOG2E - L2E_HI)}")
    a(f"s_mov_b32 s34, {f2u(1.0/(2*math.pi))}")
    a("s_cmp_lt_u32 s2, 224")
    a("s_cbranch_scc1 L_kt_w1")
    a("s_waitcnt vmcnt(0)")
    a.label("L_kt_w1")
    a("s_waitcnt vmcnt(1)")
    stamp(a, 3, "kst")
    for i in range(7):
        a(f"v_and_b32 v{U+i}, s31, v{U+i}")
    L = U+6
    a(f"v_mul_f32 v{DT}, s32, v{L}")
    a(f"v_fma_f32 v{DT+1}, v{L}, s32, -v{DT}")
    a(f"v_fmac_f32 v{DT+1}, s33, v{L}")
    a(f"v_exp_f32 v{DT}, v{DT}")
    a(f"v_mul_f32 v{DT+1}, {f2u(math.log(2.0))}, v{DT+1}")
    a(f"v_fmac_f32 v{DT}, v{DT}, v{DT+1}")
    a(f"v_cvt_pk_bf16_f32 v{DT}, v{DT}, v{DT}")
    a(f"v_and_b32 v{DT}, s31, v{DT}")
    a(f"v_mul_f32 v{AP}, v{DT}, v{U}")
    a(f"v_mul_f32 v{BP}, v{DT}, v{U+1}")
    a(f"v_mul_f32 v{U+2}, v{DT}, v{U+2}")
    a(f"v_mul_f32 v{U+3}, v{DT}, v{U+3}")
    a(f"v_mul_f32 v{AP}, s32, v{AP}")
    a(f"v_mul_f32 v{BP}, s34, v{BP}")
    z = lambda c: Z + 2*c
    CB = z(4)
    def cmuls(lst):
        for d, x, y in lst:
            a(f"v_pk_mul_f32 {vr(d,2)}, {vr(x,2)}, {vr(y,2)} op_sel:[0,0] op_sel_hi:[0,1]")
        for d, x, y in lst:
            a(f"v_pk_fma_f32 {vr(d,2)}, {vr(x,2)}, {vr(y,2)}, {vr(d,2)} op_sel:[1,1,0] op_sel_hi:[1,0,1] neg_lo:[0,1,0]")
    cmuls([(CB, U+4, U+2)])
    dsts = [(z(1), 8, True), (W1, 1, False), (W128, 128, False)]
    for n, (dst, l, cj) in enumerate(dsts):
        lit = "1.0" if l == 1 else str(f2u(float(l)))
        a(f"v_mul_f32 v{T0+4*n}, {lit}, v{AP}")
        a(f"v_mul_f32 v{T0+4*n+1}, {lit}, v{BP}")
    for n in range(3):
        a(f"v_exp_f32 v{T0+4*n}, v{T0+4*n}")
        a(f"v_fract_f32 v{T0+4*n+1}, v{T0+4*n+1}")
    for n in range(3):
        a(f"v_cos_f32 v{T0+4*n+2}, v{T0+4*n+1}")
        a(f"v_sin_f32 v{T0+4*n+3}, v{T0+4*n+1}")
    a(f"v_mov_b32 v{z(0)}, 1.0")
    for n, (dst, l, cj) in enumerate(dsts):
        a(f"v_mul_f32 v{dst}, v{T0+4*n}, v{T0+4*n+2}")
        a(f"v_mul_f32 v{dst+1}, {'-' if cj else ''}v{T0+4*n}, v{T0+4*n+3}")
    a(f"v_mov_b32 v{z(0)+1}, 0")
    cmuls([(z(2), z(1), z(1)), (W2, W1, W1), (z(5), CB, W1), (z(6), CB, W128), (W256, W128, W128)])
    cmuls([(z(3), z(2), z(1)), (Y32, z(2), z(2)), (z(7), z(6), W1), (W4, W2, W2), (z(8), CB, W256), (z(9), z(6), W256), (W512, W256, W256)])
    cmuls([(z(10), z(8), W256), (T0, W512, W512)])
    cmuls([(z(11), z(10), W4), (z(13), T0, z(6)), (z(12), T0, CB)])
    mult = [Y32]*4 + [W2]*4 + [W2, W2, W128, W128] + [W256, W256]
    stamp(a, 4, "kst")
    SP = 1088
    E = 96
    PKK = 120
    pkn = [0]
    ev = lambda kk, it: E + 6*kk + 2*(it-1)
    def val(c0, kk, it):
        if c0 == 0 and kk == 0 and it == 1: return Y32
        return z(c0+kk) if it == 0 else ev(kk, it)
    def tile(c0, nch, extra=None):
        for it in range(1, 4):
            cmuls([(ev(kk, it), val(c0, kk, it-1), mult[c0+kk]) for kk in range(nch) if not (c0 == 0 and kk == 0 and it == 1)])
        if extra is not None:
            cmuls([(extra, ev(0, 3), mult[c0])])
        for pair in range(2):
            for pl in range(2):
                p = PKK + 4*(pkn[0] % 2); pkn[0] += 1
                if 2*pair >= nch:
                    a(f"v_cvt_pk_bf16_f32 v{p}, v{extra+pl}, v{extra+pl}")
                    a(f"ds_write_b32 v{VWR}, v{p} offset:{(2*pl+pair)*SP}")
                    continue
                for kk in range(2):
                    c = 2*pair + kk
                    a(f"v_cvt_pk_bf16_f32 v{p+2*kk}, v{val(c0,c,0)+pl}, v{val(c0,c,1)+pl}")
                    a(f"v_cvt_pk_bf16_f32 v{p+2*kk+1}, v{val(c0,c,2)+pl}, v{val(c0,c,3)+pl}")
                a(f"ds_write_b128 v{VWR}, {vr(p,4)} offset:{(2*pl+pair)*SP}")
    def readfr(dst):
        for pl in range(2):
            for nh in range(2):
                for h in range(2):
                    a(f"ds_read_b64_tr_b16 {vr(dst+8*pl+4*nh+2*h,2)}, v{VRD} offset:{2*pl*SP + nh*512 + h*64}")
    def mm(dd, xf):
        for kk in range(4):
            c = "0" if kk == 0 else vr(dd, 4)
            a(f"v_mfma_f32_16x16x32_bf16 {vr(dd,4)}, {vr(xf+4*kk,4)}, {vr(YF+4*kk,4)}, {c}")
    D = 24
    tile(0, 4)
    readfr(YF)
    tile(4, 4)
    readfr(XF)
    tile(8, 4)
    a("s_waitcnt lgkmcnt(4)")
    mm(D, XF)
    readfr(XF)
    tile(12, 2, extra=z(8))
    a("s_waitcnt lgkmcnt(4)")
    mm(D+4, XF)
    X2 = 96
    readfr(X2)
    stamp(a, 5, "kst")
    a("s_lshl_b32 s28, s6, 13")
    a("s_and_b32 s29, s3, 1")
    a("s_mul_i32 s29, s29, 3072")
    a("s_add_u32 s28, s28, s29")
    a(f"s_add_u32 s28, s28, {L_SIDE}")
    a("v_lshl_add_u32 v2, v1, 4, s28")
    a("s_lshl_b32 s28, s3, 2")
    a(f"s_add_u32 s28, s28, {FL_KG}")
    a("v_mov_b32 v3, s28")
    a("v_mov_b32 v4, 1")
    a(f"ds_write_b128 v2, {vr(D,4)}")
    a(f"ds_write_b128 v2, {vr(D+4,4)} offset:1024")
    a("s_waitcnt lgkmcnt(2)")
    mm(D+8, X2)
    a("s_nop 7")
    a(f"ds_write_b128 v2, {vr(D+8,4)} offset:2048")
    a("ds_write_b32 v3, v4")
    a("s_waitcnt lgkmcnt(0)")
    stamp(a, 6, "kst")

def gen_unit_load(a):
    w2_voffs(a, 8)
    a("s_lshr_b32 s28, s2, 3")
    a("s_lshl_b32 s28, s28, 16")
    a("s_and_b32 s29, s2, 7")
    a("s_lshl_b32 s29, s29, 7")
    a("s_add_u32 s28, s28, s29")
    for q in range(2):
        a(f"s_mov_b32 m0, {UN_T1 + q*4096}")
        a("s_nop 0")
        for k in range(4):
            a(f"buffer_load_dwordx4 v{8+k}, {S(SRD_X)}, s28 offen offset:{k*1024} lds")
        a("s_add_u32 s28, s28, 32768")

def gen_unit(a):
    a("v_bfe_u32 v2, v1, 2, 2")
    a("v_and_b32 v3, 3, v1")
    a("v_lshrrev_b32 v4, 4, v1")
    a("v_lshl_add_u32 v5, v4, 3, v2")
    a("v_lshlrev_b32 v5, 7, v5")
    a("v_lshl_add_u32 v5, v3, 3, v5")
    a(f"v_add_u32 v5, {UN_T1}, v5")
    a("v_lshrrev_b32 v6, 1, v2")
    TA = 64
    for x in range(4):
        a(f"v_xor_b32 v7, {x}, v6")
        a(f"v_lshl_add_u32 v{TA+x}, v7, 5, v5")
    a("v_and_b32 v6, 15, v1")
    a("v_mul_u32_u24 v6, 144, v6")
    a("v_lshl_add_u32 v6, v4, 4, v6")
    a(f"v_add_u32 v{TA+4}, {UN_T2}, v6")
    a("v_lshrrev_b32 v6, 3, v1")
    a("v_and_b32 v7, 7, v1")
    a("v_mul_u32_u24 v2, 144, v6")
    a("v_lshl_add_u32 v2, v7, 4, v2")
    a(f"v_add_u32 v{TA+5}, {UN_T2}, v2")
    a("s_waitcnt vmcnt(0)")
    O = 72
    n = 0
    for nu in range(4):
        for kh in range(2):
            for h in range(2):
                a(f"ds_read_b64_tr_b16 {vr(O+4*n+2*h,2)}, v{TA + (nu ^ (2*h))} offset:{(32*kh+4*h)*128}")
            n += 1
    n = 0
    for nu in range(4):
        for kh in range(2):
            a(f"s_waitcnt lgkmcnt({min(15, 2*(7-n) + n)})")
            a(f"ds_write_b128 v{TA+4}, {vr(O+4*n,4)} offset:{nu*16*144 + kh*64}")
            n += 1
    O2 = 224
    for n in range(8):
        a(f"ds_read_b128 {vr(O2+4*n,4)}, v{TA+5} offset:{n*8*144}")
    a("s_waitcnt lgkmcnt(0)")

def gen_unit_store(a):
    O2 = 224
    a("v_lshrrev_b32 v24, 3, v1")
    a("v_and_b32 v25, 7, v1")
    a("v_lshlrev_b32 v24, 12, v24")
    a("v_lshl_add_u32 v24, v25, 4, v24")
    a("s_and_b32 s28, s2, 7")
    a("s_lshl_b32 s28, s28, 18")
    a("s_lshr_b32 s34, s2, 3")
    a("s_lshl_b32 s34, s34, 7")
    a("s_add_u32 s28, s28, s34")
    a(f"s_add_u32 s28, s28, {WS_UT}")
    for n in range(8):
        a(f"buffer_store_dwordx4 {vr(O2+4*n,4)}, v24, {S(SRD_WS)}, s28 offen sc1")
        a(f"s_add_u32 s28, s28, {8*4096}")

def gen_unit_pub(a):
    a("s_and_b32 s28, s2, 7")
    a(f"s_mul_i32 s28, s28, {4*FSTR}")
    a("s_lshr_b32 s29, s2, 3")
    a("s_lshl_b32 s29, s29, 2")
    a("s_add_u32 s28, s28, s29")
    a(f"s_add_u32 s28, s28, {WS_FU}")
    a(f"v_mul_u32_u24 v2, {FSTR}, v1")
    a("v_mov_b32 v3, 1")
    lds_wait(a, FL_VALID, 1, 1, "unv", 4, 60, sleep=2)
    a("s_waitcnt vmcnt(0)")
    a("s_mov_b64 exec, 15")
    a(f"buffer_store_dword v3, v2, {S(SRD_WS)}, s28 offen sc1")
    a("s_mov_b64 exec, -1")

WA2 = [16, 17, 18, 10]
VH = 24; VW2 = 28; VPA = 21; VPB = 22
S_TAU, S_DEL, S_H, S_FA, S_FB, S_W6, S_RING = 36, 37, 38, 39, 40, 41, 42
def gen_g2_pre(a):
    a(f"s_bfe_u32 s{S_TAU}, s2, 0x20001")
    a("s_and_b32 s28, s2, 1")
    a("s_xor_b32 s28, s28, 1")
    a("s_lshl_b32 s28, s28, 2")
    a(f"s_add_u32 s{S_TAU}, s{S_TAU}, s28")
    a(f"s_lshl_b32 s{S_TAU}, s{S_TAU}, 2")
    a("s_bfe_u32 s28, s2, 0x20003")
    a(f"s_add_u32 s{S_TAU}, s{S_TAU}, s28")
    a(f"s_lshr_b32 s{S_DEL}, s2, 5")
    a("v_bfe_u32 v2, v1, 2, 2")
    a("v_and_b32 v3, 3, v1")
    a("v_lshrrev_b32 v4, 4, v1")
    a("v_lshl_add_u32 v6, v4, 2, v2")
    a("v_lshlrev_b32 v6, 7, v6")
    a("v_lshl_add_u32 v6, v3, 3, v6")
    a(f"s_lshl_b32 s{S_RING}, s3, 12")
    a(f"s_add_u32 s{S_RING}, s{S_RING}, {L2_W2}")
    a(f"v_add_u32 v6, s{S_RING}, v6")
    a("v_lshrrev_b32 v7, 1, v2")
    a("v_and_b32 v4, 1, v4")
    a("v_lshl_or_b32 v7, v4, 1, v7")
    for nu in range(4):
        a(f"v_xor_b32 v5, {nu}, v7")
        a(f"v_lshl_add_u32 v{WA2[nu]}, v5, 5, v6")
    w2_voffs(a, VW2)
    for mp in range(4):
        a(f"s_add_u32 s33, s3, {mp}")
        a("s_and_b32 s33, s33, 3")
        a("s_mul_i32 s33, s33, 57344")
        a(f"v_lshl_add_u32 v{VH+mp}, v1, 4, s33")
    a(f"s_mul_i32 s{S_H}, s{S_TAU}, {4*57344}")
    a(f"s_mul_i32 s31, s3, {14*1024}")
    a(f"s_add_u32 s{S_H}, s{S_H}, s31")
    a(f"s_mul_i32 s{S_W6}, s3, {14*32768}")
    a(f"s_lshl_b32 s33, s{S_DEL}, 7")
    a(f"s_add_u32 s{S_W6}, s{S_W6}, s33")
    a(f"s_add_u32 s{S_W6}, s{S_W6}, 32768")
    a(f"s_mul_i32 s{S_FA}, s{S_TAU}, {FSTR}")
    a("s_mul_i32 s33, s3, 28")
    a(f"s_add_u32 s{S_FA}, s{S_FA}, s33")
    a(f"s_add_u32 s{S_FA}, s{S_FA}, {WS_FH}")
    a(f"s_add_u32 s{S_FB}, s{S_FA}, {32*FSTR}")
    a(f"v_min_u32 v{VPA}, 6, v1")
    a(f"v_lshlrev_b32 v{VPA}, 2, v{VPA}")
    a("s_mul_i32 s33, s3, 24")
    a("s_sub_u32 s33, 112, s33")
    a(f"v_mov_b32 v{VPB}, s33")
    a("v_cmp_gt_u32 vcc, 7, v1")
    a("s_nop 1")
    a(f"v_cndmask_b32 v{VPB}, v{VPB}, v{VPA}, vcc")
    a("s_lshl_b32 s28, s3, 2")
    a(f"s_add_u32 s28, s28, {FL_FREE}")
    a("v_mov_b32 v19, s28")

WSET0 = [2, 3, 4, 5, 6, 7, 8]
def g2_rs(k): return 32 + 16*k
WHI = [False]
def g2_tr(a, i, k):
    r = []
    hi = i >= 4
    if hi != WHI[0]:
        for nu in range(4):
            r.append(f"v_add_u32 v{WA2[nu]}, {65536 if hi else (-65536) & 0xffffffff}, v{WA2[nu]}")
        WHI[0] = hi
    for nu in range(4):
        for h in range(2):
            r.append(f"ds_read_b64_tr_b16 {vr(g2_rs(k)+4*nu+2*h,2)}, v{WA2[nu]} offset:{(i%4)*16384+h*2048}")
    return r
def rd_flag(a, val):
    a(f"v_mov_b32 v20, {val}")
    a("s_waitcnt lgkmcnt(0)")
    a("ds_write_b32 v19, v20")

def gen_g1_setup(a):
    ACC = 128
    XF = 32; WF = 64; XA = 8; WA = 12
    a("v_and_b32 v2, 15, v1")
    a("v_lshrrev_b32 v3, 4, v1")
    a("v_bfe_u32 v4, v2, 1, 3")
    a("s_lshl_b32 s28, s3, 13")
    a(f"s_add_u32 s28, s28, {SLOT}")
    a("v_lshlrev_b32 v5, 7, v2")
    a("v_add_u32 v5, s28, v5")
    for sig in range(2):
        a(f"v_add_u32 v6, {4*sig}, v3")
        a("v_xor_b32 v6, v6, v4")
        a(f"v_lshl_add_u32 v{XA+sig}, v6, 4, v5")
    a("v_bfe_u32 v2, v1, 2, 2")
    a("v_and_b32 v3, 3, v1")
    a("v_lshrrev_b32 v4, 4, v1")
    a("v_lshl_add_u32 v6, v4, 3, v2")
    a("v_lshlrev_b32 v6, 7, v6")
    a("v_lshl_add_u32 v6, v3, 3, v6")
    a(f"v_add_u32 v6, {32768+SLOT}, v6")
    a("v_lshrrev_b32 v7, 1, v2")
    a("v_and_b32 v4, 1, v4")
    a("v_lshl_or_b32 v7, v4, 1, v7")
    for nu in range(4):
        a(f"v_xor_b32 v5, {nu}, v7")
        a(f"v_lshl_add_u32 v{WA+nu}, v5, 5, v6")
    for i in range(0, 128, 2):
        a(f"v_pk_mul_f32 {vr(ACC+i,2)}, 0, 0")
    a("s_lshl_b32 s28, s3, 2")
    a(f"s_add_u32 s28, s28, {FL_FREE}")
    a("v_mov_b32 v19, s28")
    a("v_mov_b32 v20, 0")

def gen_g1(a):
    ACC = 128
    XF = 32; WF = 64; XA = 8; WA = 12
    def acc(mat, nu, m): return ACC + 4*((mat*4+nu)*4+m)
    def xf(sig, m): return XF + 16*(sig & 1) + 4*m
    def wf(sig, mat, nu): return WF + 32*(sig & 1) + 4*(mat*4+nu)
    def reads(sig):
        r = []
        for m in range(4):
            r.append(f"ds_read_b128 {vr(xf(sig,m),4)}, v{XA+sig} offset:{m*2048}")
        for mat in range(2):
            for nu in range(4):
                for h in range(2):
                    r.append(f"ds_read_b64_tr_b16 {vr(wf(sig,mat,nu)+2*h,2)}, v{WA+nu} offset:{mat*8192+sig*4096+h*512}")
        return r
    def mfmas(sig):
        r = []
        for mat in range(2):
            for nu in range(4):
                for m in range(4):
                    d = acc(mat, nu, m)
                    r.append(f"v_mfma_f32_16x16x32_bf16 {vr(d,4)}, {vr(wf(sig,mat,nu),4)}, {vr(xf(sig,m),4)}, {vr(d,4)}")
        return r
    a("s_mov_b32 s7, 1")
    a("s_mov_b32 s28, 8")
    a("s_mov_b32 s31, 0")
    a(f"s_mov_b32 s30, {SLOT}")
    a("s_barrier")
    stamp(a, 2)
    for r in reads(0): a(r)
    a.label("L_g1_loop")
    a("s_add_u32 s7, s7, 1")
    a("s_cmp_eq_u32 s7, 3")
    a(f"s_cselect_b32 s29, {(-2*SLOT) & 0xffffffff}, s30")
    a("s_cselect_b32 s7, 0, s7")
    M = mfmas(0); R = reads(1)
    issued = 0
    for i in range(32):
        if i % 4 == 0:
            need = 4 + 2*(i//4 + 1)
            n = (20 - need) + issued
            a(f"s_waitcnt lgkmcnt({min(n,15)})")
        a(M[i])
        if issued < 20 and i >= 2:
            a(R[issued]); issued += 1
        if i == 24:
            a(f"v_add_u32 v{XA}, s29, v{XA}")
            a(f"v_add_u32 v{XA+1}, s29, v{XA+1}")
        if i in (25, 26):
            a(f"v_add_u32 v{WA+2*(i-25)}, s29, v{WA+2*(i-25)}")
            a(f"v_add_u32 v{WA+2*(i-25)+1}, s29, v{WA+2*(i-25)+1}")
        if i == 27:
            a("s_sub_u32 s28, s28, 1")
            a("s_cmp_eq_u32 s28, 0")
    assert issued == 20
    M = mfmas(1); R = reads(0)
    if "itst" in OPT:
        a("s_memtime s[32:33]")
        a("s_mov_b32 m0, s31")
    a("s_waitcnt lgkmcnt(0)")
    a(M[0]); a(M[1])
    if "itst" in OPT:
        a(f"s_movreld_b32 s{ST0}, s32")
    a("s_barrier")
    if "itst" in OPT:
        a("s_memtime s[32:33]")
        a("s_waitcnt lgkmcnt(0)")
        a(f"s_movreld_b32 s{ST0+2}, s32")
        a("s_addk_i32 s31, 4")
        a("s_cmp_eq_u32 s28, 0")
    a("s_cbranch_scc1 L_g1_last")
    issued = 0
    for i in range(2, 32):
        if issued < 20:
            a(R[issued]); issued += 1
        a(M[i])
    a("s_branch L_g1_loop")
    a.label("L_g1_last")
    for i in range(2, 32):
        a(M[i])
    stamp(a, 3)
    a(f"s_mov_b32 s6, {f2u(-LOG2E)}")
    a(f"s_mov_b32 s7, {f2u(-LOG2E)}")
    a("s_lshl_b32 s28, s4, 4")
    a("s_lshl_b32 s29, s3, 2")
    a("s_add_u32 s28, s28, s29")
    a("s_mul_i32 s28, s28, 56")
    a("s_lshl_b32 s29, s5, 1")
    a("s_add_u32 s28, s28, s29")
    a("s_lshl_b32 s28, s28, 10")
    for m in range(1, 4):
        a(f"s_add_u32 s{28+m}, s28, {m*56*1024}")
    a("v_lshlrev_b32 v2, 4, v1")
    a("s_lshl_b32 s32, s4, 2")
    a("s_add_u32 s32, s32, s3")
    a(f"s_mul_i32 s32, s32, {FSTR}")
    a("s_lshl_b32 s33, s5, 2")
    a("s_add_u32 s32, s32, s33")
    a(f"s_add_u32 s32, s32, {WS_FH}")
    a(f"s_add_u32 s33, s32, {32*FSTR}")
    pend = []
    for i in range(3):
        pend += g2_tr(a, i, WSET0[i])
    a0 = a
    class Mix:
        n = 0
        def __call__(self, x):
            a0(x)
            Mix.n += 1
            if pend and Mix.n % 3 == 0: a0(pend.pop(0))
        def __getattr__(self, nm): return getattr(a0, nm)
    a = Mix()
    T = 32
    cnt = 0
    for np_ in range(2):
        for m in range(4):
            if cnt == 4:
                assert not pend
                lds_wait(a0, FL_W2, 2, 1, "ew1", 3, 4, sleep=0)
                for i in range(3, 6):
                    pend += g2_tr(a, i, WSET0[i])
            E = T + 16*(cnt & 1)
            O = E + 8
            gs = [acc(0, 2*np_, m), acc(0, 2*np_, m)+2, acc(0, 2*np_+1, m), acc(0, 2*np_+1, m)+2]
            us = [acc(1, 2*np_, m), acc(1, 2*np_, m)+2, acc(1, 2*np_+1, m), acc(1, 2*np_+1, m)+2]
            for p in range(4):
                a(f"v_pk_mul_f32 {vr(E+2*p,2)}, {vr(gs[p],2)}, s[6:7]")
            for p in range(8):
                a(f"v_exp_f32 v{E+p}, v{E+p}")
            for p in range(4):
                a(f"v_pk_mul_f32 {vr(us[p],2)}, {vr(gs[p],2)}, {vr(us[p],2)}")
            for p in range(4):
                a(f"v_pk_add_f32 {vr(E+2*p,2)}, {vr(E+2*p,2)}, 1.0 op_sel_hi:[1,0]")
            for p in range(8):
                a(f"v_rcp_f32 v{E+p}, v{E+p}")
            a("s_nop 0")
            for p in range(4):
                a(f"v_pk_mul_f32 {vr(us[p],2)}, {vr(us[p],2)}, {vr(E+2*p,2)}")
            for p in range(4):
                a(f"v_cvt_pk_bf16_f32 v{O+p}, v{us[p]}, v{us[p]+1}")
            if cnt == 6:
                a0("s_waitcnt vmcnt(2)")
                publish(a0, "s32", 3, 4)
            a(f"buffer_store_dwordx4 {vr(O,4)}, v2, {S(SRD_WS)}, s{28+m} offen offset:{np_*1024}{'' if 'plainst' in OPT else ' sc1'}")
            cnt += 1
    assert not pend
    a = a0
    a("v_mov_b32 v20, 7")
    a("ds_write_b32 v19, v20")
    stamp(a, 4)
    a("s_mov_b32 s35, s33")
    a.walk_end()

VX = 8; VW = 12
def gen_loader_setup(a):
    a("v_lshrrev_b32 v2, 3, v1")
    a("v_and_b32 v3, 7, v1")
    a("v_lshrrev_b32 v4, 4, v1")
    a("v_xor_b32 v5, v3, v4")
    a("v_xor_b32 v6, 4, v5")
    a("v_lshlrev_b32 v7, 10, v2")
    a(f"v_lshl_add_u32 v{VX}, v5, 4, v7")
    a(f"v_lshl_add_u32 v{VX+1}, v6, 4, v7")
    a(f"v_add_u32 v{VX+2}, {2*7168}, v{VX}")
    a(f"v_add_u32 v{VX+3}, {3*7168}, v{VX+1}")
    a(f"v_add_u32 v{VX+1}, {7168}, v{VX+1}")
    a("v_and_b32 v4, 1, v4")
    a("v_lshlrev_b32 v4, 1, v4")
    a("v_xor_b32 v5, v3, v4")
    a("v_mul_u32_u24 v7, 3584, v2")
    a(f"v_lshl_add_u32 v{VW}, v5, 4, v7")
    a("v_xor_b32 v5, 4, v5")
    a(f"v_lshl_add_u32 v{VW+1}, v5, 4, v7")
    a(f"v_add_u32 v{VW+2}, {2*(28672-1024)}, v{VW}")
    a(f"v_add_u32 v{VW+3}, {3*(28672-1024)}, v{VW+1}")
    a(f"v_add_u32 v{VW+1}, {(28672-1024)}, v{VW+1}")

def gen_loader(a):
    NT1 = " nt" if "nt1" in OPT else ""
    a("s_sub_u32 s6, s3, 4")
    a("s_cmp_eq_u32 s6, 1")
    a(f"s_cselect_b32 s{SRD_W1}, s{ptr(I_W3)}, s{ptr(I_W1)}")
    a(f"s_cselect_b32 s{SRD_W1+1}, s{ptr(I_W3)+1}, s{ptr(I_W1)+1}")
    a(f"s_and_b32 s{SRD_W1+1}, s{SRD_W1+1}, 0xffff")
    a("s_lshl_b32 s28, s4, 18")
    a("s_lshl_b32 s7, s6, 17")
    a("s_add_u32 s28, s28, s7")
    a("s_lshl_b32 s29, s5, 7")
    a("s_lshl_b32 s34, s6, 14")
    a(f"s_add_u32 s34, s34, {SLOT}")
    a("s_lshl_b32 s35, s6, 13")
    a(f"s_add_u32 s35, s35, {SLOT+32768}")
    CK = [48] + [min(24*(k+2), C1 + CSTEP*(k-1)) for k in range(1, 7)]
    CK[6] = 192
    cnt = [0]; nb = [0]
    if "ldpf" in OPT:
        a("v_lshrrev_b32 v16, 3, v1")
        a(f"v_mul_u32_u24 v16, {64*3584}, v16")
        a("v_and_b32 v17, 7, v1")
        a("v_lshl_add_u32 v16, v17, 7, v16")
        a("s_lshl_b32 s32, s2, 10")
        a(f"s_add_u32 s32, s32, {2*64*3584}")
    def dma(x):
        a(x); cnt[0] += 1
        extra = 0
        if "ldpf" in OPT:
            if cnt[0] == LDPF:
                a(f"buffer_load_dword v18, v16, {S(SRD_W1)}, s32 offen")
            if cnt[0] >= LDPF and LDPF >= 24*(nb[0]+1): extra = 1
        if nb[0] < 7 and cnt[0] == CK[nb[0]]:
            a(f"s_waitcnt vmcnt({cnt[0] - 24*(nb[0]+1) + extra})")
            a("s_barrier")
            nb[0] += 1
    for st in range(8):
        so = ((st+1) % 3 - 1) * SLOT
        a(f"s_add_u32 s33, s29, {4*28672}")
        for q in range(2):
            a(f"s_add_u32 m0, s35, {(q*4096 + so) & 0xffffffff}")
            a("s_nop 0")
            for k in range(4):
                dma(f"buffer_load_dwordx4 v{VW+k}, {S(SRD_W1)}, s{29 if q == 0 else 33} offen offset:{k*1024}{NT1} lds")
        a("s_mov_b32 s33, s28")
        for q in range(4):
            a(f"s_add_u32 m0, s34, {(q*4096 + so) & 0xffffffff}")
            a("s_nop 0")
            for k in range(4):
                dma(f"buffer_load_dwordx4 v{VX+k}, {S(SRD_X)}, s33 offen offset:{k*1024}{NT1} lds")
            if q < 3: a("s_add_u32 s33, s33, 32768")
        a("s_add_u32 s28, s28, 128")
        a(f"s_add_u32 s29, s29, {64*3584}")
    assert nb[0] == 7
    stamp(a, 1)

V_EO = 192
VC0, VC1, VC3 = 8, 16, 11
MU, EE, GB = 56, 57, 58
GA = 36
def gen_kfin_addr(a):
    a("v_and_b32 v6, 15, v1")
    a("v_lshrrev_b32 v7, 4, v1")
    a("v_and_b32 v2, 3, v6")
    a("v_lshrrev_b32 v3, 2, v6")
    a("v_lshl_add_u32 v6, v2, 2, v3")
    a("v_lshrrev_b32 v12, 1, v7")
    a("v_and_b32 v13, 1, v7")
    a(f"v_lshlrev_b32 v{VC0}, 8, v12")
    a(f"v_lshl_add_u32 v{VC0}, v13, 1, v{VC0}")
    a(f"v_lshl_add_u32 v{VC0}, v6, 4, v{VC0}")
    a(f"v_add_u32 v{VC0}, s30, v{VC0}")
    a("v_lshlrev_b32 v2, 7, v13")
    a("v_lshl_add_u32 v2, v6, 3, v2")
    a("v_lshlrev_b32 v3, 1, v13")
    a("v_lshl_add_u32 v3, v6, 2, v3")
    a("v_add_u32 v3, 256, v3")
    a("v_cmp_eq_u32 vcc, 0, v12")
    a("v_mul_u32_u24 v14, 62, v12")
    a("v_add_u32 v14, 2, v14")
    a(f"v_cndmask_b32 v{VC1}, v3, v2, vcc")
    a(f"v_add_u32 v{VC1}, s30, v{VC1}")
    for i in range(1, 4):
        a(f"v_add_u32 v{VC1+i}, v{VC1+i-1}, v14")
    a(f"v_lshlrev_b32 v{VC3}, 5, v7")
    a("v_mul_u32_u24 v2, 192, v12")
    a(f"v_add3_u32 v{VC3}, v{VC3}, v2, s30")
    a(f"v_lshl_add_u32 v{VC3}, v6, 1, v{VC3}")
    a(f"v_sub_u32 v{MU}, 63, v1")
    a(f"v_lshrrev_b32 v{EE}, 4, v{MU}")
    a(f"v_min_u32 v{EE}, 2, v{EE}")
    a(f"v_lshlrev_b32 v{GB}, 5, v{MU}")
    a(f"v_lshrrev_b32 v{GB}, v{EE}, v{GB}")
    a(f"v_lshl_add_u32 v{GB}, v{EE}, 8, v{GB}")
    a(f"v_add_u32 v{GB}, s30, v{GB}")
    a(f"v_lshlrev_b32 v{EE}, 3, v{EE}")
    def rne(o, e):
        if e == 0: return o
        return (o + ((1 << (e-1)) - 1) + ((o >> e) & 1)) >> e
    for o in range(17):
        tab = sum((2*rne(o, e)) << (8*e) for e in range(3))
        a(f"s_mov_b32 s35, {tab}")
        a(f"v_bfe_u32 v{GA+o}, s35, v{EE}, 8")
        a(f"v_add_u32 v{GA+o}, v{GA+o}, v{GB}")
    a(f"v_lshl_add_u32 v{MU}, v{MU}, 2, s30")

def gen_kfin(a):
    D = 96
    CP = 64
    E0, O0, E1, O1 = V_EO, V_EO+8, V_EO+16, V_EO+24
    G0 = 72
    a("v_lshl_add_u32 v5, v1, 4, s30")
    a("s_lshr_b32 s29, s7, 6")
    a("s_lshl_b32 s29, s29, 2")
    a("s_and_b32 s28, s2, 3")
    a("s_add_u32 s29, s29, s28")
    a(f"s_mul_i32 s29, s29, {FSTR}")
    a(f"s_add_u32 s35, s29, {WS_FU}")
    a("v_and_b32 v54, 31, v1")
    a("v_lshlrev_b32 v54, 2, v54")
    a("s_lshl_b32 s31, s7, 12")
    a(f"s_add_u32 s31, s31, {WS_UT}")
    a("v_lshlrev_b32 v53, 4, v1")
    a("s_lshl_b32 s28, s6, 3")
    a(f"s_add_u32 s28, s28, {FL_KG}")
    lds_wait(a, "s28", 2, 1, "kf", 2, 60, sleep=1)
    for j in range(6):
        a(f"ds_read_b128 {vr(D+4*j,4)}, v5 offset:{j*1024}")
    a("s_waitcnt lgkmcnt(0)")
    for j in range(12):
        a(f"v_add_f32 v{D+j}, v{D+j}, v{D+12+j}")
    for j in range(6):
        a(f"v_cvt_pk_bf16_f32 v{CP+j}, v{D+2*j}, v{D+2*j+1}")
    for i in range(4):
        hi = "_d16_hi" if i & 1 else ""
        a(f"ds_write_b16{hi} v{VC0}, v{CP+i//2} offset:{SIDE_C+4*i}")
        a(f"ds_write_b16{hi} v{VC1+i}, v{CP+2+i//2} offset:{SIDE_C+512}")
        a(f"ds_write_b16{hi} v{VC3}, v{CP+4+i//2} offset:{SIDE_C+1024+64*i}")
    a("v_mov_b32 v2, 0")
    a("v_mov_b32 v3, 0")
    a("v_lshl_add_u32 v4, v1, 3, s30")
    a(f"ds_write_b64 v4, v[2:3] offset:{SIDE_U}")
    a(f"ds_read_b32 v{G0}, v{MU} offset:{SIDE_C+1024}")
    a(f"ds_read_u16 v{G0+1}, v{MU} offset:{SIDE_C+1024+4}")
    for m in range(8):
        a(f"ds_read_u16 v{E1+m}, v{GA+15-2*m} offset:{SIDE_C}")
        a(f"ds_read_u16 v{O1+m}, v{GA+14-2*m} offset:{SIDE_C}")
    a(f"ds_read_u16 v{G0+2}, v{GA+16} offset:{SIDE_C}")
    stamp(a, 1)
    for i in range(UTB):
        bar(a)
        if i == 0:
            a("s_cmp_lg_u32 s6, 1")
            a("s_cbranch_scc1 L_kf_ns")
            gen_unit_store(a)
            a.label("L_kf_ns")
        if i == 1:
            a("v_mov_b32 v22, 0")
            a("s_cmp_lg_u32 s6, 0")
            a("s_cbranch_scc1 L_kf_nv0")
            a(f"global_load_dword v23, v22, {pp(I_DBG)} sc1")
            a.label("L_kf_nv0")
            a("s_mov_b32 s28, 0x01000100")
            a("s_mov_b32 s29, 0x03020302")
            a("s_mov_b32 s34, 0x01000302")
            a("s_mov_b32 s1, 0x03020504")
            a("s_waitcnt lgkmcnt(0)")
            a(f"v_perm_b32 v{E0}, v{G0+1}, v{G0+1}, s28")
            a(f"v_perm_b32 v{E0+2}, v{G0}, v{G0}, s29")
            a(f"v_perm_b32 v{E0+6}, v{G0}, v{G0}, s28")
            a(f"v_perm_b32 v{E0+5}, v{G0}, v{G0}, s34")
            a(f"v_perm_b32 v{O0+2}, v{G0+1}, v{G0}, s1")
            for d_, s_ in ((E0+1, E0), (E0+3, E0+2), (E0+4, E0+2), (E0+7, E0+6), (O0, E0), (O0+1, E0), (O0+3, E0+2), (O0+4, E0+2),
                           (O0+5, E0+2), (O0+6, E0+6), (O0+7, E0+6)):
                a(f"v_mov_b32 v{d_}, v{s_}")
            for m in range(8):
                a(f"v_lshl_or_b32 v{E1+m}, v{O1+m}, 16, v{E1+m}")
            a(f"v_lshl_or_b32 v{O1}, v{E1}, 16, v{G0+2}")
            for m in range(1, 8):
                a(f"v_alignbit_b32 v{O1+m}, v{E1+m}, v{E1+m-1}, 16")
            a(f"v_lshrrev_b32 v8, 16, v{E1+7}")
            for ii in range(9, 16):
                a(f"v_mov_b32 v{ii}, 0")
            a("s_mul_i32 s29, s6, 8320")
            a(f"s_add_u32 s29, s29, {L2_EO}")
            a("v_lshl_add_u32 v21, v1, 5, s29")
        if i == 2:
            a("s_cmp_lg_u32 s6, 0")
            a("s_cbranch_scc1 L_kf_nv")
            a("s_waitcnt vmcnt(0)")
            a("v_cmp_eq_u32 vcc, 0, v23")
            a("s_cbranch_vccz L_kf_vok")
            a.spin("L_kf_vpoll", 8)
            a(f"global_load_dword v23, v22, {pp(I_DBG)} sc1")
            a("s_waitcnt vmcnt(0)")
            a("v_cmp_eq_u32 vcc, 0, v23")
            a("s_cbranch_vccnz L_kf_vpoll")
            a.label("L_kf_vok")
            lds_set(a, FL_VALID, 1, 2, 3)
            a.label("L_kf_nv")
        if i == 3:
            a("s_cmp_lg_u32 s6, 1")
            a("s_cbranch_scc1 L_kf_np")
            gen_unit_pub(a)
            a.label("L_kf_np")
        if i == W2PFB and "now2pf" not in OPT:
            a("s_mul_i32 s28, s7, 3584")
            a("v_lshlrev_b32 v2, 7, v1")
            a("s_mov_b64 exec, 0xfffffff")
            a(f"buffer_load_dword v3, v2, {S(SRD_W2)}, s28 offen")
            a("s_mov_b64 exec, -1")
    lds_wait(a, FL_VALID, 1, 1, "kfv", 5, 60, sleep=2)
    a(f"buffer_load_dword v55, v54, {S(SRD_WS)}, s35 offen sc1")
    bar(a)
    a("s_waitcnt vmcnt(0)")
    a("v_cmp_ne_u32 s[32:33], 1, v55")
    a("s_nop 2")
    a("s_cmp_lg_u64 s[32:33], 0")
    a("s_cbranch_scc1 L_kf_late")
    a(f"s_add_u32 m0, s30, {SIDE_U+512}")
    a("s_nop 0")
    for i in range(4):
        a(f"buffer_load_dwordx4 v53, {S(SRD_WS)}, s31 offen offset:{i*1024} sc1 lds")
    a.label("L_kf_late")
    for i in range(UTB+1, 9):
        bar(a)
    stamp(a, 2)
    for rnd, (E, O) in enumerate(((E0, O0), (E1, O1))):
        for h in range(2):
            a(f"ds_write_b128 v21, {vr(E+4*h,4)} offset:{rnd*2048+16*h}")
            a(f"ds_write_b128 v21, {vr(O+4*h,4)} offset:{EO_O+rnd*2048+16*h}")
    a("s_mov_b32 s28, 0")
    a("s_mov_b32 s29, 0x80000000")
    a("s_mov_b64 exec, s[28:29]")
    a(f"ds_write_b128 v21, v[12:15] offset:{2048+32}")
    a(f"ds_write_b128 v21, v[12:15] offset:{2048+48}")
    a(f"ds_write_b128 v21, v[8:11] offset:{EO_O+2048+32}")
    a(f"ds_write_b128 v21, v[12:15] offset:{EO_O+2048+48}")
    a("s_mov_b64 exec, -1")
    a("s_cmp_eq_u64 s[32:33], 0")
    a("s_cbranch_scc1 L_kf_uok")
    a.spin("L_kf_upoll", 8)
    a("s_cmp_lt_u32 s2, 224")
    a("s_cbranch_scc1 L_kf_up2")
    a("s_sleep 48")
    a.label("L_kf_up2")
    a(f"buffer_load_dword v55, v54, {S(SRD_WS)}, s35 offen sc1")
    a("s_waitcnt vmcnt(0)")
    a("v_cmp_ne_u32 vcc, 1, v55")
    a("s_cbranch_vccnz L_kf_upoll")
    a(f"s_add_u32 m0, s30, {SIDE_U+512}")
    a("s_nop 0")
    for i in range(4):
        a(f"buffer_load_dwordx4 v53, {S(SRD_WS)}, s31 offen offset:{i*1024} sc1 lds")
    a.label("L_kf_uok")
    a("s_lshl_b32 s28, s6, 2")
    a(f"s_add_u32 s28, s28, {FL_EO}")
    a("s_waitcnt vmcnt(0)")
    lds_set(a, "s28", 1, 16, 17)

def gen_conv(a):
    tag = "cv"
    ACC = 24; FR = 64; AB = 8; UB = 12
    def af(st, aa): return FR + 64*st + 4*aa
    def bf(st, e): return FR + 64*st + 32 + 4*e
    a("v_and_b32 v2, 15, v1")
    a("v_lshrrev_b32 v3, 4, v1")
    a("s_lshl_b32 s32, s33, 8")
    a("s_mul_i32 s29, s6, 8320")
    a(f"s_add_u32 s29, s29, {L2_EO + 4*1016 + EO_O}")
    a("s_sub_u32 s29, s29, s32")
    a("v_add_u32 v4, 1, v2")
    a("v_lshrrev_b32 v4, 1, v4")
    a("v_lshlrev_b32 v5, 2, v3")
    a("v_sub_u32 v5, v5, v4")
    a("v_lshl_add_u32 v5, v5, 2, s29")
    a("v_and_b32 v4, 1, v2")
    a(f"v_mul_u32_u24 v4, {EO_O}, v4")
    a("v_sub_u32 v5, v5, v4")
    for b in range(4):
        a(f"v_subrev_u32 v{AB+b}, {512*(2*b+1)}, v5")
    a("v_lshlrev_b32 v4, 5, v2")
    a("v_lshl_add_u32 v4, v3, 4, v4")
    a(f"s_add_u32 s28, s30, {SIDE_U + 480}")
    a("s_sub_u32 s28, s28, s32")
    a(f"v_add_u32 v{UB}, s28, v4")
    for i in range(32):
        a(f"v_mov_b32 v{ACC+i}, 0")
    def reads(st):
        r = []
        for x in range(8):
            o = 128 if x % 2 == 0 else 0
            r.append(f"ds_read2_b32 {vr(af(st,x),2)}, v{AB+x//2} offset0:{o} offset1:{o+1}")
            r.append(f"ds_read2_b32 {vr(af(st,x)+2,2)}, v{AB+x//2} offset0:{o+2} offset1:{o+3}")
            r.append(f"ds_read_b128 {vr(bf(st,x),4)}, v{UB} offset:{512*x}")
        return r
    def adv():
        r = [f"v_subrev_u32 v{AB+b}, 64, v{AB+b}" for b in range(4)]
        r.append(f"v_subrev_u32 v{UB}, 64, v{UB}")
        return r
    def mf(st):
        r = []
        for aa in range(8):
            for e in range(8 - aa):
                d = ACC + 4*(aa+e)
                r.append(f"v_mfma_f32_16x16x32_bf16 {vr(d,4)}, {vr(af(st,aa),4)}, {vr(bf(st,e),4)}, {vr(d,4)}")
        return r
    for r in reads(0): a(r)
    for r in adv(): a(r)
    if "convearly" not in OPT:
        a("s_lshl_b32 s28, s3, 2")
        a(f"s_add_u32 s28, s28, {FL_FREE - 16}")
        lds_wait(a, "s28", 1, 7, tag+"e", 16, 18, sleep=2)
    stamp(a, 4)
    a("s_mov_b32 s28, 2")
    a.label(f"L_{tag}_loop")
    for st in range(2):
        a("s_waitcnt lgkmcnt(0)")
        M = mf(st); R = reads(1-st) + adv()
        for i, m in enumerate(M):
            a(m)
            if R: a(R.pop(0))
        assert not R
    a("s_sub_u32 s28, s28, 1")
    a("s_cmp_lg_u32 s28, 0")
    a(f"s_cbranch_scc1 L_{tag}_loop")
    stamp(a, 5)
    a(f"s_add_u32 s28, s30, {SIDE_XA}")
    a("s_lshl_b32 s29, s6, 11")
    a(f"s_add_u32 s29, s29, {L2_XB}")
    a("s_cmp_eq_u32 s33, 0")
    a("s_cselect_b32 s34, s28, s29")
    a("s_cselect_b32 s35, s29, s28")
    a("v_lshl_add_u32 v13, v1, 4, s34")
    a("v_lshl_add_u32 v14, v1, 4, s35")
    a("s_lshl_b32 s28, s6, 3")
    a("s_lshl_b32 s29, s33, 2")
    a("s_add_u32 s28, s28, s29")
    a(f"s_add_u32 s28, s28, {FL_X}")
    a("s_xor_b32 s29, s28, 4")
    a("v_lshlrev_b32 v4, 5, v2")
    a("v_lshl_add_u32 v4, v3, 3, v4")
    a("s_lshl_b32 s32, s33, 11")
    a(f"s_add_u32 s34, s30, {SIDE_U + 512}")
    a("s_add_u32 s34, s34, s32")
    a("v_add_u32 v5, s34, v4")
    a("s_waitcnt lgkmcnt(0)")
    UU = 64; PKX = 72; RX = 80
    for ti in range(4):
        a(f"ds_read_b64 {vr(UU+2*ti,2)}, v5 offset:{512*ti}")
    a("s_cmp_eq_u32 s33, 0")
    a("s_cbranch_scc1 L_cv_t0")
    for i in range(8):
        a(f"v_cvt_pk_bf16_f32 v{PKX+i}, v{ACC+2*i}, v{ACC+2*i+1}")
    for i in range(16):
        a(f"v_mov_b32 v{ACC+i}, v{ACC+16+i}")
    a("s_branch L_cv_t1")
    a.label("L_cv_t0")
    for i in range(8):
        a(f"v_cvt_pk_bf16_f32 v{PKX+i}, v{ACC+16+2*i}, v{ACC+16+2*i+1}")
    a.label("L_cv_t1")
    a(f"ds_write_b128 v13, {vr(PKX,4)}")
    a(f"ds_write_b128 v13, {vr(PKX+4,4)} offset:1024")
    lds_set(a, "s28", 1, 16, 17)
    a("s_mov_b32 s31, 0xffff0000")
    a(f"v_lshlrev_b32 v{V_DSK}, 16, v{V_DSK}")
    a("v_lshlrev_b32 v6, 5, v2")
    a("v_lshrrev_b32 v7, 1, v3")
    a("v_lshl_add_u32 v6, v7, 4, v6")
    a("v_and_b32 v7, 1, v3")
    a("v_lshl_add_u32 v6, v7, 9, v6")
    a("s_waitcnt lgkmcnt(3)")
    X = 90
    for ti in range(4):
        for h in range(2):
            a(f"v_lshlrev_b32 v{X}, 16, v{UU+2*ti+h}")
            a(f"v_and_b32 v{X+1}, s31, v{UU+2*ti+h}")
            a(f"v_fmac_f32 v{ACC+4*ti+2*h}, v{X}, v{V_DSK}")
            a(f"v_fmac_f32 v{ACC+4*ti+2*h+1}, v{X+1}, v{V_DSK}")
    lds_wait(a, "s29", 1, 1, "cvx", 16, 18, sleep=0)
    a(f"ds_read_b128 {vr(RX,4)}, v14")
    a(f"ds_read_b128 {vr(RX+4,4)}, v14 offset:1024")
    a("s_lshl_b32 s28, s7, 12")
    a("s_add_u32 s28, s28, s32")
    a(f"s_add_u32 s28, s28, {WS_A}")
    a("s_waitcnt lgkmcnt(0)")
    for i in range(8):
        a(f"v_lshlrev_b32 v{X}, 16, v{RX+i}")
        a(f"v_and_b32 v{X+1}, s31, v{RX+i}")
        a(f"v_add_f32 v{ACC+2*i}, v{ACC+2*i}, v{X}")
        a(f"v_add_f32 v{ACC+2*i+1}, v{ACC+2*i+1}, v{X+1}")
    P = 96
    for pr in range(2):
        t1, t2 = 2*pr, 2*pr+1
        p = P + 4*pr
        a(f"v_cvt_pk_bf16_f32 v{p}, v{ACC+4*t1}, v{ACC+4*t1+1}")
        a(f"v_cvt_pk_bf16_f32 v{p+1}, v{ACC+4*t1+2}, v{ACC+4*t1+3}")
        a(f"v_cvt_pk_bf16_f32 v{p+2}, v{ACC+4*t2}, v{ACC+4*t2+1}")
        a(f"v_cvt_pk_bf16_f32 v{p+3}, v{ACC+4*t2+2}, v{ACC+4*t2+3}")
        a("s_nop 1")
        a(f"v_permlane16_swap_b32 v{p}, v{p+2}")
        a(f"v_permlane16_swap_b32 v{p+1}, v{p+3}")
        a(f"buffer_store_dwordx4 {vr(p,4)}, v6, {S(SRD_WS)}, s28 offen offset:{1024*pr} sc1")
    stamp(a, 6)
    a("s_lshr_b32 s28, s7, 6")
    a(f"s_mul_i32 s28, s28, {FSTR}")
    a("s_and_b32 s29, s7, 63")
    a("s_lshl_b32 s29, s29, 2")
    a("s_add_u32 s28, s28, s29")
    a("s_lshl_b32 s29, s33, 8")
    a("s_add_u32 s28, s28, s29")
    a(f"s_add_u32 s28, s28, {WS_FA}")
    a("s_waitcnt vmcnt(0)")
    publish(a, "s28", 3, 4)

def w2_voffs(a, V):
    a("v_lshrrev_b32 v2, 3, v1")
    a("v_and_b32 v3, 7, v1")
    a("v_bfe_u32 v4, v1, 4, 2")
    a("v_lshlrev_b32 v4, 1, v4")
    a("v_xor_b32 v3, v3, v4")
    a("v_lshlrev_b32 v2, 10, v2")
    a(f"v_lshl_add_u32 v{V}, v3, 4, v2")
    for k in range(1, 4):
        a(f"v_add_u32 v{V+k}, {k*7168}, v{V}")

def g2_map(a):
    a("s_bfe_u32 s4, s2, 0x20001")
    a("s_and_b32 s28, s2, 1")
    a("s_xor_b32 s28, s28, 1")
    a("s_lshl_b32 s28, s28, 2")
    a("s_add_u32 s4, s4, s28")
    if "local" in OPT: a("s_and_b32 s4, s2, 7")
    a("s_lshl_b32 s4, s4, 2")
    a("s_lshr_b32 s5, s2, 3")
    a("s_and_b32 s28, s5, 3")
    a("s_add_u32 s4, s4, s28")
    a("s_lshr_b32 s5, s5, 2")

def gen_w2pre(a):
    V = 8
    a("s_lshl_b32 s7, s2, 1")
    a("s_add_u32 s7, s7, s6")
    a("s_lshl_b32 s28, s7, 1")
    a("v_mov_b32 v3, s28")
    a(f"global_load_ushort v{V_DSK}, v3, {pp(I_DSK)}")
    w2_voffs(a, V)
    a("s_lshr_b32 s5, s2, 5")
    a(f"s_mul_i32 s24, s6, {14*32768}")
    a("s_lshl_b32 s25, s5, 7")
    a("s_add_u32 s24, s24, s25")
    a("s_lshl_b32 s26, s6, 12")
    a(f"s_add_u32 s26, s26, {L2_W2}")
    a("s_lshl_b32 s28, s6, 2")
    a(f"s_add_u32 s28, s28, {FL_W2}")
    a("v_mov_b32 v21, s28")
    def steps(i0, n, np_):
        for i in range(i0, i0+n):
            for wv in range(2):
                a(f"s_add_u32 m0, s26, {(4*i + 2*wv)*4096}")
                a(f"s_add_u32 s28, s24, {i*65536 + np_*32768 + wv*28*32768}")
                for k in range(4):
                    a(f"buffer_load_dwordx4 v{V+k}, {S(SRD_W2)}, s28 offen offset:{k*1024} lds")
    def flag(v, cnt):
        a(f"v_mov_b32 v22, {v}")
        a(f"s_waitcnt vmcnt({cnt})")
        a("ds_write_b32 v21, v22")
    steps(0, 3, 0)
    a("s_waitcnt vmcnt(24)")
    bar(a)
    steps(3, 3, 0)
    a("s_waitcnt vmcnt(24)")
    bar(a)
    steps(6, 1, 0)
    flag(1, 0)
    a("s_lshl_b32 s28, s6, 2")
    a(f"s_add_u32 s28, s28, {FL_EO}")
    a("s_lshl_b32 s30, s6, 13")
    a(f"s_add_u32 s30, s30, {L_SIDE}")
    lds_wait(a, "s28", 1, 1, "w2eo", 17, 24, sleep=2)
W2P1 = 5
RPRE = 4
RB4 = 3
RMID = 7
PBN = -1
PFDELAY = 0
W2PFB = 3
UTB = 6
LDPF = 48
HMAX = 2
PSL = 2
WPRE = 7
PAH = 3
HDEPTH = 5
BCHK = 2
C1 = 60
CSTEP = 27
SPPF0 = 8
APOLL = 11
VSLEEP = 32

def gen_g2(a):
    ACC = 192
    HSC = "" if "nosc1ld" in OPT else " sc1"
    def acc(nu, m): return ACC + 4*(nu*4+m)
    def gs(i):
        if "g2st" in OPT:
            stamp(a, i, "any")
            a(f"s_mov_b32 s{ST0+2+4*i}, s0")
    rs = g2_rs
    wset = {i: WSET0[i] for i in range(7)}; hset = {}
    free = [0, 1, 9]
    vm = VM(a)
    vm.q = ["st"]
    def pollop(reg, soff, tag):
        va = VPB if tag == "fb" else VPA
        vm.op(f"buffer_load_dword v{reg}, v{va}, {S(SRD_WS)}, {soff} offen sc1", tag)
    def pollchk(reg, soff, tag, sleep):
        va = VPB if tag == "fb" else VPA
        vm.wait(tag)
        a(f"v_cmp_ne_u32 vcc, 1, v{reg}")
        a(f"s_cbranch_vccz L_g2_{tag}_ok")
        a.spin(f"L_g2_{tag}", sleep)
        a(f"buffer_load_dword v{reg}, v{va}, {S(SRD_WS)}, {soff} offen sc1")
        a("s_waitcnt vmcnt(0)")
        a(f"v_cmp_ne_u32 vcc, 1, v{reg}")
        a(f"s_cbranch_vccnz L_g2_{tag}")
        a.label(f"L_g2_{tag}_ok")
    def hload_ops(n):
        k = free.pop(0)
        hset[n] = k
        ops = []
        for m in range(4):
            ops.append(lambda m=m: vm.op(f"buffer_load_dwordx4 {vr(rs(k)+4*m,4)}, v{VH+m}, {S(SRD_WS)}, s{S_H} offen{HSC}", f"h_{n}"))
        last = ops[3]
        if n == 6: ops[3] = lambda: (last(), a(f"s_sub_u32 s{S_H}, s{S_H}, {6*2048 - 1024}"))
        else: ops[3] = lambda: (last(), a(f"s_add_u32 s{S_H}, s{S_H}, 2048"))
        return ops
    def refill(i):
        a(f"s_add_u32 m0, s{S_RING}, {i*16384}")
        a("s_nop 0")
        for k in range(4):
            vm.op(f"buffer_load_dwordx4 v{VW2+k}, {S(SRD_W2)}, s{S_W6} offen offset:{k*1024} lds", f"w_{i+7}")
        a(f"s_add_u32 s{S_W6}, s{S_W6}, 65536")
    gs(0)
    if "pollfirst" in OPT: pollop(23, f"s{S_FA}", "fa")
    a("s_waitcnt lgkmcnt(1)")
    for x in g2_tr(a, 6, WSET0[6]): a(x)
    a("s_cmp_eq_u32 s35, 0")
    a("s_cselect_b32 s35, 0x7ffffff0, s35")
    a("v_mov_b32 v4, 1")
    a("v_mov_b32 v3, 0")
    for i in range(RB4): refill(i)
    vm.wait("st")
    a("s_mov_b64 exec, 1")
    vm.op(f"buffer_store_dword v4, v3, {S(SRD_WS)}, s35 offen sc1", "pub")
    a("s_mov_b64 exec, -1")
    stamp(a, 5)
    gs(1)
    if "pollfirst" not in OPT: pollop(23, f"s{S_FA}", "fa")
    for i in range(RB4, RPRE): refill(i)
    nref = RPRE
    a("s_cmp_lt_u32 s2, 224")
    a("s_cbranch_scc1 L_g2_gate")
    a("s_cmp_lg_u32 s3, 0")
    a("s_cbranch_scc1 L_g2_gw")
    a("v_min_u32 v2, 27, v1")
    a("v_lshlrev_b32 v2, 2, v2")
    a.spin("L_g2_gp", 12)
    a(f"buffer_load_dword v3, v2, {S(SRD_WS)}, s{S_FA} offen sc1")
    a("s_waitcnt vmcnt(0)")
    a("v_cmp_eq_u32 vcc, 1, v3")
    a("s_cbranch_vccz L_g2_gp")
    lds_set(a, FL_TR2, 1, 2, 3)
    a.label("L_g2_gw")
    lds_wait(a, FL_TR2, 1, 1, "g2g", 2, 4, sleep=2)
    a.label("L_g2_gate")
    pollchk(23, f"s{S_FA}", "fa", PSL)
    stamp(a, 6)
    gs(2)
    nh = 0
    while len(free) > 0 and nh < 7:
        for op in hload_ops(nh): op()
        nh += 1
    a("s_waitcnt lgkmcnt(0)")
    while nref < RMID:
        refill(nref); nref += 1
    if PBN < 0: pollop(11, f"s{S_FB}", "fb")
    SFC, SAT, SG = 32, 34, 31
    VA0, VA1, VG = 8, 9, 12
    VPR = [0, 13, 19, 20]
    a("s_lshl_b32 s33, s3, 6")
    a(f"s_mul_i32 s{SFC}, s{S_DEL}, {FSTR}")
    a(f"s_add_u32 s{SFC}, s{SFC}, s33")
    a(f"s_lshr_b32 s33, s{S_TAU}, 4")
    a("s_lshl_b32 s33, s33, 8")
    a(f"s_add_u32 s{SFC}, s{SFC}, s33")
    a(f"s_add_u32 s{SFC}, s{SFC}, {WS_FA}")
    a("v_lshrrev_b32 v2, 3, v1")
    a("v_and_b32 v3, 7, v1")
    a("v_bfe_u32 v4, v1, 4, 2")
    a("v_lshlrev_b32 v4, 1, v4")
    a("v_xor_b32 v3, v3, v4")
    a("v_lshlrev_b32 v2, 12, v2")
    a(f"v_lshl_add_u32 v{VA0}, v3, 4, v2")
    a(f"v_add_u32 v{VA1}, {8*4096-1024}, v{VA0}")
    a(f"v_and_b32 v{VG}, 15, v1")
    a(f"v_lshlrev_b32 v{VPA}, 2, v{VG}")
    a(f"v_lshlrev_b32 v{VG}, 3, v{VG}")
    a(f"s_lshl_b32 s{SAT}, s{S_DEL}, 18")
    a("s_lshl_b32 s33, s3, 16")
    a(f"s_add_u32 s{SAT}, s{SAT}, s33")
    a(f"s_lshl_b32 s33, s{S_TAU}, 7")
    a(f"s_add_u32 s{SAT}, s{SAT}, s33")
    a(f"s_add_u32 s{SAT}, s{SAT}, {WS_A}")
    a(f"s_lshl_b32 s{SG}, s{S_TAU}, 9")
    a("s_lshl_b32 s33, s3, 7")
    a(f"s_add_u32 s{SG}, s{SG}, s33")
    a(f"s_add_u32 s{SG}, s{SG}, {WS_G}")
    a(f"v_lshl_add_u32 v5, v1, 4, s{S_RING}")
    for ww in range(1, 4):
        a(f"s_sub_u32 s33, s3, {ww}")
        a("s_and_b32 s33, s33, 3")
        a("s_lshl_b32 s33, s33, 12")
        a(f"s_add_u32 s33, s33, {L2_W2 + (ww-1)*16384}")
        a(f"v_lshl_add_u32 v{VPR[ww]}, v1, 4, s33")
    a("v_bfe_u32 v2, v1, 2, 2")
    a("v_and_b32 v3, 3, v1")
    a("v_lshrrev_b32 v4, 4, v1")
    a("v_lshl_add_u32 v6, v4, 2, v2")
    a("v_lshlrev_b32 v6, 7, v6")
    a("v_lshl_add_u32 v6, v3, 3, v6")
    a("v_lshrrev_b32 v7, 1, v2")
    a("v_and_b32 v4, 1, v4")
    a("v_lshl_or_b32 v7, v4, 1, v7")
    a("v_xor_b32 v7, s3, v7")
    a("v_lshl_add_u32 v6, v7, 5, v6")
    a(f"v_add_u32 v6, {L2_AT}, v6")
    a("v_and_b32 v2, 15, v1")
    a("v_lshlrev_b32 v2, 10, v2")
    a("v_lshrrev_b32 v3, 4, v1")
    a("v_lshl_add_u32 v7, v3, 4, v2")
    a(f"s_lshl_b32 s1, s{S_TAU}, 16")
    a("s_lshl_b32 s33, s3, 14")
    a("s_add_u32 s1, s1, s33")
    a(f"s_lshl_b32 s33, s{S_DEL}, 7")
    a("s_add_u32 s1, s1, s33")
    bok = False
    for n in range(14):
        nxt = n + 1
        if 7 <= nxt < 14: vm.wait(f"w_{nxt}")
        vm.wait(f"h_{n}")
        if n >= 7 or n == 0:
            a("s_waitcnt lgkmcnt(0)")
        trs = []
        if 7 <= nxt < 14:
            k = free.pop(); wset[nxt] = k
            trs = g2_tr(a, nxt - 7, k)
        lds_ = []
        cnt = 0
        while nh < 14 and free and nh - n <= HDEPTH and cnt < HMAX:
            if nh >= 7 and not bok:
                if n < BCHK: break
                pollchk(11, f"s{S_FB}", "fb", max(1, PSL//2))
                vm.op(f"buffer_load_dwordx2 v[14:15], v{VG}, {S(SRD_WS)}, s{SG} offen sc1", "g") if False else None
                bok = True
            lds_ += hload_ops(nh); nh += 1; cnt += 1
        every = 16 // len(lds_) if lds_ else 99
        i = 0
        for nu in range(4):
            for m in range(4):
                d = acc(nu, m)
                c = "0" if n == 0 else vr(d, 4)
                a(f"v_mfma_f32_16x16x32_bf16 {vr(d,4)}, {vr(rs(wset[n])+4*nu,4)}, {vr(rs(hset[n])+4*m,4)}, {c}")
                if trs and i >= 1: a(trs.pop(0))
                if lds_ and i % every == 0: lds_.pop(0)()
                i += 1
        assert not trs and not lds_
        free.append(wset[n]); free.insert(0, hset[n])
        if nref < 7:
            refill(nref); nref += 1
        if n == PBN: pollop(11, f"s{S_FB}", "fb")
        if n == 0: gs(3)
        if n == 6: gs(4)
        if n == 8:
            vm.op(f"buffer_load_dwordx2 v[14:15], v{VG}, {S(SRD_WS)}, s{SG} offen sc1", "g")
        if n == APOLL:
            pollop(23, f"s{SFC}", "fc")
            gs(5)
        if n == APOLL + 2:
            vm.wait("fc")
            a("v_cmp_ne_u32 s[6:7], 1, v23")
            a("s_lshl_b32 s33, s3, 11")
            a(f"s_add_u32 m0, s33, {L2_AT}")
            a("s_nop 1")
            a("s_cmp_lg_u64 s[6:7], 0")
            a(f"s_cselect_b32 s35, 0x7ffffff0, s{SAT}")
            vm.op(f"buffer_load_dwordx4 v{VA0}, {S(SRD_WS)}, s35 offen sc1 lds", "at")
            vm.op(f"buffer_load_dwordx4 v{VA1}, {S(SRD_WS)}, s35 offen offset:1024 sc1 lds", "at")
    assert bok
    gs(6)
    stamp(a, 7)
    a("s_nop 3")
    for mp in range(1, 4):
        for nu in range(4):
            a(f"ds_write_b128 v5, {vr(acc(nu,mp),4)} offset:{(mp-1)*16384+nu*1024}")
    a("s_cmp_eq_u64 s[6:7], 0")
    a("s_cbranch_scc1 L_g2_fc_ok")
    a.spin("L_g2_fc", 0)
    a(f"buffer_load_dword v23, v{VPA}, {S(SRD_WS)}, s32 offen sc1")
    a("s_waitcnt vmcnt(0)")
    a("v_cmp_ne_u32 vcc, 1, v23")
    a("s_cbranch_vccz L_g2_fc2")
    a("s_sleep 6")
    a("s_branch L_g2_fc")
    a.label("L_g2_fc2")
    a(f"buffer_load_dwordx4 v{VA0}, {S(SRD_WS)}, s34 offen sc1 lds")
    a(f"buffer_load_dwordx4 v{VA1}, {S(SRD_WS)}, s34 offen offset:1024 sc1 lds")
    a.label("L_g2_fc_ok")
    a("s_mov_b32 s31, 0xffff0000")
    a("s_waitcnt vmcnt(0) lgkmcnt(0)")
    gs(7)
    a("s_barrier")
    R = 64
    for ww in range(1, 4):
        for nu in range(4):
            a(f"ds_read_b128 {vr(R+16*ww+4*nu,4)}, v{VPR[ww]} offset:{nu*1024}")
    AT = 32
    for nu in range(4):
        a(f"ds_read_b64_tr_b16 {vr(AT+2*nu,2)}, v6 offset:{nu*2048}")
    a("s_waitcnt lgkmcnt(12)")
    for nu in range(4):
        for i in (0, 2):
            a(f"v_pk_add_f32 {vr(R+4*nu+i,2)}, {vr(acc(nu,0)+i,2)}, {vr(R+16+4*nu+i,2)}")
    a("s_waitcnt lgkmcnt(4)")
    for i in range(0, 16, 2):
        a(f"v_pk_add_f32 {vr(R+32+i,2)}, {vr(R+32+i,2)}, {vr(R+48+i,2)}")
    for i in range(0, 16, 2):
        a(f"v_pk_add_f32 {vr(R+i,2)}, {vr(R+i,2)}, {vr(R+32+i,2)}")
    for i in range(0, 16, 2):
        a(f"v_pk_mul_f32 {vr(R+i,2)}, {vr(R+i,2)}, v[14:15] op_sel:[0,1] op_sel_hi:[1,1]")
    a("s_waitcnt lgkmcnt(0)")
    for i in range(8):
        a(f"v_lshlrev_b32 v40, 16, v{AT+i}")
        a(f"v_and_b32 v41, s31, v{AT+i}")
        a(f"v_fmac_f32 v{R+2*i}, v40, v14")
        a(f"v_fmac_f32 v{R+2*i+1}, v41, v14")
    P = 44
    for pr in range(2):
        p = P + 4*pr
        n0, n1 = 2*pr, 2*pr+1
        a(f"v_cvt_pk_bf16_f32 v{p}, v{R+4*n0}, v{R+4*n0+1}")
        a(f"v_cvt_pk_bf16_f32 v{p+1}, v{R+4*n0+2}, v{R+4*n0+3}")
        a(f"v_cvt_pk_bf16_f32 v{p+2}, v{R+4*n1}, v{R+4*n1+1}")
        a(f"v_cvt_pk_bf16_f32 v{p+3}, v{R+4*n1+2}, v{R+4*n1+3}")
        a("s_nop 1")
        a(f"v_permlane32_swap_b32 v{p}, v{p+2}")
        a(f"v_permlane32_swap_b32 v{p+1}, v{p+3}")
        a("s_nop 1")
        a(f"v_permlane16_swap_b32 v{p}, v{p+2}")
        a(f"v_permlane16_swap_b32 v{p+1}, v{p+3}")
        a(f"buffer_store_dwordx4 {vr(p,4)}, v7, {S(SRD_OUT)}, s1 offen offset:{64*pr}")

TRX = 128
GW = 192
def gen_tr_loads(a):
    a("s_sub_u32 s24, s2, 224")
    a("s_lshl_b32 s25, s24, 2")
    a("s_add_u32 s25, s25, s3")
    a("s_lshl_b32 s28, s25, 14")
    a("v_lshlrev_b32 v9, 4, v1")
    for r in range(16):
        a(f"buffer_load_dwordx4 {vr(TRX+4*r,4)}, v9, {S(SRD_X)}, s28 offen offset:{(r%4)*1024}")
        if r % 4 == 3: a("s_add_u32 s28, s28, 4096")
    a(f"global_load_dwordx4 {vr(GW,4)}, v9, {pp(I_GW)}")
    return 17

def gen_transpose(a):
    X = TRX
    a("s_mov_b32 s6, s24")
    a("s_mov_b32 s7, s25")
    srd(a, SRD_OUT, ptr(I_OUT), 2048*512*2)
    a("v_lshrrev_b32 v5, 4, v1")
    a("s_mov_b32 s31, 0xffff0000")
    a("s_waitcnt vmcnt(0)")
    for i in range(4):
        a(f"v_lshlrev_b32 v{20+2*i}, 16, v{GW+i}")
        a(f"v_and_b32 v{21+2*i}, s31, v{GW+i}")
    SS = 64
    def grow(r):
        T = 32 + 8*(r & 1)
        for i in range(4):
            a(f"v_lshlrev_b32 v{T+2*i}, 16, v{X+4*r+i}")
            a(f"v_and_b32 v{T+2*i+1}, s31, v{X+4*r+i}")
        for i in range(4):
            a(f"v_pk_mul_f32 {vr(T+2*i,2)}, {vr(T+2*i,2)}, {vr(20+2*i,2)}")
        for i in range(4):
            a(f"v_cvt_pk_bf16_f32 v{T+2*i}, v{T+2*i}, v{T+2*i+1}")
        for i in range(4):
            a(f"v_and_b32 v{T+2*i+1}, s31, v{T+2*i}")
            a(f"v_lshlrev_b32 v{T+2*i}, 16, v{T+2*i}")
        a(f"v_pk_add_f32 {vr(T,2)}, {vr(T,2)}, {vr(T+2,2)}")
        a(f"v_pk_add_f32 {vr(T+4,2)}, {vr(T+4,2)}, {vr(T+6,2)}")
        a(f"v_pk_add_f32 {vr(T,2)}, {vr(T,2)}, {vr(T+4,2)}")
        a(f"v_add_f32 v{SS+r}, v{T}, v{T+1}")
    for r in range(16): grow(r)
    a("s_nop 1")
    for i in range(8):
        a(f"v_permlane32_swap_b32 v{SS+i}, v{SS+8+i}")
    for i in range(8):
        a(f"v_add_f32 v{SS+i}, v{SS+i}, v{SS+8+i}")
    a("s_nop 1")
    for i in range(4):
        a(f"v_permlane16_swap_b32 v{SS+i}, v{SS+4+i}")
    for i in range(4):
        a(f"v_add_f32 v{SS+i}, v{SS+i}, v{SS+4+i}")
    for sh in (8, 4, 2, 1):
        a("s_nop 0")
        for i in range(4):
            a(f"v_add_f32_dpp v{SS+i}, v{SS+i}, v{SS+i} row_ror:{sh} row_mask:0xf bank_mask:0xf")
    a("v_and_b32 v7, 3, v1")
    for i in range(1, 4):
        a(f"v_cmp_eq_u32 vcc, {i}, v7")
        a("s_nop 1")
        a(f"v_cndmask_b32 v{SS}, v{SS}, v{SS+i}, vcc")
    a(f"v_cvt_pk_bf16_f32 v{SS}, v{SS}, v{SS}")
    a(f"v_and_b32 v{SS}, s31, v{SS}")
    a(f"v_mul_f32 v{SS}, {f2u(-LOG2E)}, v{SS}")
    a(f"v_exp_f32 v{SS}, v{SS}")
    a("s_nop 0")
    a(f"v_add_f32 v{SS}, 1.0, v{SS}")
    a(f"v_rcp_f32 v{SS}, v{SS}")
    a("s_nop 0")
    a(f"v_cvt_pk_bf16_f32 v{SS}, v{SS}, v{SS}")
    a(f"v_and_b32 v{SS}, s31, v{SS}")
    a(f"v_sub_f32 v{SS+1}, 1.0, v{SS}")
    a(f"v_cvt_pk_bf16_f32 v{SS+1}, v{SS+1}, v{SS+1}")
    a(f"v_and_b32 v{SS+1}, s31, v{SS+1}")
    a("v_lshl_add_u32 v7, v5, 2, v7")
    a("v_lshlrev_b32 v7, 3, v7")
    a("s_lshl_b32 s28, s7, 7")
    a(f"s_add_u32 s28, s28, {WS_G}")
    a("s_mov_b32 s34, 0x000f000f")
    a("s_mov_b32 s35, 0x000f000f")
    a("s_mov_b64 exec, s[34:35]")
    a(f"buffer_store_dwordx2 {vr(SS,2)}, v7, {S(SRD_WS)}, s28 offen sc1")
    a("s_mov_b64 exec, -1")
    a("s_waitcnt vmcnt(0)")
    stamp(a, 4)

def gen_kernel(a):
    a.raw(f".globl {KNAME}\n.p2align 8\n.type {KNAME},@function")
    a.label(KNAME)
    a(f"s_load_dwordx16 s[{P0}:{P0+15}], s[0:1], 0")
    a(f"s_load_dwordx16 s[{P0+16}:{P0+31}], s[0:1], 64")
    a(f"s_load_dwordx2 s[{P0+32}:{P0+33}], s[0:1], 128")
    a("s_cmp_ge_u32 s2, 256")
    a("s_cbranch_scc1 L_end")
    if "stamps" in OPT:
        a(f"s_memtime s[{ST0}:{ST0+1}]")
        a(f"s_memrealtime s[{ST0+2}:{ST0+3}]")
    if "nopf" not in OPT:
        if "pfspare" in OPT:
            a("s_cmp_lt_u32 s2, 224")
            a("s_cbranch_scc1 L_nocpf")
        a("s_getpc_b64 s[6:7]")
        a.label("L_pc0")
        a("v_lshlrev_b32 v1, 6, v0")
        a("v_min_u32 v1, L_codeend-L_pc0, v1")
        a("global_load_dword v31, v1, s[6:7]")
        a.label("L_nocpf")
    a("v_lshrrev_b32 v2, 6, v0")
    a("v_and_b32 v1, 63, v0")
    a("v_readfirstlane_b32 s3, v2")
    a("s_and_b32 s6, s2, 7")
    a("s_lshr_b32 s7, s2, 3")
    a("s_and_b32 s4, s6, 1")
    a("s_lshl_b32 s4, s4, 2")
    a("s_and_b32 s30, s7, 3")
    a("s_add_u32 s4, s4, s30")
    a("s_lshr_b32 s5, s6, 1")
    a("s_mul_i32 s5, s5, 7")
    a("s_lshr_b32 s30, s7, 2")
    a("s_add_u32 s5, s5, s30")
    if "local" in OPT:
        a("s_and_b32 s4, s2, 7")
        a("s_lshr_b32 s5, s2, 3")
    def common_srds():
        a("s_mov_b32 s0, 0x100000")
        srd(a, SRD_X, ptr(I_U), 2048*512*2)
        srd(a, SRD_W1, ptr(I_W1), 512*1792*2)
        srd(a, SRD_WS, ptr(I_WS), WS_SIZE)
        srd(a, SRD_W2, ptr(I_W2), 1792*512*2)
        srd(a, SRD_OUT, ptr(I_OUT), 2048*512*2)
    a("s_cmp_lt_u32 s3, 4")
    a("s_cbranch_scc1 L_w03")
    a("s_cmp_ge_u32 s3, 6")
    a("s_cbranch_scc1 L_kfin")
    a("s_cmp_lg_u32 s3, 4")
    a("s_cbranch_scc1 L_noinit")
    a("v_mov_b32 v3, 0")
    a(f"v_mov_b32 v4, {FLB}")
    a("v_lshl_add_u32 v4, v1, 2, v4")
    a("ds_write_b32 v4, v3")
    a.label("L_noinit")
    gen_loader_setup(a)
    a("s_waitcnt lgkmcnt(0)")
    common_srds()
    a("s_barrier")
    a("s_cmp_ge_u32 s2, 224")
    a("s_cbranch_scc1 L_spare45")
    gen_loader(a)
    a.label("L_ph2_loader")
    gen_w2pre(a)
    stamp(a, 2)
    stamp(a, 3)
    a("s_mov_b32 s33, 1")
    a("s_branch L_conv")
    a.label("L_w03")
    gen_ktab_addr(a)
    a("v_lshrrev_b32 v21, 3, v1")
    a(f"v_mul_u32_u24 v21, {64*3584}, v21")
    a("v_and_b32 v22, 7, v1")
    a("v_lshl_add_u32 v21, v22, 7, v21")
    a("s_lshr_b32 s32, s3, 1")
    a("s_mul_i32 s32, s32, 3")
    a("s_add_u32 s32, s32, 2")
    a(f"s_mul_i32 s32, s32, {64*3584}")
    a("s_lshl_b32 s33, s2, 10")
    a("s_add_u32 s32, s32, s33")
    a("s_waitcnt lgkmcnt(0)")
    gen_ktab_loads(a)
    a("s_barrier")
    stamp(a, 1, "kst")
    common_srds()
    a("s_cmp_ge_u32 s2, 224")
    a("s_cbranch_scc1 L_kt")
    gen_g1_setup(a)
    a("s_bitcmp1_b32 s3, 0")
    a(f"s_cselect_b32 s{SRD_W1}, s{ptr(I_W3)}, s{ptr(I_W1)}")
    a(f"s_cselect_b32 s{SRD_W1+1}, s{ptr(I_W3)+1}, s{ptr(I_W1)+1}")
    a(f"s_and_b32 s{SRD_W1+1}, s{SRD_W1+1}, 0xffff")
    if "latewpf" in OPT:
        a("v_mov_b32 v17, v21")
        a("s_mov_b32 s1, s32")
    if "nowpf" in OPT or "latewpf" in OPT: a("s_mov_b32 s32, 0x7ffffff0")
    a("s_mov_b64 exec, 0xffffff")
    a(f"buffer_load_dword v23, v21, {S(SRD_W1)}, s32 offen")
    a("s_mov_b64 exec, -1")
    stamp(a, 2, "kst")
    a.label("L_kt")
    gen_ktab(a, 17)
    a("s_cmp_ge_u32 s2, 224")
    a("s_cbranch_scc1 L_tr_post")
    if "latewpf" in OPT:
        a("s_mov_b64 exec, 0xffffff")
        a(f"buffer_load_dword v23, v17, {S(SRD_W1)}, s1 offen")
        a("s_mov_b64 exec, -1")
    gen_g2_pre(a)
    G1G2[0] = True
    gen_g1(a)
    a.label("L_g2")
    ampx = [o for o in OPT if o.startswith("ampx")]
    if ampx:
        wa = int(ampx[0][5:8])
        a(f"s_cmp_lg_u32 s2, {wa}")
        a("s_cbranch_scc1 L_ampx")
        a("s_cmp_lg_u32 s3, 0")
        a("s_cbranch_scc1 L_ampx")
        a("v_mov_b32 v2, 0")
        a(f"v_mov_b32 v3, s{ST0+2}")
        a(f"global_store_dword v2, v3, {pp(I_DBG)} offset:160 sc1")
        a.label("L_ampx")
    gen_g2(a)
    if "stamps" in OPT:
        a("s_waitcnt vmcnt(0)")
        stamp(a, 1)
    G1G2[0] = False
    amp = [o for o in OPT if o.startswith("amp")]
    if amp and amp[0][3] == "x":
        j = int(amp[0][4]); wa = int(amp[0][5:8]); wb = int(amp[0][8:11])
        a(f"s_cmp_lg_u32 s2, {wb}")
        a("s_cbranch_scc1 L_ampskip")
        a("s_cmp_lg_u32 s3, 0")
        a("s_cbranch_scc1 L_ampskip")
        a("v_mov_b32 v1, 0")
        a(f"global_load_dword v2, v1, {pp(I_DBG)} offset:160 sc1")
        a("s_waitcnt vmcnt(0)")
        a("v_readfirstlane_b32 s28, v2")
        a("s_nop 3")
        a(f"s_sub_u32 s28, s{ST0+2+4*j}, s28")
        a("s_add_u32 s28, s28, 200")
        a("s_lshl_b32 s28, s28, 3")
        a("s_min_u32 s28, s28, 100000")
        a.label("L_amp")
        a("s_memrealtime s[30:31]")
        a("s_waitcnt lgkmcnt(0)")
        a(f"s_sub_u32 s29, s30, s{ST0+2+4*1}")
        a("s_cmp_lt_u32 s29, s28")
        a("s_cbranch_scc1 L_amp")
        a.label("L_ampskip")
    elif amp:
        i, j = int(amp[0][3]), int(amp[0][4])
        a("s_cmp_lg_u32 s2, 100")
        a("s_cbranch_scc1 L_ampskip")
        a("s_cmp_lg_u32 s3, 0")
        a("s_cbranch_scc1 L_ampskip")
        a(f"s_sub_u32 s28, s{ST0+2+4*j}, s{ST0+2+4*i}")
        a("s_lshl_b32 s28, s28, 3")
        a("s_min_u32 s28, s28, 100000")
        a.label("L_amp")
        a("s_memrealtime s[30:31]")
        a("s_waitcnt lgkmcnt(0)")
        a(f"s_sub_u32 s29, s30, s{ST0+2+4*1}")
        a("s_cmp_lt_u32 s29, s28")
        a("s_cbranch_scc1 L_amp")
        a.label("L_ampskip")
    else:
        stamp_flush(a, 8)
    a("s_endpgm")
    a.label("L_tr_post")
    gen_tr_loads(a)
    gen_transpose(a)
    lds_wait(a, FL_VALID, 1, 1, "trv", 3, 4, sleep=4)
    a(f"s_mul_i32 s35, s6, {FSTR}")
    a("s_lshl_b32 s28, s3, 2")
    a("s_add_u32 s35, s35, s28")
    a(f"s_add_u32 s35, s35, {WS_FH + 32*FSTR + 112}")
    publish(a, "s35", 3, 4)
    a("s_mov_b32 s35, 0")
    gen_g2_pre(a)
    lds_wait(a, FL_W2, 2, 1, "sw1", 3, 4, sleep=2)
    WHI[0] = False
    for i in range(6):
        for x in g2_tr(a, i, WSET0[i]): a(x)
    rd_flag(a, 7)
    a("s_branch L_g2")
    a.label("L_spare45")
    a("s_sub_u32 s6, s3, 4")
    a("s_cmp_lg_u32 s2, 255")
    a("s_cbranch_scc1 L_sp_bar")
    a("s_cmp_lg_u32 s3, 4")
    a("s_cbranch_scc1 L_sp_bar")
    for i in range(4):
        a(f"v_mov_b32 v{4+i}, 0")
    a("v_lshrrev_b32 v2, 3, v1")
    a(f"v_mul_u32_u24 v2, {FSTR}, v2")
    a("v_and_b32 v3, 7, v1")
    a("v_lshl_add_u32 v2, v3, 4, v2")
    a(f"s_mov_b32 s28, {WS_FH}")
    for i in range(12):
        a(f"buffer_store_dwordx4 v[4:7], v2, {S(SRD_WS)}, s28 offen sc1")
        a(f"s_add_u32 s28, s28, {8*FSTR}")
    a(f"s_mov_b32 s28, {WS_FA}")
    for i in range(4):
        a(f"buffer_store_dwordx4 v[4:7], v2, {S(SRD_WS)}, s28 offen offset:{i*128} sc1")
    a("v_mov_b32 v3, 1")
    a("s_waitcnt vmcnt(0)")
    a("s_mov_b64 exec, 1")
    a(f"global_store_dword v4, v3, {pp(I_DBG)} sc1")
    a("s_mov_b64 exec, -1")
    a.label("L_sp_bar")
    if "splate" in OPT:
        lds_wait(a, FL_KG, 4, 1, "spring0", 17, 22, sleep=4)
        lds_wait(a, FL_TR, 1, 1, "spun0", 17, 22, sleep=4)
    if "sppf" in OPT:
        a("s_cmp_eq_u32 s6, 1")
        a(f"s_cselect_b32 s{SRD_W1}, s{ptr(I_W3)}, s{ptr(I_W1)}")
        a(f"s_cselect_b32 s{SRD_W1+1}, s{ptr(I_W3)+1}, s{ptr(I_W1)+1}")
        a(f"s_and_b32 s{SRD_W1+1}, s{SRD_W1+1}, 0xffff")
        a("s_sub_u32 s29, s2, 224")
        a("s_mul_i32 s28, s29, 7168")
        a(f"s_add_u32 s28, s28, {SPPF0*64*3584}")
        a("v_lshlrev_b32 v2, 7, v1")
        a("s_mov_b32 s34, -1")
        a("s_mov_b32 s35, 0xffffff")
        a("s_mov_b64 exec, s[34:35]")
        for st in range(SPPF0, 8):
            a(f"buffer_load_dword v3, v2, {S(SRD_W1)}, s28 offen")
            a(f"s_add_u32 s28, s28, {64*3584}")
        a("s_lshl_b32 s29, s29, 1")
        a("s_add_u32 s29, s29, s6")
        a("s_mul_i32 s28, s29, 28672")
        for i in range(4):
            a(f"buffer_load_dword v3, v2, {S(SRD_W2)}, s28 offen")
            a("s_add_u32 s28, s28, 7168")
        a("s_mov_b64 exec, -1")
        a("s_waitcnt vmcnt(0)")
    lds_wait(a, FL_KG, 4, 1, "spring", 17, 22, sleep=4)
    lds_wait(a, FL_TR, 1, 1, "spun", 17, 22, sleep=4)
    a("s_branch L_ph2_loader")
    a.label("L_kfin")
    a("s_sub_u32 s6, s3, 6")
    a("s_lshl_b32 s7, s2, 1")
    a("s_add_u32 s7, s7, s6")
    a("s_lshl_b32 s30, s6, 13")
    a(f"s_add_u32 s30, s30, {L_SIDE}")
    a("s_lshl_b32 s28, s7, 1")
    a("v_mov_b32 v16, s28")
    a("s_waitcnt lgkmcnt(0)")
    common_srds()
    a(f"global_load_ushort v{V_DSK}, v16, {pp(I_DSK)}")
    a("s_cmp_eq_u32 s6, 0")
    a("s_cbranch_scc1 L_kf_w6")
    gen_unit_load(a)
    a("s_barrier")
    gen_unit(a)
    lds_set(a, FL_TR, 1, 2, 3)
    a("s_branch L_kf_go")
    a.label("L_kf_w6")
    a("s_barrier")
    a.label("L_kf_go")
    gen_kfin_addr(a)
    gen_kfin(a)
    stamp(a, 3)
    a("s_mov_b32 s33, 0")
    a.label("L_conv")
    gen_conv(a)
    stamp(a, 7)
    stamp_flush(a, 8)
    a.label("L_end")
    a.label("L_codeend")
    a("s_endpgm")

def kd(name, vgpr, sgpr=102):
    return f""".p2align 6
.amdhsa_kernel {name}
  .amdhsa_next_free_vgpr {vgpr}
  .amdhsa_next_free_sgpr {sgpr}
  .amdhsa_accum_offset {vgpr}
  .amdhsa_group_segment_fixed_size 0
  .amdhsa_kernarg_size 136
  .amdhsa_user_sgpr_count 2
  .amdhsa_user_sgpr_kernarg_segment_ptr 1
  .amdhsa_system_sgpr_workgroup_id_x 1
.end_amdhsa_kernel"""

def main():
    out = sys.argv[1] if len(sys.argv) > 1 else "k.s"
    if len(sys.argv) > 2:
        OPT.update(sys.argv[2].split(","))
    global PFDELAY
    for o in OPT:
        if o.startswith("pfd"): PFDELAY = int(o[3:])
        if o.startswith("sp0"): globals()["SPPF0"] = int(o[3:])
        if o.startswith("c1_"): globals()["C1"] = int(o[3:])
        if o.startswith("cs_"): globals()["CSTEP"] = int(o[3:])
        if o.startswith("wpre"): globals()["WPRE"] = int(o[4:])
        if o.startswith("pah"): globals()["PAH"] = int(o[3:])
        if o.startswith("bchk"): globals()["BCHK"] = int(o[4:])
        if o.startswith("psl"): globals()["PSL"] = int(o[3:])
        if o.startswith("ldp_"): globals()["LDPF"] = int(o[4:])
        if o.startswith("rb"): globals()["RB4"] = int(o[2:])
        if o.startswith("rmid"): globals()["RMID"] = int(o[4:])
        if o.startswith("hmax"): globals()["HMAX"] = int(o[4:])
        if o.startswith("pbn"): globals()["PBN"] = int(o[3:])
        if o.startswith("apoll"): globals()["APOLL"] = int(o[5:])
        if o.startswith("rpre"): globals()["RPRE"] = int(o[4:])
        if o.startswith("hd"): globals()["HDEPTH"] = int(o[2:])
    OPT.update(["nowalk", "sppf", "now2pf", "splate"])
    a = Asm()
    a.raw(f"; @launch grid=(256,1,1) block=(512,1,1) lds={LDS_SIZE}")
    a.raw('.amdgcn_target "amdgcn-amd-amdhsa--gfx950"')
    a.raw(".text")
    gen_kernel(a)
    a.raw('.section .rodata,"a"')
    a.raw(kd(KNAME, 256))
    open(out, "w").write(a.text())

if __name__ == "__main__":
    main()
```

```python
import sys, struct, math

KNAME = "gated_mix__ssm_conv_s4__glu_gated_swiglu__prompt_kernel"
OPT = set()

def f2u(x):
    return struct.unpack("<I", struct.pack("<f", x))[0]

import re
def est_size(s):
    m = s.split()[0]
    lit = 0
    for tok in re.findall(r"(?<![\w\[:])(-?(?:0x[0-9a-fA-F]+|\d+))(?![\w\]:.])", s.split(None, 1)[1] if " " in s else ""):
        v = int(tok, 0)
        if not (-16 <= v <= 64): lit = 4
    if m.startswith(("ds_", "buffer_", "global_", "v_mfma", "v_pk_", "s_load", "s_mem")): return 8
    if m.startswith("s_"):
        if m in ("s_waitcnt", "s_nop", "s_sleep", "s_branch", "s_barrier", "s_setprio", "s_endpgm") or m.startswith("s_cbranch"): return 4
        return 4 + lit
    if m in ("v_fma_f32", "v_lshl_add_u32", "v_lshl_or_b32", "v_add3_u32", "v_bfe_u32", "v_min3_u32", "v_cvt_pk_bf16_f32", "v_perm_b32",
             "v_alignbit_b32", "v_and_or_b32", "v_mul_lo_u32") or "dpp" in m or "-v" in s: return 8
    return 4 + lit

HOP = 56
WALKCH = {}
WALKN = {}
class Asm:
    def __init__(self):
        self.L = []
        self.walk = None
    def _hop(self):
        name, k, _ = self.walk
        ch = WALKCH.get(name, 0)
        self.L.append(f"Lh_{name}_{k}:")
        if ch and k % ch == ch - 1:
            self.L.append(f"    s_cbranch_execz L_walk_ret")
        else:
            self.L.append(f"    s_cbranch_execz Lh_{name}_{k+1}")
        self.walk = [name, k+1, 4]
        WALKN[name] = k + 2
    def walk_begin(self, name):
        if "nowalk" in OPT: return
        self.walk = [name, 0, 0]
        self._hop()
    def walk_end(self, to="L_walk_ret"):
        if "nowalk" in OPT: return
        name, k, _ = self.walk
        self.L.append(f"Lh_{name}_{k}:")
        self.L.append(f"    s_cbranch_execz {to}")
        self.walk = None
    def __call__(self, s):
        self.L.append("    " + s)
        if self.walk is not None:
            self.walk[2] += est_size(s)
            if self.walk[2] >= HOP:
                self._hop()
    def label(self, s):
        self.L.append(s + ":")
    def spin(self, s, sleep=0):
        self.L.append(s + ":")
        self("s_sub_u32 s0, s0, 1")
        self("s_cbranch_scc1 L_end")
        if sleep:
            self(f"s_sleep {sleep}")
    def raw(self, s):
        self.L.append(s)
    def text(self):
        return "\n".join(self.L) + "\n"

RET = 46
def walk(a, label):
    if "nowalk" in OPT: return
    a("s_mov_b64 exec, 0")
    a(f"s_call_b64 s[{RET}:{RET+1}], {label}")
    a("s_mov_b64 exec, -1")

def vr(b, n):
    return f"v[{b}:{b+n-1}]" if n > 1 else f"v{b}"

class VM:
    def __init__(self, a):
        self.a = a; self.q = []
    def op(self, s, tag):
        self.a(s); self.q.append(tag)
    def wait(self, tag):
        idx = max(i for i, t in enumerate(self.q) if t == tag) if tag in self.q else -1
        if idx < 0: return
        n = len(self.q) - 1 - idx
        assert n <= 63
        self.a(f"s_waitcnt vmcnt({n})")
        self.q = self.q[idx+1:]

WS_H    = 0x000000
WS_UT   = 0x800000
WS_G    = 0xA00000
WS_A    = 0xB00000
FSTR    = 4352
WS_FH   = 0xE00000
WS_FA   = 0xE80000
WS_FU   = WS_FH + 64*FSTR
WS_STAMP = 0x1300000
WS_SIZE = 0x1400000
LOG2E = 1.4426950408889634

SRD_X, SRD_W1, SRD_W2, SRD_WS, SRD_OUT = 8, 12, 16, 20, 24
P0 = 36
def ptr(i): return P0 + 2*i
def pp(i): return f"s[{ptr(i)}:{ptr(i)+1}]"
(I_U, I_ARE, I_AIM, I_BRE, I_BIM, I_CRE, I_CIM, I_LDT, I_DSK, I_X, I_W1, I_W3, I_W2, I_GW, I_OUT, I_DBG, I_WS) = range(17)
ST0 = 70
def S(d): return f"s[{d}:{d+3}]"

G1G2 = [False]
def stamp(a, idx, grp="main"):
    if "stamps" not in OPT: return
    if ("kst" in OPT) != (grp == "kst") and grp != "any": return
    if ("itst" in OPT or "g2st" in OPT) and G1G2[0] and grp != "any": return
    a(f"s_memtime s[{ST0+4*idx}:{ST0+1+4*idx}]")
    a(f"s_memrealtime s[{ST0+2+4*idx}:{ST0+3+4*idx}]")
    a("s_waitcnt lgkmcnt(0)")
def stamp_flush(a, n):
    if "stamps" not in OPT or any(o.startswith("amp") for o in OPT): return
    a("s_waitcnt lgkmcnt(0)")
    a("s_lshl_b32 s34, s2, 3")
    a("s_add_u32 s34, s34, s3")
    a("s_lshl_b32 s34, s34, 6")
    a(f"s_add_u32 s34, s34, {WS_STAMP}")
    a("v_mov_b32 v1, 0")
    for i in range(n):
        a(f"v_mov_b32 v2, s{ST0+4*i}")
        a(f"v_mov_b32 v3, s{ST0+2+4*i}")
        a(f"buffer_store_dwordx2 v[2:3], v1, {S(SRD_WS)}, s34 offen offset:{8*i}")
        a("s_nop 1")

SLOT = 49152
L_SIDE = 3*SLOT
SIDE_U = 0
SIDE_C = 6144
SIDE_F = 7680
LDS_SIZE = 163840
FLB = L_SIDE + SIDE_F
FL_FULL = FLB + 0
FL_ISS = FLB + 8
FL_VALID = FLB + 12
FL_FREE = FLB + 16
FL_EO = FLB + 32
FL_W2 = FLB + 40
FL_TR = FLB + 48
FL_TR2 = FLB + 64
FL_KG = FLB + 80
FL_X = FLB + 96
L2_XB = 139520
SIDE_XA = 4608
KT_BASE = 0
UN_T1 = 17408
UN_T2 = 25600
KG_RS = 272
L2_W2 = 0
L2_EO = 114688
L2_AT = 131328
EO_O = 4160

def srd(a, d, base, nbytes):
    a(f"s_mov_b32 s{d}, s{base}")
    a(f"s_and_b32 s{d+1}, s{base+1}, 0xffff")
    a(f"s_mov_b32 s{d+2}, {nbytes}")
    a(f"s_mov_b32 s{d+3}, 0x00020000")

def lds_wait(a, addr, n, val, tag, va, vt, sleep=1):
    a(f"v_mov_b32 v{va}, {addr}")
    a.spin(f"L_lw_{tag}", sleep)
    if n == 1:
        a(f"ds_read_b32 v{vt}, v{va}")
        a("s_waitcnt lgkmcnt(0)")
    elif n == 2:
        a(f"ds_read_b64 {vr(vt,2)}, v{va}")
        a("s_waitcnt lgkmcnt(0)")
        a(f"v_min_u32 v{vt}, v{vt}, v{vt+1}")
    else:
        a(f"ds_read_b128 {vr(vt,4)}, v{va}")
        a("s_waitcnt lgkmcnt(0)")
        a(f"v_min_u32 v{vt}, v{vt}, v{vt+1}")
        a(f"v_min3_u32 v{vt}, v{vt}, v{vt+2}, v{vt+3}")
    a(f"v_cmp_gt_u32 vcc, {val}, v{vt}")
    a(f"s_cbranch_vccnz L_lw_{tag}")

BARN = [0]
KW = [0]
def kwalk(a):
    if "wg2" not in OPT or "nowalk" in OPT: return
    ch = WALKCH["g2"]; n = WALKN["g2"]
    c0 = KW[0]; KW[0] += 2
    if c0*ch >= n: return
    a("s_mov_b64 exec, 0")
    a("s_cmp_eq_u32 s6, 0")
    a(f"s_cbranch_scc1 L_kw{c0}")
    if (c0+1)*ch < n:
        a(f"s_call_b64 s[{RET}:{RET+1}], Lh_g2_{(c0+1)*ch}")
    a(f"s_branch L_kw{c0}e")
    a.label(f"L_kw{c0}")
    a(f"s_call_b64 s[{RET}:{RET+1}], Lh_g2_{c0*ch}")
    a.label(f"L_kw{c0}e")
    a("s_mov_b64 exec, -1")

def bar(a):
    BARN[0] += 1
    a("s_cmp_ge_u32 s2, 224")
    a(f"s_cbranch_scc1 L_bar{BARN[0]}")
    a("s_barrier")
    a.label(f"L_bar{BARN[0]}")

def lds_set(a, addr, val, va, vv):
    a(f"v_mov_b32 v{va}, {addr}")
    a(f"v_mov_b32 v{vv}, {val}")
    a(f"ds_write_b32 v{va}, v{vv}")

def publish(a, soff, va, vv, sc=" sc1"):
    a(f"v_mov_b32 v{vv}, 1")
    a(f"v_mov_b32 v{va}, 0")
    a("s_mov_b64 exec, 1")
    a(f"buffer_store_dword v{vv}, v{va}, {S(SRD_WS)}, {soff} offen{sc}")
    a("s_mov_b64 exec, -1")

def arrive(a, tag, va, vv):
    a(f"v_mov_b32 v{va}, 0")
    a(f"v_mov_b32 v{vv}, 1")
    a("s_mov_b64 exec, 1")
    a(f"global_atomic_add v{vv+1}, v{va}, v{vv}, {pp(I_DBG)} offset:128 sc0 sc1")
    a("s_waitcnt vmcnt(0)")
    a(f"v_cmp_eq_u32 vcc, 32, v{vv+1}")
    a(f"s_cbranch_vccz L_arr_{tag}")
    a(f"global_store_dword v{va}, v{vv}, {pp(I_DBG)} sc1")
    a.label(f"L_arr_{tag}")
    a("s_mov_b64 exec, -1")

def cmul(a, d, x, y):
    a(f"v_pk_mul_f32 {vr(d,2)}, {vr(x,2)}, {vr(y,2)} op_sel:[0,0] op_sel_hi:[0,1]")
    a(f"v_pk_fma_f32 {vr(d,2)}, {vr(x,2)}, {vr(y,2)}, {vr(d,2)} op_sel:[1,1,0] op_sel_hi:[1,0,1] neg_lo:[0,1,0]")

KT_U = 64
V_DSK = 20
def gen_ktab_addr(a):
    a("s_lshr_b32 s6, s3, 1")
    a("s_lshl_b32 s7, s2, 1")
    a("s_add_u32 s7, s7, s6")
    a("s_lshl_b32 s28, s7, 8")
    a("s_and_b32 s29, s3, 1")
    a("s_lshl_b32 s29, s29, 7")
    a("s_add_u32 s28, s28, s29")
    a("v_lshl_add_u32 v2, v1, 1, s28")
    a("s_lshl_b32 s29, s7, 1")
    a("v_mov_b32 v3, s29")

def gen_ktab_loads(a):
    for i in range(6):
        a(f"global_load_short_d16_hi v{KT_U+i}, v2, {pp(I_ARE+i)}")
    a(f"global_load_short_d16_hi v{KT_U+6}, v3, {pp(I_LDT)}")

def gen_ktab(a, nyoung):
    U = KT_U
    DT = 72; AP = 74; BP = 75
    W1, W4, W512 = 76, 78, 80
    T0 = 82
    W2, W128, W256, Y32 = 56, 58, 60, 62
    Z = 24
    YF = 64; XF = 80
    VWR, VRD = 21, 22
    a(f"s_mul_i32 s30, s3, 4352")
    a(f"s_add_u32 s30, s30, {KT_BASE}")
    a(f"v_lshl_add_u32 v{VWR}, v1, 4, s30")
    a("v_bfe_u32 v6, v1, 2, 2")
    a("v_lshrrev_b32 v7, 4, v1")
    a("v_lshl_add_u32 v6, v7, 3, v6")
    a(f"v_lshl_add_u32 v{VRD}, v6, 4, s30")
    a("v_and_b32 v6, 1, v1")
    a(f"v_lshl_add_u32 v{VRD}, v6, 3, v{VRD}")
    a("v_bfe_u32 v6, v1, 1, 1")
    a("v_mul_u32_u24 v6, 1088, v6")
    a(f"v_add_u32 v{VRD}, v6, v{VRD}")
    a("s_mov_b32 s31, 0xffff0000")
    a(f"s_mov_b32 s32, {f2u(LOG2E)}")
    L2E_HI = struct.unpack("<f", struct.pack("<f", LOG2E))[0]
    a(f"s_mov_b32 s33, {f2u(LOG2E - L2E_HI)}")
    a(f"s_mov_b32 s34, {f2u(1.0/(2*math.pi))}")
    a("s_cmp_lt_u32 s2, 224")
    a("s_cbranch_scc1 L_kt_w1")
    a("s_waitcnt vmcnt(0)")
    a.label("L_kt_w1")
    a("s_waitcnt vmcnt(1)")
    stamp(a, 3, "kst")
    for i in range(7):
        a(f"v_and_b32 v{U+i}, s31, v{U+i}")
    L = U+6
    a(f"v_mul_f32 v{DT}, s32, v{L}")
    a(f"v_fma_f32 v{DT+1}, v{L}, s32, -v{DT}")
    a(f"v_fmac_f32 v{DT+1}, s33, v{L}")
    a(f"v_exp_f32 v{DT}, v{DT}")
    a(f"v_mul_f32 v{DT+1}, {f2u(math.log(2.0))}, v{DT+1}")
    a(f"v_fmac_f32 v{DT}, v{DT}, v{DT+1}")
    a(f"v_cvt_pk_bf16_f32 v{DT}, v{DT}, v{DT}")
    a(f"v_and_b32 v{DT}, s31, v{DT}")
    a(f"v_mul_f32 v{AP}, v{DT}, v{U}")
    a(f"v_mul_f32 v{BP}, v{DT}, v{U+1}")
    a(f"v_mul_f32 v{U+2}, v{DT}, v{U+2}")
    a(f"v_mul_f32 v{U+3}, v{DT}, v{U+3}")
    a(f"v_mul_f32 v{AP}, s32, v{AP}")
    a(f"v_mul_f32 v{BP}, s34, v{BP}")
    z = lambda c: Z + 2*c
    CB = z(4)
    def cmuls(lst):
        for d, x, y in lst:
            a(f"v_pk_mul_f32 {vr(d,2)}, {vr(x,2)}, {vr(y,2)} op_sel:[0,0] op_sel_hi:[0,1]")
        for d, x, y in lst:
            a(f"v_pk_fma_f32 {vr(d,2)}, {vr(x,2)}, {vr(y,2)}, {vr(d,2)} op_sel:[1,1,0] op_sel_hi:[1,0,1] neg_lo:[0,1,0]")
    cmuls([(CB, U+4, U+2)])
    dsts = [(z(1), 8, True), (W1, 1, False), (W128, 128, False)]
    for n, (dst, l, cj) in enumerate(dsts):
        lit = "1.0" if l == 1 else str(f2u(float(l)))
        a(f"v_mul_f32 v{T0+4*n}, {lit}, v{AP}")
        a(f"v_mul_f32 v{T0+4*n+1}, {lit}, v{BP}")
    for n in range(3):
        a(f"v_exp_f32 v{T0+4*n}, v{T0+4*n}")
        a(f"v_fract_f32 v{T0+4*n+1}, v{T0+4*n+1}")
    for n in range(3):
        a(f"v_cos_f32 v{T0+4*n+2}, v{T0+4*n+1}")
        a(f"v_sin_f32 v{T0+4*n+3}, v{T0+4*n+1}")
    a(f"v_mov_b32 v{z(0)}, 1.0")
    for n, (dst, l, cj) in enumerate(dsts):
        a(f"v_mul_f32 v{dst}, v{T0+4*n}, v{T0+4*n+2}")
        a(f"v_mul_f32 v{dst+1}, {'-' if cj else ''}v{T0+4*n}, v{T0+4*n+3}")
    a(f"v_mov_b32 v{z(0)+1}, 0")
    cmuls([(z(2), z(1), z(1)), (W2, W1, W1), (z(5), CB, W1), (z(6), CB, W128), (W256, W128, W128)])
    cmuls([(z(3), z(2), z(1)), (Y32, z(2), z(2)), (z(7), z(6), W1), (W4, W2, W2), (z(8), CB, W256), (z(9), z(6), W256), (W512, W256, W256)])
    cmuls([(z(10), z(8), W256), (T0, W512, W512)])
    cmuls([(z(11), z(10), W4), (z(13), T0, z(6)), (z(12), T0, CB)])
    mult = [Y32]*4 + [W2]*4 + [W2, W2, W128, W128] + [W256, W256]
    stamp(a, 4, "kst")
    SP = 1088
    E = 96
    PKK = 120
    pkn = [0]
    ev = lambda kk, it: E + 6*kk + 2*(it-1)
    def val(c0, kk, it):
        if c0 == 0 and kk == 0 and it == 1: return Y32
        return z(c0+kk) if it == 0 else ev(kk, it)
    def tile(c0, nch, extra=None):
        for it in range(1, 4):
            cmuls([(ev(kk, it), val(c0, kk, it-1), mult[c0+kk]) for kk in range(nch) if not (c0 == 0 and kk == 0 and it == 1)])
        if extra is not None:
            cmuls([(extra, ev(0, 3), mult[c0])])
        for pair in range(2):
            for pl in range(2):
                p = PKK + 4*(pkn[0] % 2); pkn[0] += 1
                if 2*pair >= nch:
                    a(f"v_cvt_pk_bf16_f32 v{p}, v{extra+pl}, v{extra+pl}")
                    a(f"ds_write_b32 v{VWR}, v{p} offset:{(2*pl+pair)*SP}")
                    continue
                for kk in range(2):
                    c = 2*pair + kk
                    a(f"v_cvt_pk_bf16_f32 v{p+2*kk}, v{val(c0,c,0)+pl}, v{val(c0,c,1)+pl}")
                    a(f"v_cvt_pk_bf16_f32 v{p+2*kk+1}, v{val(c0,c,2)+pl}, v{val(c0,c,3)+pl}")
                a(f"ds_write_b128 v{VWR}, {vr(p,4)} offset:{(2*pl+pair)*SP}")
    def readfr(dst):
        for pl in range(2):
            for nh in range(2):
                for h in range(2):
                    a(f"ds_read_b64_tr_b16 {vr(dst+8*pl+4*nh+2*h,2)}, v{VRD} offset:{2*pl*SP + nh*512 + h*64}")
    def mm(dd, xf):
        for kk in range(4):
            c = "0" if kk == 0 else vr(dd, 4)
            a(f"v_mfma_f32_16x16x32_bf16 {vr(dd,4)}, {vr(xf+4*kk,4)}, {vr(YF+4*kk,4)}, {c}")
    D = 24
    tile(0, 4)
    readfr(YF)
    tile(4, 4)
    readfr(XF)
    tile(8, 4)
    a("s_waitcnt lgkmcnt(4)")
    mm(D, XF)
    readfr(XF)
    tile(12, 2, extra=z(8))
    a("s_waitcnt lgkmcnt(4)")
    mm(D+4, XF)
    X2 = 96
    readfr(X2)
    stamp(a, 5, "kst")
    a("s_lshl_b32 s28, s6, 13")
    a("s_and_b32 s29, s3, 1")
    a("s_mul_i32 s29, s29, 3072")
    a("s_add_u32 s28, s28, s29")
    a(f"s_add_u32 s28, s28, {L_SIDE}")
    a("v_lshl_add_u32 v2, v1, 4, s28")
    a("s_lshl_b32 s28, s3, 2")
    a(f"s_add_u32 s28, s28, {FL_KG}")
    a("v_mov_b32 v3, s28")
    a("v_mov_b32 v4, 1")
    a(f"ds_write_b128 v2, {vr(D,4)}")
    a(f"ds_write_b128 v2, {vr(D+4,4)} offset:1024")
    a("s_waitcnt lgkmcnt(2)")
    mm(D+8, X2)
    a("s_nop 7")
    a(f"ds_write_b128 v2, {vr(D+8,4)} offset:2048")
    a("ds_write_b32 v3, v4")
    a("s_waitcnt lgkmcnt(0)")
    stamp(a, 6, "kst")

def gen_unit_load(a):
    w2_voffs(a, 8)
    a("s_lshr_b32 s28, s2, 3")
    a("s_lshl_b32 s28, s28, 16")
    a("s_and_b32 s29, s2, 7")
    a("s_lshl_b32 s29, s29, 7")
    a("s_add_u32 s28, s28, s29")
    for q in range(2):
        a(f"s_mov_b32 m0, {UN_T1 + q*4096}")
        a("s_nop 0")
        for k in range(4):
            a(f"buffer_load_dwordx4 v{8+k}, {S(SRD_X)}, s28 offen offset:{k*1024} lds")
        a("s_add_u32 s28, s28, 32768")

def gen_unit(a):
    a("v_bfe_u32 v2, v1, 2, 2")
    a("v_and_b32 v3, 3, v1")
    a("v_lshrrev_b32 v4, 4, v1")
    a("v_lshl_add_u32 v5, v4, 3, v2")
    a("v_lshlrev_b32 v5, 7, v5")
    a("v_lshl_add_u32 v5, v3, 3, v5")
    a(f"v_add_u32 v5, {UN_T1}, v5")
    a("v_lshrrev_b32 v6, 1, v2")
    TA = 64
    for x in range(4):
        a(f"v_xor_b32 v7, {x}, v6")
        a(f"v_lshl_add_u32 v{TA+x}, v7, 5, v5")
    a("v_and_b32 v6, 15, v1")
    a("v_mul_u32_u24 v6, 144, v6")
    a("v_lshl_add_u32 v6, v4, 4, v6")
    a(f"v_add_u32 v{TA+4}, {UN_T2}, v6")
    a("v_lshrrev_b32 v6, 3, v1")
    a("v_and_b32 v7, 7, v1")
    a("v_mul_u32_u24 v2, 144, v6")
    a("v_lshl_add_u32 v2, v7, 4, v2")
    a(f"v_add_u32 v{TA+5}, {UN_T2}, v2")
    a("s_waitcnt vmcnt(0)")
    O = 72
    n = 0
    for nu in range(4):
        for kh in range(2):
            for h in range(2):
                a(f"ds_read_b64_tr_b16 {vr(O+4*n+2*h,2)}, v{TA + (nu ^ (2*h))} offset:{(32*kh+4*h)*128}")
            n += 1
    n = 0
    for nu in range(4):
        for kh in range(2):
            a(f"s_waitcnt lgkmcnt({min(15, 2*(7-n) + n)})")
            a(f"ds_write_b128 v{TA+4}, {vr(O+4*n,4)} offset:{nu*16*144 + kh*64}")
            n += 1
    O2 = 224
    for n in range(8):
        a(f"ds_read_b128 {vr(O2+4*n,4)}, v{TA+5} offset:{n*8*144}")
    a("s_waitcnt lgkmcnt(0)")

def gen_unit_store(a):
    O2 = 224
    a("v_lshrrev_b32 v24, 3, v1")
    a("v_and_b32 v25, 7, v1")
    a("v_lshlrev_b32 v24, 12, v24")
    a("v_lshl_add_u32 v24, v25, 4, v24")
    a("s_and_b32 s28, s2, 7")
    a("s_lshl_b32 s28, s28, 18")
    a("s_lshr_b32 s34, s2, 3")
    a("s_lshl_b32 s34, s34, 7")
    a("s_add_u32 s28, s28, s34")
    a(f"s_add_u32 s28, s28, {WS_UT}")
    for n in range(8):
        a(f"buffer_store_dwordx4 {vr(O2+4*n,4)}, v24, {S(SRD_WS)}, s28 offen sc1")
        a(f"s_add_u32 s28, s28, {8*4096}")

def gen_unit_pub(a):
    a("s_and_b32 s28, s2, 7")
    a(f"s_mul_i32 s28, s28, {4*FSTR}")
    a("s_lshr_b32 s29, s2, 3")
    a("s_lshl_b32 s29, s29, 2")
    a("s_add_u32 s28, s28, s29")
    a(f"s_add_u32 s28, s28, {WS_FU}")
    a(f"v_mul_u32_u24 v2, {FSTR}, v1")
    a("v_mov_b32 v3, 1")
    lds_wait(a, FL_VALID, 1, 1, "unv", 4, 60, sleep=2)
    a("s_waitcnt vmcnt(0)")
    a("s_mov_b64 exec, 15")
    a(f"buffer_store_dword v3, v2, {S(SRD_WS)}, s28 offen sc1")
    a("s_mov_b64 exec, -1")

WA2 = [16, 17, 18, 10]
VH = 24; VW2 = 28; VPA = 21; VPB = 22
S_TAU, S_DEL, S_H, S_FA, S_FB, S_W6, S_RING = 36, 37, 38, 39, 40, 41, 42
def gen_g2_pre(a):
    a(f"s_bfe_u32 s{S_TAU}, s2, 0x20001")
    a("s_and_b32 s28, s2, 1")
    a("s_xor_b32 s28, s28, 1")
    a("s_lshl_b32 s28, s28, 2")
    a(f"s_add_u32 s{S_TAU}, s{S_TAU}, s28")
    a(f"s_lshl_b32 s{S_TAU}, s{S_TAU}, 2")
    a("s_bfe_u32 s28, s2, 0x20003")
    a(f"s_add_u32 s{S_TAU}, s{S_TAU}, s28")
    a(f"s_lshr_b32 s{S_DEL}, s2, 5")
    a("v_bfe_u32 v2, v1, 2, 2")
    a("v_and_b32 v3, 3, v1")
    a("v_lshrrev_b32 v4, 4, v1")
    a("v_lshl_add_u32 v6, v4, 2, v2")
    a("v_lshlrev_b32 v6, 7, v6")
    a("v_lshl_add_u32 v6, v3, 3, v6")
    a(f"s_lshl_b32 s{S_RING}, s3, 12")
    a(f"s_add_u32 s{S_RING}, s{S_RING}, {L2_W2}")
    a(f"v_add_u32 v6, s{S_RING}, v6")
    a("v_lshrrev_b32 v7, 1, v2")
    a("v_and_b32 v4, 1, v4")
    a("v_lshl_or_b32 v7, v4, 1, v7")
    for nu in range(4):
        a(f"v_xor_b32 v5, {nu}, v7")
        a(f"v_lshl_add_u32 v{WA2[nu]}, v5, 5, v6")
    w2_voffs(a, VW2)
    for mp in range(4):
        a(f"s_add_u32 s33, s3, {mp}")
        a("s_and_b32 s33, s33, 3")
        a("s_mul_i32 s33, s33, 57344")
        a(f"v_lshl_add_u32 v{VH+mp}, v1, 4, s33")
    a(f"s_mul_i32 s{S_H}, s{S_TAU}, {4*57344}")
    a(f"s_mul_i32 s31, s3, {14*1024}")
    a(f"s_add_u32 s{S_H}, s{S_H}, s31")
    a(f"s_mul_i32 s{S_W6}, s3, {14*32768}")
    a(f"s_lshl_b32 s33, s{S_DEL}, 7")
    a(f"s_add_u32 s{S_W6}, s{S_W6}, s33")
    a(f"s_add_u32 s{S_W6}, s{S_W6}, 32768")
    a(f"s_mul_i32 s{S_FA}, s{S_TAU}, {FSTR}")
    a("s_mul_i32 s33, s3, 28")
    a(f"s_add_u32 s{S_FA}, s{S_FA}, s33")
    a(f"s_add_u32 s{S_FA}, s{S_FA}, {WS_FH}")
    a(f"s_add_u32 s{S_FB}, s{S_FA}, {32*FSTR}")
    a(f"v_min_u32 v{VPA}, 6, v1")
    a(f"v_lshlrev_b32 v{VPA}, 2, v{VPA}")
    a("s_mul_i32 s33, s3, 24")
    a("s_sub_u32 s33, 112, s33")
    a(f"v_mov_b32 v{VPB}, s33")
    a("v_cmp_gt_u32 vcc, 7, v1")
    a("s_nop 1")
    a(f"v_cndmask_b32 v{VPB}, v{VPB}, v{VPA}, vcc")
    if "oneflag" in OPT:
        a(f"v_mov_b32 v{VPA}, v{VPB}")
        a(f"s_mov_b32 s{S_FA}, s{S_FB}")
    a("s_lshl_b32 s28, s3, 2")
    a(f"s_add_u32 s28, s28, {FL_FREE}")
    a("v_mov_b32 v19, s28")

WSET0 = [2, 3, 4, 5, 6, 7, 8]
def g2_rs(k): return 32 + 16*k
WHI = [False]
def g2_tr(a, i, k):
    r = []
    hi = i >= 4
    if hi != WHI[0]:
        for nu in range(4):
            r.append(f"v_add_u32 v{WA2[nu]}, {65536 if hi else (-65536) & 0xffffffff}, v{WA2[nu]}")
        WHI[0] = hi
    for nu in range(4):
        for h in range(2):
            r.append(f"ds_read_b64_tr_b16 {vr(g2_rs(k)+4*nu+2*h,2)}, v{WA2[nu]} offset:{(i%4)*16384+h*2048}")
    return r
def rd_flag(a, val):
    a(f"v_mov_b32 v20, {val}")
    a("s_waitcnt lgkmcnt(0)")
    a("ds_write_b32 v19, v20")

def gen_g1_setup(a):
    ACC = 128
    XF = 32; WF = 64; XA = 8; WA = 12
    a("v_and_b32 v2, 15, v1")
    a("v_lshrrev_b32 v3, 4, v1")
    a("v_bfe_u32 v4, v2, 1, 3")
    a("s_lshl_b32 s28, s3, 13")
    a(f"s_add_u32 s28, s28, {SLOT}")
    a("v_lshlrev_b32 v5, 7, v2")
    a("v_add_u32 v5, s28, v5")
    for sig in range(2):
        a(f"v_add_u32 v6, {4*sig}, v3")
        a("v_xor_b32 v6, v6, v4")
        a(f"v_lshl_add_u32 v{XA+sig}, v6, 4, v5")
    a("v_bfe_u32 v2, v1, 2, 2")
    a("v_and_b32 v3, 3, v1")
    a("v_lshrrev_b32 v4, 4, v1")
    a("v_lshl_add_u32 v6, v4, 3, v2")
    a("v_lshlrev_b32 v6, 7, v6")
    a("v_lshl_add_u32 v6, v3, 3, v6")
    a(f"v_add_u32 v6, {32768+SLOT}, v6")
    a("v_lshrrev_b32 v7, 1, v2")
    a("v_and_b32 v4, 1, v4")
    a("v_lshl_or_b32 v7, v4, 1, v7")
    for nu in range(4):
        a(f"v_xor_b32 v5, {nu}, v7")
        a(f"v_lshl_add_u32 v{WA+nu}, v5, 5, v6")
    for i in range(0, 128, 2):
        a(f"v_pk_mul_f32 {vr(ACC+i,2)}, 0, 0")
    a("s_lshl_b32 s28, s3, 2")
    a(f"s_add_u32 s28, s28, {FL_FREE}")
    a("v_mov_b32 v19, s28")
    a("v_mov_b32 v20, 0")

def gen_g1(a):
    ACC = 128
    XF = 32; WF = 64; XA = 8; WA = 12
    def acc(mat, nu, m): return ACC + 4*((mat*4+nu)*4+m)
    def xf(sig, m): return XF + 16*(sig & 1) + 4*m
    def wf(sig, mat, nu): return WF + 32*(sig & 1) + 4*(mat*4+nu)
    def reads(sig):
        r = []
        for m in range(4):
            r.append(f"ds_read_b128 {vr(xf(sig,m),4)}, v{XA+sig} offset:{m*2048}")
        for mat in range(2):
            for nu in range(4):
                for h in range(2):
                    r.append(f"ds_read_b64_tr_b16 {vr(wf(sig,mat,nu)+2*h,2)}, v{WA+nu} offset:{mat*8192+sig*4096+h*512}")
        return r
    def mfmas(sig):
        r = []
        for mat in range(2):
            for nu in range(4):
                for m in range(4):
                    d = acc(mat, nu, m)
                    r.append(f"v_mfma_f32_16x16x32_bf16 {vr(d,4)}, {vr(wf(sig,mat,nu),4)}, {vr(xf(sig,m),4)}, {vr(d,4)}")
        return r
    a("s_mov_b32 s7, 1")
    a("s_mov_b32 s28, 8")
    a("s_mov_b32 s31, 0")
    a(f"s_mov_b32 s30, {SLOT}")
    a("s_barrier")
    stamp(a, 2)
    for r in reads(0): a(r)
    a.label("L_g1_loop")
    a("s_add_u32 s7, s7, 1")
    a("s_cmp_eq_u32 s7, 3")
    a(f"s_cselect_b32 s29, {(-2*SLOT) & 0xffffffff}, s30")
    a("s_cselect_b32 s7, 0, s7")
    M = mfmas(0); R = reads(1)
    issued = 0
    for i in range(32):
        if i % 4 == 0:
            need = 4 + 2*(i//4 + 1)
            n = (20 - need) + issued
            a(f"s_waitcnt lgkmcnt({min(n,15)})")
        a(M[i])
        if issued < 20 and i >= 2:
            a(R[issued]); issued += 1
        if i == 24:
            a(f"v_add_u32 v{XA}, s29, v{XA}")
            a(f"v_add_u32 v{XA+1}, s29, v{XA+1}")
        if i in (25, 26):
            a(f"v_add_u32 v{WA+2*(i-25)}, s29, v{WA+2*(i-25)}")
            a(f"v_add_u32 v{WA+2*(i-25)+1}, s29, v{WA+2*(i-25)+1}")
        if i == 27:
            a("s_sub_u32 s28, s28, 1")
            a("s_cmp_eq_u32 s28, 0")
    assert issued == 20
    M = mfmas(1); R = reads(0)
    if "itst" in OPT:
        a("s_memtime s[32:33]")
        a("s_mov_b32 m0, s31")
    a("s_waitcnt lgkmcnt(0)")
    a(M[0]); a(M[1])
    if "itst" in OPT:
        a(f"s_movreld_b32 s{ST0}, s32")
    a("s_barrier")
    if "itst" in OPT:
        a("s_memtime s[32:33]")
        a("s_waitcnt lgkmcnt(0)")
        a(f"s_movreld_b32 s{ST0+2}, s32")
        a("s_addk_i32 s31, 4")
        a("s_cmp_eq_u32 s28, 0")
    a("s_cbranch_scc1 L_g1_last")
    issued = 0
    for i in range(2, 32):
        if issued < 20:
            a(R[issued]); issued += 1
        a(M[i])
    a("s_branch L_g1_loop")
    a.label("L_g1_last")
    a.walk_begin("epi")
    for i in range(2, 32):
        a(M[i])
    stamp(a, 3)
    a(f"s_mov_b32 s6, {f2u(-LOG2E)}")
    a(f"s_mov_b32 s7, {f2u(-LOG2E)}")
    a("s_lshl_b32 s28, s4, 4")
    a("s_lshl_b32 s29, s3, 2")
    a("s_add_u32 s28, s28, s29")
    a("s_mul_i32 s28, s28, 56")
    a("s_lshl_b32 s29, s5, 1")
    a("s_add_u32 s28, s28, s29")
    a("s_lshl_b32 s28, s28, 10")
    for m in range(1, 4):
        a(f"s_add_u32 s{28+m}, s28, {m*56*1024}")
    a("v_lshlrev_b32 v2, 4, v1")
    a("s_lshl_b32 s32, s4, 2")
    a("s_add_u32 s32, s32, s3")
    a(f"s_mul_i32 s32, s32, {FSTR}")
    a("s_lshl_b32 s33, s5, 2")
    a("s_add_u32 s32, s32, s33")
    a(f"s_add_u32 s32, s32, {WS_FH}")
    a(f"s_add_u32 s33, s32, {32*FSTR}")
    pend = []
    for i in range(3):
        pend += g2_tr(a, i, WSET0[i])
    a0 = a
    class Mix:
        n = 0
        def __call__(self, x):
            a0(x)
            Mix.n += 1
            if pend and Mix.n % EMIX == 0: a0(pend.pop(0))
        def __getattr__(self, nm): return getattr(a0, nm)
    a = Mix()
    T = 32
    cnt = 0
    for np_ in range(2):
        for m in range(4):
            if cnt == ERD:
                assert not pend
                lds_wait(a0, FL_W2, 2, 1, "ew1", 3, 4, sleep=0)
                for i in range(3, 6):
                    pend += g2_tr(a, i, WSET0[i])
            E = T + 16*(cnt & 1)
            O = E + 8
            gs = [acc(0, 2*np_, m), acc(0, 2*np_, m)+2, acc(0, 2*np_+1, m), acc(0, 2*np_+1, m)+2]
            us = [acc(1, 2*np_, m), acc(1, 2*np_, m)+2, acc(1, 2*np_+1, m), acc(1, 2*np_+1, m)+2]
            for p in range(4):
                a(f"v_pk_mul_f32 {vr(E+2*p,2)}, {vr(gs[p],2)}, s[6:7]")
            for p in range(8):
                a(f"v_exp_f32 v{E+p}, v{E+p}")
            for p in range(4):
                a(f"v_pk_mul_f32 {vr(us[p],2)}, {vr(gs[p],2)}, {vr(us[p],2)}")
            for p in range(4):
                a(f"v_pk_add_f32 {vr(E+2*p,2)}, {vr(E+2*p,2)}, 1.0 op_sel_hi:[1,0]")
            for p in range(8):
                a(f"v_rcp_f32 v{E+p}, v{E+p}")
            a("s_nop 0")
            for p in range(4):
                a(f"v_pk_mul_f32 {vr(us[p],2)}, {vr(us[p],2)}, {vr(E+2*p,2)}")
            for p in range(4):
                a(f"v_cvt_pk_bf16_f32 v{O+p}, v{us[p]}, v{us[p]+1}")
            if cnt == PUBA and "oneflag" not in OPT:
                a0(f"s_waitcnt vmcnt({PUBA-4})")
                publish(a0, "s32", 3, 4)
            a(f"buffer_store_dwordx4 {vr(O,4)}, v2, {S(SRD_WS)}, s{28+m} offen offset:{np_*1024}{'' if 'plainst' in OPT else ' sc1'}")
            cnt += 1
    assert not pend
    a = a0
    a("v_mov_b32 v20, 7")
    a("ds_write_b32 v19, v20")
    stamp(a, 4)
    a("s_mov_b32 s35, s33")
    a.walk_end()

VX = 8; VW = 12
def gen_loader_setup(a):
    a("v_lshrrev_b32 v2, 3, v1")
    a("v_and_b32 v3, 7, v1")
    a("v_lshrrev_b32 v4, 4, v1")
    a("v_xor_b32 v5, v3, v4")
    a("v_xor_b32 v6, 4, v5")
    a("v_lshlrev_b32 v7, 10, v2")
    a(f"v_lshl_add_u32 v{VX}, v5, 4, v7")
    a(f"v_lshl_add_u32 v{VX+1}, v6, 4, v7")
    a(f"v_add_u32 v{VX+2}, {2*7168}, v{VX}")
    a(f"v_add_u32 v{VX+3}, {3*7168}, v{VX+1}")
    a(f"v_add_u32 v{VX+1}, {7168}, v{VX+1}")
    a("v_and_b32 v4, 1, v4")
    a("v_lshlrev_b32 v4, 1, v4")
    a("v_xor_b32 v5, v3, v4")
    a("v_mul_u32_u24 v7, 3584, v2")
    a(f"v_lshl_add_u32 v{VW}, v5, 4, v7")
    a("v_xor_b32 v5, 4, v5")
    a(f"v_lshl_add_u32 v{VW+1}, v5, 4, v7")
    a(f"v_add_u32 v{VW+2}, {2*(28672-1024)}, v{VW}")
    a(f"v_add_u32 v{VW+3}, {3*(28672-1024)}, v{VW+1}")
    a(f"v_add_u32 v{VW+1}, {(28672-1024)}, v{VW+1}")

def gen_loader(a):
    NT1 = " nt" if "nt1" in OPT else ""
    a("s_sub_u32 s6, s3, 4")
    a("s_cmp_eq_u32 s6, 1")
    a(f"s_cselect_b32 s{SRD_W1}, s{ptr(I_W3)}, s{ptr(I_W1)}")
    a(f"s_cselect_b32 s{SRD_W1+1}, s{ptr(I_W3)+1}, s{ptr(I_W1)+1}")
    a(f"s_and_b32 s{SRD_W1+1}, s{SRD_W1+1}, 0xffff")
    a("s_lshl_b32 s28, s4, 18")
    a("s_lshl_b32 s7, s6, 17")
    a("s_add_u32 s28, s28, s7")
    a("s_lshl_b32 s29, s5, 7")
    a("s_lshl_b32 s34, s6, 14")
    a(f"s_add_u32 s34, s34, {SLOT}")
    a("s_lshl_b32 s35, s6, 13")
    a(f"s_add_u32 s35, s35, {SLOT+32768}")
    CK = [48] + [min(24*(k+2), C1 + CSTEP*(k-1)) for k in range(1, 7)]
    CK[6] = 192
    cnt = [0]; nb = [0]
    if "ldpf" in OPT:
        a("v_lshrrev_b32 v16, 3, v1")
        a(f"v_mul_u32_u24 v16, {64*3584}, v16")
        a("v_and_b32 v17, 7, v1")
        a("v_lshl_add_u32 v16, v17, 7, v16")
        a("s_lshl_b32 s32, s2, 10")
        a(f"s_add_u32 s32, s32, {2*64*3584}")
    def dma(x):
        a(x); cnt[0] += 1
        extra = 0
        if "ldpf" in OPT:
            if cnt[0] == LDPF:
                a(f"buffer_load_dword v18, v16, {S(SRD_W1)}, s32 offen")
            if cnt[0] >= LDPF and LDPF >= 24*(nb[0]+1): extra = 1
        if nb[0] < 7 and cnt[0] == CK[nb[0]]:
            a(f"s_waitcnt vmcnt({cnt[0] - 24*(nb[0]+1) + extra})")
            a("s_barrier")
            nb[0] += 1
    for st in range(8):
        so = ((st+1) % 3 - 1) * SLOT
        a(f"s_add_u32 s33, s29, {4*28672}")
        for q in range(2):
            a(f"s_add_u32 m0, s35, {(q*4096 + so) & 0xffffffff}")
            a("s_nop 0")
            for k in range(4):
                dma(f"buffer_load_dwordx4 v{VW+k}, {S(SRD_W1)}, s{29 if q == 0 else 33} offen offset:{k*1024}{NT1} lds")
        a("s_mov_b32 s33, s28")
        for q in range(4):
            a(f"s_add_u32 m0, s34, {(q*4096 + so) & 0xffffffff}")
            a("s_nop 0")
            for k in range(4):
                dma(f"buffer_load_dwordx4 v{VX+k}, {S(SRD_X)}, s33 offen offset:{k*1024}{NT1} lds")
            if q < 3: a("s_add_u32 s33, s33, 32768")
        a("s_add_u32 s28, s28, 128")
        a(f"s_add_u32 s29, s29, {64*3584}")
    assert nb[0] == 7
    stamp(a, 1)

V_EO = 192
VC0, VC1, VC3 = 8, 16, 11
MU, EE, GB = 56, 57, 58
GA = 36
def gen_kfin_addr(a):
    a("v_and_b32 v6, 15, v1")
    a("v_lshrrev_b32 v7, 4, v1")
    a("v_and_b32 v2, 3, v6")
    a("v_lshrrev_b32 v3, 2, v6")
    a("v_lshl_add_u32 v6, v2, 2, v3")
    a("v_lshrrev_b32 v12, 1, v7")
    a("v_and_b32 v13, 1, v7")
    a(f"v_lshlrev_b32 v{VC0}, 8, v12")
    a(f"v_lshl_add_u32 v{VC0}, v13, 1, v{VC0}")
    a(f"v_lshl_add_u32 v{VC0}, v6, 4, v{VC0}")
    a(f"v_add_u32 v{VC0}, s30, v{VC0}")
    a("v_lshlrev_b32 v2, 7, v13")
    a("v_lshl_add_u32 v2, v6, 3, v2")
    a("v_lshlrev_b32 v3, 1, v13")
    a("v_lshl_add_u32 v3, v6, 2, v3")
    a("v_add_u32 v3, 256, v3")
    a("v_cmp_eq_u32 vcc, 0, v12")
    a("v_mul_u32_u24 v14, 62, v12")
    a("v_add_u32 v14, 2, v14")
    a(f"v_cndmask_b32 v{VC1}, v3, v2, vcc")
    a(f"v_add_u32 v{VC1}, s30, v{VC1}")
    for i in range(1, 4):
        a(f"v_add_u32 v{VC1+i}, v{VC1+i-1}, v14")
    a(f"v_lshlrev_b32 v{VC3}, 5, v7")
    a("v_mul_u32_u24 v2, 192, v12")
    a(f"v_add3_u32 v{VC3}, v{VC3}, v2, s30")
    a(f"v_lshl_add_u32 v{VC3}, v6, 1, v{VC3}")
    a(f"v_sub_u32 v{MU}, 63, v1")
    a(f"v_lshrrev_b32 v{EE}, 4, v{MU}")
    a(f"v_min_u32 v{EE}, 2, v{EE}")
    a(f"v_lshlrev_b32 v{GB}, 5, v{MU}")
    a(f"v_lshrrev_b32 v{GB}, v{EE}, v{GB}")
    a(f"v_lshl_add_u32 v{GB}, v{EE}, 8, v{GB}")
    a(f"v_add_u32 v{GB}, s30, v{GB}")
    a(f"v_lshlrev_b32 v{EE}, 3, v{EE}")
    def rne(o, e):
        if e == 0: return o
        return (o + ((1 << (e-1)) - 1) + ((o >> e) & 1)) >> e
    for o in range(17):
        tab = sum((2*rne(o, e)) << (8*e) for e in range(3))
        a(f"s_mov_b32 s35, {tab}")
        a(f"v_bfe_u32 v{GA+o}, s35, v{EE}, 8")
        a(f"v_add_u32 v{GA+o}, v{GA+o}, v{GB}")
    a(f"v_lshl_add_u32 v{MU}, v{MU}, 2, s30")

def gen_kfin(a):
    D = 96
    CP = 64
    E0, O0, E1, O1 = V_EO, V_EO+8, V_EO+16, V_EO+24
    G0 = 72
    a("v_lshl_add_u32 v5, v1, 4, s30")
    a("s_lshr_b32 s29, s7, 6")
    a("s_lshl_b32 s29, s29, 2")
    a("s_and_b32 s28, s2, 3")
    a("s_add_u32 s29, s29, s28")
    a(f"s_mul_i32 s29, s29, {FSTR}")
    a(f"s_add_u32 s35, s29, {WS_FU}")
    a("v_and_b32 v54, 31, v1")
    a("v_lshlrev_b32 v54, 2, v54")
    a("s_lshl_b32 s31, s7, 12")
    a(f"s_add_u32 s31, s31, {WS_UT}")
    a("v_lshlrev_b32 v53, 4, v1")
    a("s_lshl_b32 s28, s6, 3")
    a(f"s_add_u32 s28, s28, {FL_KG}")
    lds_wait(a, "s28", 2, 1, "kf", 2, 60, sleep=1)
    for j in range(6):
        a(f"ds_read_b128 {vr(D+4*j,4)}, v5 offset:{j*1024}")
    a("s_waitcnt lgkmcnt(0)")
    for j in range(12):
        a(f"v_add_f32 v{D+j}, v{D+j}, v{D+12+j}")
    for j in range(6):
        a(f"v_cvt_pk_bf16_f32 v{CP+j}, v{D+2*j}, v{D+2*j+1}")
    for i in range(4):
        hi = "_d16_hi" if i & 1 else ""
        a(f"ds_write_b16{hi} v{VC0}, v{CP+i//2} offset:{SIDE_C+4*i}")
        a(f"ds_write_b16{hi} v{VC1+i}, v{CP+2+i//2} offset:{SIDE_C+512}")
        a(f"ds_write_b16{hi} v{VC3}, v{CP+4+i//2} offset:{SIDE_C+1024+64*i}")
    a("v_mov_b32 v2, 0")
    a("v_mov_b32 v3, 0")
    a("v_lshl_add_u32 v4, v1, 3, s30")
    a(f"ds_write_b64 v4, v[2:3] offset:{SIDE_U}")
    a(f"ds_read_b32 v{G0}, v{MU} offset:{SIDE_C+1024}")
    a(f"ds_read_u16 v{G0+1}, v{MU} offset:{SIDE_C+1024+4}")
    for m in range(8):
        a(f"ds_read_u16 v{E1+m}, v{GA+15-2*m} offset:{SIDE_C}")
        a(f"ds_read_u16 v{O1+m}, v{GA+14-2*m} offset:{SIDE_C}")
    a(f"ds_read_u16 v{G0+2}, v{GA+16} offset:{SIDE_C}")
    stamp(a, 1)
    for i in range(UTB):
        bar(a)
        if i == 0:
            a("s_cmp_lg_u32 s6, 1")
            a("s_cbranch_scc1 L_kf_ns")
            gen_unit_store(a)
            a.label("L_kf_ns")
        if i == 1:
            a("v_mov_b32 v22, 0")
            a("s_cmp_lg_u32 s6, 0")
            a("s_cbranch_scc1 L_kf_nv0")
            a(f"global_load_dword v23, v22, {pp(I_DBG)} sc1")
            a.label("L_kf_nv0")
            a("s_mov_b32 s28, 0x01000100")
            a("s_mov_b32 s29, 0x03020302")
            a("s_mov_b32 s34, 0x01000302")
            a("s_mov_b32 s1, 0x03020504")
            a("s_waitcnt lgkmcnt(0)")
            a(f"v_perm_b32 v{E0}, v{G0+1}, v{G0+1}, s28")
            a(f"v_perm_b32 v{E0+2}, v{G0}, v{G0}, s29")
            a(f"v_perm_b32 v{E0+6}, v{G0}, v{G0}, s28")
            a(f"v_perm_b32 v{E0+5}, v{G0}, v{G0}, s34")
            a(f"v_perm_b32 v{O0+2}, v{G0+1}, v{G0}, s1")
            for d_, s_ in ((E0+1, E0), (E0+3, E0+2), (E0+4, E0+2), (E0+7, E0+6), (O0, E0), (O0+1, E0), (O0+3, E0+2), (O0+4, E0+2),
                           (O0+5, E0+2), (O0+6, E0+6), (O0+7, E0+6)):
                a(f"v_mov_b32 v{d_}, v{s_}")
            for m in range(8):
                a(f"v_lshl_or_b32 v{E1+m}, v{O1+m}, 16, v{E1+m}")
            a(f"v_lshl_or_b32 v{O1}, v{E1}, 16, v{G0+2}")
            for m in range(1, 8):
                a(f"v_alignbit_b32 v{O1+m}, v{E1+m}, v{E1+m-1}, 16")
            a(f"v_lshrrev_b32 v8, 16, v{E1+7}")
            for ii in range(9, 16):
                a(f"v_mov_b32 v{ii}, 0")
            a("s_mul_i32 s29, s6, 8320")
            a(f"s_add_u32 s29, s29, {L2_EO}")
            a("v_lshl_add_u32 v21, v1, 5, s29")
        if i == 2:
            a("s_cmp_lg_u32 s6, 0")
            a("s_cbranch_scc1 L_kf_nv")
            a("s_waitcnt vmcnt(0)")
            a("v_cmp_eq_u32 vcc, 0, v23")
            a("s_cbranch_vccz L_kf_vok")
            a.spin("L_kf_vpoll", 8)
            a(f"global_load_dword v23, v22, {pp(I_DBG)} sc1")
            a("s_waitcnt vmcnt(0)")
            a("v_cmp_eq_u32 vcc, 0, v23")
            a("s_cbranch_vccnz L_kf_vpoll")
            a.label("L_kf_vok")
            lds_set(a, FL_VALID, 1, 2, 3)
            a.label("L_kf_nv")
        if i == 3:
            a("s_cmp_lg_u32 s6, 1")
            a("s_cbranch_scc1 L_kf_np")
            gen_unit_pub(a)
            a.label("L_kf_np")
        if i >= 2: kwalk(a)
        if i == W2PFB and "now2pf" not in OPT:
            a("s_mul_i32 s28, s7, 3584")
            a("v_lshlrev_b32 v2, 7, v1")
            a("s_mov_b64 exec, 0xfffffff")
            a(f"buffer_load_dword v3, v2, {S(SRD_W2)}, s28 offen")
            a("s_mov_b64 exec, -1")
    lds_wait(a, FL_VALID, 1, 1, "kfv", 5, 60, sleep=2)
    a("s_cmp_ge_u32 s2, 224")
    a("s_cselect_b32 s28, 0x7ffffff0, s35")
    a(f"buffer_load_dword v55, v54, {S(SRD_WS)}, s28 offen sc1")
    bar(a)
    a("s_waitcnt vmcnt(0)")
    a("v_cmp_ne_u32 s[32:33], 1, v55")
    a("s_nop 2")
    a("s_cmp_lg_u64 s[32:33], 0")
    a("s_cbranch_scc1 L_kf_late")
    a(f"s_add_u32 m0, s30, {SIDE_U+512}")
    a("s_nop 0")
    for i in range(4):
        a(f"buffer_load_dwordx4 v53, {S(SRD_WS)}, s31 offen offset:{i*1024} sc1 lds")
    a.label("L_kf_late")
    kwalk(a)
    for i in range(UTB+1, 9):
        bar(a)
        if i < 8: kwalk(a)
        if i == 7 and "kl2" in OPT:
            a("s_bfe_u32 s28, s2, 0x20003")
            a(f"s_mul_i32 s28, s28, {7*65536}")
            a("s_lshr_b32 s29, s2, 5")
            a("s_lshl_b32 s29, s29, 7")
            a("s_add_u32 s28, s28, s29")
            a("s_lshl_b32 s29, s6, 18")
            a("s_add_u32 s28, s28, s29")
            a("s_add_u32 s28, s28, 32768")
            a("v_and_b32 v2, 31, v1")
            a("v_lshlrev_b32 v2, 10, v2")
            a("v_lshrrev_b32 v3, 5, v1")
            a("v_lshl_add_u32 v2, v3, 16, v2")
            for q in range(2):
                a(f"buffer_load_dword v5, v2, {S(SRD_W2)}, s28 offen")
                a("s_add_u32 s28, s28, 131072")
    stamp(a, 2)
    for rnd, (E, O) in enumerate(((E0, O0), (E1, O1))):
        for h in range(2):
            a(f"ds_write_b128 v21, {vr(E+4*h,4)} offset:{rnd*2048+16*h}")
            a(f"ds_write_b128 v21, {vr(O+4*h,4)} offset:{EO_O+rnd*2048+16*h}")
    a("s_mov_b32 s28, 0")
    a("s_mov_b32 s29, 0x80000000")
    a("s_mov_b64 exec, s[28:29]")
    a(f"ds_write_b128 v21, v[12:15] offset:{2048+32}")
    a(f"ds_write_b128 v21, v[12:15] offset:{2048+48}")
    a(f"ds_write_b128 v21, v[8:11] offset:{EO_O+2048+32}")
    a(f"ds_write_b128 v21, v[12:15] offset:{EO_O+2048+48}")
    a("s_mov_b64 exec, -1")
    a("s_cmp_eq_u64 s[32:33], 0")
    a("s_cbranch_scc1 L_kf_uok")
    a("s_cmp_lt_u32 s2, 224")
    a("s_cbranch_scc1 L_kf_up0")
    lds_wait(a, FL_FREE, 4, 7, "kfsp", 5, 60, sleep=4)
    a(f"buffer_load_dword v55, v54, {S(SRD_WS)}, s35 offen sc1")
    a("s_waitcnt vmcnt(0)")
    a("v_cmp_ne_u32 vcc, 1, v55")
    a("s_cbranch_vccz L_kf_up3")
    a.label("L_kf_up0")
    a.spin("L_kf_upoll", 8)
    a("s_cmp_lt_u32 s2, 224")
    a("s_cbranch_scc1 L_kf_up2")
    a(f"s_sleep {SPSL}")
    a.label("L_kf_up2")
    a(f"buffer_load_dword v55, v54, {S(SRD_WS)}, s35 offen sc1")
    a("s_waitcnt vmcnt(0)")
    a("v_cmp_ne_u32 vcc, 1, v55")
    a("s_cbranch_vccnz L_kf_upoll")
    a.label("L_kf_up3")
    a(f"s_add_u32 m0, s30, {SIDE_U+512}")
    a("s_nop 0")
    for i in range(4):
        a(f"buffer_load_dwordx4 v53, {S(SRD_WS)}, s31 offen offset:{i*1024} sc1 lds")
    a.label("L_kf_uok")
    a("s_lshl_b32 s28, s6, 2")
    a(f"s_add_u32 s28, s28, {FL_EO}")
    a("s_waitcnt vmcnt(0)")
    lds_set(a, "s28", 1, 16, 17)

def gen_conv(a):
    tag = "cv"
    ACC = 24; FR = 64; AB = 8; UB = 12
    def af(st, aa): return FR + 64*st + 4*aa
    def bf(st, e): return FR + 64*st + 32 + 4*e
    a("v_and_b32 v2, 15, v1")
    a("v_lshrrev_b32 v3, 4, v1")
    a("s_lshl_b32 s32, s33, 8")
    a("s_mul_i32 s29, s6, 8320")
    a(f"s_add_u32 s29, s29, {L2_EO + 4*1016 + EO_O}")
    a("s_sub_u32 s29, s29, s32")
    a("v_add_u32 v4, 1, v2")
    a("v_lshrrev_b32 v4, 1, v4")
    a("v_lshlrev_b32 v5, 2, v3")
    a("v_sub_u32 v5, v5, v4")
    a("v_lshl_add_u32 v5, v5, 2, s29")
    a("v_and_b32 v4, 1, v2")
    a(f"v_mul_u32_u24 v4, {EO_O}, v4")
    a("v_sub_u32 v5, v5, v4")
    for b in range(4):
        a(f"v_subrev_u32 v{AB+b}, {512*(2*b+1)}, v5")
    a("v_lshlrev_b32 v4, 5, v2")
    a("v_lshl_add_u32 v4, v3, 4, v4")
    a(f"s_add_u32 s28, s30, {SIDE_U + 480}")
    a("s_sub_u32 s28, s28, s32")
    a(f"v_add_u32 v{UB}, s28, v4")
    for i in range(32):
        a(f"v_mov_b32 v{ACC+i}, 0")
    def reads(st):
        r = []
        for x in range(8):
            o = 128 if x % 2 == 0 else 0
            r.append(f"ds_read2_b32 {vr(af(st,x),2)}, v{AB+x//2} offset0:{o} offset1:{o+1}")
            r.append(f"ds_read2_b32 {vr(af(st,x)+2,2)}, v{AB+x//2} offset0:{o+2} offset1:{o+3}")
            r.append(f"ds_read_b128 {vr(bf(st,x),4)}, v{UB} offset:{512*x}")
        return r
    def adv():
        r = [f"v_subrev_u32 v{AB+b}, 64, v{AB+b}" for b in range(4)]
        r.append(f"v_subrev_u32 v{UB}, 64, v{UB}")
        return r
    def mf(st):
        r = []
        for aa in range(8):
            for e in range(8 - aa):
                d = ACC + 4*(aa+e)
                r.append(f"v_mfma_f32_16x16x32_bf16 {vr(d,4)}, {vr(af(st,aa),4)}, {vr(bf(st,e),4)}, {vr(d,4)}")
        return r
    for r in reads(0): a(r)
    for r in adv(): a(r)
    if "convearly" not in OPT:
        a("s_lshl_b32 s28, s3, 2")
        a(f"s_add_u32 s28, s28, {FL_FREE - 16}")
        lds_wait(a, "s28", 1, 7, tag+"e", 16, 18, sleep=2)
    stamp(a, 4)
    a("s_mov_b32 s28, 2")
    a.label(f"L_{tag}_loop")
    for st in range(2):
        a("s_waitcnt lgkmcnt(0)")
        M = mf(st); R = reads(1-st) + adv()
        for i, m in enumerate(M):
            a(m)
            if R: a(R.pop(0))
        assert not R
    a("s_sub_u32 s28, s28, 1")
    a("s_cmp_lg_u32 s28, 0")
    a(f"s_cbranch_scc1 L_{tag}_loop")
    stamp(a, 5)
    a(f"s_add_u32 s28, s30, {SIDE_XA}")
    a("s_lshl_b32 s29, s6, 11")
    a(f"s_add_u32 s29, s29, {L2_XB}")
    a("s_cmp_eq_u32 s33, 0")
    a("s_cselect_b32 s34, s28, s29")
    a("s_cselect_b32 s35, s29, s28")
    a("v_lshl_add_u32 v13, v1, 4, s34")
    a("v_lshl_add_u32 v14, v1, 4, s35")
    a("s_lshl_b32 s28, s6, 3")
    a("s_lshl_b32 s29, s33, 2")
    a("s_add_u32 s28, s28, s29")
    a(f"s_add_u32 s28, s28, {FL_X}")
    a("s_xor_b32 s29, s28, 4")
    a("v_lshlrev_b32 v4, 5, v2")
    a("v_lshl_add_u32 v4, v3, 3, v4")
    a("s_lshl_b32 s32, s33, 11")
    a(f"s_add_u32 s34, s30, {SIDE_U + 512}")
    a("s_add_u32 s34, s34, s32")
    a("v_add_u32 v5, s34, v4")
    a("s_waitcnt lgkmcnt(0)")
    UU = 64; PKX = 72; RX = 80
    for ti in range(4):
        a(f"ds_read_b64 {vr(UU+2*ti,2)}, v5 offset:{512*ti}")
    a("s_cmp_eq_u32 s33, 0")
    a("s_cbranch_scc1 L_cv_t0")
    for i in range(8):
        a(f"v_cvt_pk_bf16_f32 v{PKX+i}, v{ACC+2*i}, v{ACC+2*i+1}")
    for i in range(16):
        a(f"v_mov_b32 v{ACC+i}, v{ACC+16+i}")
    a("s_branch L_cv_t1")
    a.label("L_cv_t0")
    for i in range(8):
        a(f"v_cvt_pk_bf16_f32 v{PKX+i}, v{ACC+16+2*i}, v{ACC+16+2*i+1}")
    a.label("L_cv_t1")
    a(f"ds_write_b128 v13, {vr(PKX,4)}")
    a(f"ds_write_b128 v13, {vr(PKX+4,4)} offset:1024")
    lds_set(a, "s28", 1, 16, 17)
    a("s_mov_b32 s31, 0xffff0000")
    a(f"v_lshlrev_b32 v{V_DSK}, 16, v{V_DSK}")
    a("v_lshlrev_b32 v6, 5, v2")
    a("v_lshrrev_b32 v7, 1, v3")
    a("v_lshl_add_u32 v6, v7, 4, v6")
    a("v_and_b32 v7, 1, v3")
    a("v_lshl_add_u32 v6, v7, 9, v6")
    a("s_waitcnt lgkmcnt(3)")
    X = 90
    for ti in range(4):
        for h in range(2):
            a(f"v_lshlrev_b32 v{X}, 16, v{UU+2*ti+h}")
            a(f"v_and_b32 v{X+1}, s31, v{UU+2*ti+h}")
            a(f"v_fmac_f32 v{ACC+4*ti+2*h}, v{X}, v{V_DSK}")
            a(f"v_fmac_f32 v{ACC+4*ti+2*h+1}, v{X+1}, v{V_DSK}")
    lds_wait(a, "s29", 1, 1, "cvx", 16, 18, sleep=0)
    a(f"ds_read_b128 {vr(RX,4)}, v14")
    a(f"ds_read_b128 {vr(RX+4,4)}, v14 offset:1024")
    a("s_lshl_b32 s28, s7, 12")
    a("s_add_u32 s28, s28, s32")
    a(f"s_add_u32 s28, s28, {WS_A}")
    a("s_waitcnt lgkmcnt(0)")
    for i in range(8):
        a(f"v_lshlrev_b32 v{X}, 16, v{RX+i}")
        a(f"v_and_b32 v{X+1}, s31, v{RX+i}")
        a(f"v_add_f32 v{ACC+2*i}, v{ACC+2*i}, v{X}")
        a(f"v_add_f32 v{ACC+2*i+1}, v{ACC+2*i+1}, v{X+1}")
    P = 96
    for pr in range(2):
        t1, t2 = 2*pr, 2*pr+1
        p = P + 4*pr
        a(f"v_cvt_pk_bf16_f32 v{p}, v{ACC+4*t1}, v{ACC+4*t1+1}")
        a(f"v_cvt_pk_bf16_f32 v{p+1}, v{ACC+4*t1+2}, v{ACC+4*t1+3}")
        a(f"v_cvt_pk_bf16_f32 v{p+2}, v{ACC+4*t2}, v{ACC+4*t2+1}")
        a(f"v_cvt_pk_bf16_f32 v{p+3}, v{ACC+4*t2+2}, v{ACC+4*t2+3}")
        a("s_nop 1")
        a(f"v_permlane16_swap_b32 v{p}, v{p+2}")
        a(f"v_permlane16_swap_b32 v{p+1}, v{p+3}")
        a(f"buffer_store_dwordx4 {vr(p,4)}, v6, {S(SRD_WS)}, s28 offen offset:{1024*pr} sc1")
    stamp(a, 6)
    a("s_lshr_b32 s28, s7, 6")
    a(f"s_mul_i32 s28, s28, {FSTR}")
    a("s_and_b32 s29, s7, 63")
    a("s_lshl_b32 s29, s29, 2")
    a("s_add_u32 s28, s28, s29")
    a("s_lshl_b32 s29, s33, 8")
    a("s_add_u32 s28, s28, s29")
    a(f"s_add_u32 s28, s28, {WS_FA}")
    a("s_waitcnt vmcnt(0)")
    publish(a, "s28", 3, 4)

def w2_voffs(a, V):
    a("v_lshrrev_b32 v2, 3, v1")
    a("v_and_b32 v3, 7, v1")
    a("v_bfe_u32 v4, v1, 4, 2")
    a("v_lshlrev_b32 v4, 1, v4")
    a("v_xor_b32 v3, v3, v4")
    a("v_lshlrev_b32 v2, 10, v2")
    a(f"v_lshl_add_u32 v{V}, v3, 4, v2")
    for k in range(1, 4):
        a(f"v_add_u32 v{V+k}, {k*7168}, v{V}")

def g2_map(a):
    a("s_bfe_u32 s4, s2, 0x20001")
    a("s_and_b32 s28, s2, 1")
    a("s_xor_b32 s28, s28, 1")
    a("s_lshl_b32 s28, s28, 2")
    a("s_add_u32 s4, s4, s28")
    if "local" in OPT: a("s_and_b32 s4, s2, 7")
    a("s_lshl_b32 s4, s4, 2")
    a("s_lshr_b32 s5, s2, 3")
    a("s_and_b32 s28, s5, 3")
    a("s_add_u32 s4, s4, s28")
    a("s_lshr_b32 s5, s5, 2")

def gen_w2pre(a):
    V = 8
    a("s_lshl_b32 s7, s2, 1")
    a("s_add_u32 s7, s7, s6")
    a("s_lshl_b32 s28, s7, 1")
    a("v_mov_b32 v3, s28")
    a(f"global_load_ushort v{V_DSK}, v3, {pp(I_DSK)}")
    w2_voffs(a, V)
    a("s_lshr_b32 s5, s2, 5")
    a(f"s_mul_i32 s24, s6, {14*32768}")
    a("s_lshl_b32 s25, s5, 7")
    a("s_add_u32 s24, s24, s25")
    a("s_lshl_b32 s26, s6, 12")
    a(f"s_add_u32 s26, s26, {L2_W2}")
    a("s_lshl_b32 s28, s6, 2")
    a(f"s_add_u32 s28, s28, {FL_W2}")
    a("v_mov_b32 v21, s28")
    def steps(i0, n, np_):
        for i in range(i0, i0+n):
            for wv in range(2):
                a(f"s_add_u32 m0, s26, {(4*i + 2*wv)*4096}")
                a(f"s_add_u32 s28, s24, {i*65536 + np_*32768 + wv*28*32768}")
                for k in range(4):
                    a(f"buffer_load_dwordx4 v{V+k}, {S(SRD_W2)}, s28 offen offset:{k*1024} lds")
    def flag(v, cnt):
        a(f"v_mov_b32 v22, {v}")
        a(f"s_waitcnt vmcnt({cnt})")
        a("ds_write_b32 v21, v22")
    steps(0, 3, 0)
    a("s_waitcnt vmcnt(24)")
    bar(a)
    steps(3, 3, 0)
    a("s_waitcnt vmcnt(24)")
    bar(a)
    steps(6, 1, 0)
    flag(1, 0)
    if "l2w2" in OPT:
        a("s_cmp_lt_u32 s2, 224")
        a("s_cbranch_scc1 L_l2w2_skip")
        a("s_sub_u32 s28, s2, 224")
        a("s_lshr_b32 s28, s28, 3")
        a("s_lshl_b32 s28, s28, 1")
        a("s_add_u32 s28, s28, s6")
        a("s_lshl_b32 s28, s28, 16")
        a("s_add_u32 s28, s28, 32768")
        a("v_lshlrev_b32 v2, 7, v1")
        for gi in range(4):
            for q in range(4):
                a(f"buffer_load_dword v3, v2, {S(SRD_W2)}, s28 offen")
                a(f"s_add_u32 s28, s28, {8192 if q < 3 else 8*65536 - 3*8192}")
        a("s_waitcnt vmcnt(0)")
        a.label("L_l2w2_skip")
    a("s_lshl_b32 s28, s6, 2")
    a(f"s_add_u32 s28, s28, {FL_EO}")
    a("s_lshl_b32 s30, s6, 13")
    a(f"s_add_u32 s30, s30, {L_SIDE}")
    lds_wait(a, "s28", 1, 1, "w2eo", 17, 24, sleep=2)
W2P1 = 5
RPRE = 4
RB4 = 3
RMID = 7
GSL = 12
PDEL = 0
PUBA = 6
SPSL = 48
ERD = 4
EMIX = 3
PBN = -1
PFDELAY = 0
W2PFB = 3
UTB = 6
LDPF = 48
HMAX = 2
PSL = 2
WPRE = 7
PAH = 3
HDEPTH = 5
BCHK = 2
C1 = 60
CSTEP = 27
SPPF0 = 8
APOLL = 11
VSLEEP = 32

def gen_g2(a):
    ACC = 192
    HSC = "" if "nosc1ld" in OPT else " sc1"
    def acc(nu, m): return ACC + 4*(nu*4+m)
    def gs(i):
        if "g2st" in OPT:
            stamp(a, i, "any")
            a(f"s_mov_b32 s{ST0+2+4*i}, s0")
    rs = g2_rs
    wset = {i: WSET0[i] for i in range(7)}; hset = {}
    free = [0, 1, 9]
    vm = VM(a)
    vm.q = ["st"]
    def pollop(reg, soff, tag):
        va = VPB if tag == "fb" else VPA
        vm.op(f"buffer_load_dword v{reg}, v{va}, {S(SRD_WS)}, {soff} offen sc1", tag)
    def pollchk(reg, soff, tag, sleep):
        va = VPB if tag == "fb" else VPA
        vm.wait(tag)
        a(f"v_cmp_ne_u32 vcc, 1, v{reg}")
        a(f"s_cbranch_vccz L_g2_{tag}_ok")
        a.spin(f"L_g2_{tag}", sleep)
        a(f"buffer_load_dword v{reg}, v{va}, {S(SRD_WS)}, {soff} offen sc1")
        a("s_waitcnt vmcnt(0)")
        a(f"v_cmp_ne_u32 vcc, 1, v{reg}")
        a(f"s_cbranch_vccnz L_g2_{tag}")
        a.label(f"L_g2_{tag}_ok")
    def hload_ops(n):
        k = free.pop(0)
        hset[n] = k
        ops = []
        for m in range(4):
            ops.append(lambda m=m: vm.op(f"buffer_load_dwordx4 {vr(rs(k)+4*m,4)}, v{VH+m}, {S(SRD_WS)}, s{S_H} offen{HSC}", f"h_{n}"))
        last = ops[3]
        if n == 6: ops[3] = lambda: (last(), a(f"s_sub_u32 s{S_H}, s{S_H}, {6*2048 - 1024}"))
        else: ops[3] = lambda: (last(), a(f"s_add_u32 s{S_H}, s{S_H}, 2048"))
        return ops
    def refill(i):
        a(f"s_add_u32 m0, s{S_RING}, {i*16384}")
        a("s_nop 0")
        for k in range(4):
            vm.op(f"buffer_load_dwordx4 v{VW2+k}, {S(SRD_W2)}, s{S_W6} offen offset:{k*1024} lds", f"w_{i+7}")
        a(f"s_add_u32 s{S_W6}, s{S_W6}, 65536")
    gs(0)
    if "pollfirst" in OPT: pollop(23, f"s{S_FA}", "fa")
    a("s_waitcnt lgkmcnt(1)")
    for x in g2_tr(a, 6, WSET0[6]): a(x)
    a("s_cmp_eq_u32 s35, 0")
    a("s_cselect_b32 s35, 0x7ffffff0, s35")
    a("v_mov_b32 v4, 1")
    a("v_mov_b32 v3, 0")
    for i in range(RB4): refill(i)
    vm.wait("st")
    a("s_mov_b64 exec, 1")
    vm.op(f"buffer_store_dword v4, v3, {S(SRD_WS)}, s35 offen sc1", "pub")
    a("s_mov_b64 exec, -1")
    stamp(a, 5)
    gs(1)
    for i in range(RB4, RPRE):
        if i == RB4 + PDEL: pollop(23, f"s{S_FA}", "fa")
        refill(i)
    nref = RPRE
    a("s_cmp_lt_u32 s2, 224")
    a("s_cbranch_scc1 L_g2_gate")
    a("s_cmp_lg_u32 s3, 0")
    a("s_cbranch_scc1 L_g2_gw")
    a("v_min_u32 v2, 27, v1")
    a("v_lshlrev_b32 v2, 2, v2")
    a.spin("L_g2_gp", GSL)
    a(f"buffer_load_dword v3, v2, {S(SRD_WS)}, s{S_FA} offen sc1")
    a("s_waitcnt vmcnt(0)")
    if "gateall" in OPT:
        a("v_cmp_ne_u32 vcc, 1, v3")
        a("s_cbranch_vccnz L_g2_gp")
    else:
        a("v_cmp_eq_u32 vcc, 1, v3")
        a("s_cbranch_vccz L_g2_gp")
    lds_set(a, FL_TR2, 1, 2, 3)
    a.label("L_g2_gw")
    lds_wait(a, FL_TR2, 1, 1, "g2g", 2, 4, sleep=2)
    if "gateall" in OPT:
        a("s_waitcnt vmcnt(0)")
        a("v_mov_b32 v23, 1")
    a.label("L_g2_gate")
    pollchk(23, f"s{S_FA}", "fa", PSL)
    stamp(a, 6)
    gs(2)
    nh = 0
    while len(free) > 0 and nh < 7:
        for op in hload_ops(nh): op()
        nh += 1
    a("s_waitcnt lgkmcnt(0)")
    while nref < RMID:
        refill(nref); nref += 1
    if PBN < 0: pollop(11, f"s{S_FB}", "fb")
    SFC, SAT, SG = 32, 34, 31
    VA0, VA1, VG = 8, 9, 12
    VPR = [0, 13, 19, 20]
    a("s_lshl_b32 s33, s3, 6")
    a(f"s_mul_i32 s{SFC}, s{S_DEL}, {FSTR}")
    a(f"s_add_u32 s{SFC}, s{SFC}, s33")
    a(f"s_lshr_b32 s33, s{S_TAU}, 4")
    a("s_lshl_b32 s33, s33, 8")
    a(f"s_add_u32 s{SFC}, s{SFC}, s33")
    a(f"s_add_u32 s{SFC}, s{SFC}, {WS_FA}")
    a("v_lshrrev_b32 v2, 3, v1")
    a("v_and_b32 v3, 7, v1")
    a("v_bfe_u32 v4, v1, 4, 2")
    a("v_lshlrev_b32 v4, 1, v4")
    a("v_xor_b32 v3, v3, v4")
    a("v_lshlrev_b32 v2, 12, v2")
    a(f"v_lshl_add_u32 v{VA0}, v3, 4, v2")
    a(f"v_add_u32 v{VA1}, {8*4096-1024}, v{VA0}")
    a(f"v_and_b32 v{VG}, 15, v1")
    a(f"v_lshlrev_b32 v{VPA}, 2, v{VG}")
    a(f"v_lshlrev_b32 v{VG}, 3, v{VG}")
    a(f"s_lshl_b32 s{SAT}, s{S_DEL}, 18")
    a("s_lshl_b32 s33, s3, 16")
    a(f"s_add_u32 s{SAT}, s{SAT}, s33")
    a(f"s_lshl_b32 s33, s{S_TAU}, 7")
    a(f"s_add_u32 s{SAT}, s{SAT}, s33")
    a(f"s_add_u32 s{SAT}, s{SAT}, {WS_A}")
    a(f"s_lshl_b32 s{SG}, s{S_TAU}, 9")
    a("s_lshl_b32 s33, s3, 7")
    a(f"s_add_u32 s{SG}, s{SG}, s33")
    a(f"s_add_u32 s{SG}, s{SG}, {WS_G}")
    a(f"v_lshl_add_u32 v5, v1, 4, s{S_RING}")
    for ww in range(1, 4):
        a(f"s_sub_u32 s33, s3, {ww}")
        a("s_and_b32 s33, s33, 3")
        a("s_lshl_b32 s33, s33, 12")
        a(f"s_add_u32 s33, s33, {L2_W2 + (ww-1)*16384}")
        a(f"v_lshl_add_u32 v{VPR[ww]}, v1, 4, s33")
    a("v_bfe_u32 v2, v1, 2, 2")
    a("v_and_b32 v3, 3, v1")
    a("v_lshrrev_b32 v4, 4, v1")
    a("v_lshl_add_u32 v6, v4, 2, v2")
    a("v_lshlrev_b32 v6, 7, v6")
    a("v_lshl_add_u32 v6, v3, 3, v6")
    a("v_lshrrev_b32 v7, 1, v2")
    a("v_and_b32 v4, 1, v4")
    a("v_lshl_or_b32 v7, v4, 1, v7")
    a("v_xor_b32 v7, s3, v7")
    a("v_lshl_add_u32 v6, v7, 5, v6")
    a(f"v_add_u32 v6, {L2_AT}, v6")
    a("v_and_b32 v2, 15, v1")
    a("v_lshlrev_b32 v2, 10, v2")
    a("v_lshrrev_b32 v3, 4, v1")
    a("v_lshl_add_u32 v7, v3, 4, v2")
    a(f"s_lshl_b32 s1, s{S_TAU}, 16")
    a("s_lshl_b32 s33, s3, 14")
    a("s_add_u32 s1, s1, s33")
    a(f"s_lshl_b32 s33, s{S_DEL}, 7")
    a("s_add_u32 s1, s1, s33")
    bok = "oneflag" in OPT
    for n in range(14):
        nxt = n + 1
        if 7 <= nxt < 14: vm.wait(f"w_{nxt}")
        vm.wait(f"h_{n}")
        if n >= 7 or n == 0:
            a("s_waitcnt lgkmcnt(0)")
        trs = []
        if 7 <= nxt < 14:
            k = free.pop(); wset[nxt] = k
            trs = g2_tr(a, nxt - 7, k)
        lds_ = []
        cnt = 0
        while nh < 14 and free and nh - n <= HDEPTH and cnt < HMAX:
            if nh >= 7 and not bok:
                if n < BCHK: break
                pollchk(11, f"s{S_FB}", "fb", max(1, PSL//2))
                vm.op(f"buffer_load_dwordx2 v[14:15], v{VG}, {S(SRD_WS)}, s{SG} offen sc1", "g") if False else None
                bok = True
            lds_ += hload_ops(nh); nh += 1; cnt += 1
        every = 16 // len(lds_) if lds_ else 99
        i = 0
        for nu in range(4):
            for m in range(4):
                d = acc(nu, m)
                c = "0" if n == 0 else vr(d, 4)
                a(f"v_mfma_f32_16x16x32_bf16 {vr(d,4)}, {vr(rs(wset[n])+4*nu,4)}, {vr(rs(hset[n])+4*m,4)}, {c}")
                if trs and i >= 1: a(trs.pop(0))
                if lds_ and i % every == 0: lds_.pop(0)()
                i += 1
        assert not trs and not lds_
        free.append(wset[n]); free.insert(0, hset[n])
        if nref < 7:
            refill(nref); nref += 1
        if n == PBN and "oneflag" not in OPT: pollop(11, f"s{S_FB}", "fb")
        if n == 0: gs(3)
        if n == 6: gs(4)
        if n == 8:
            vm.op(f"buffer_load_dwordx2 v[14:15], v{VG}, {S(SRD_WS)}, s{SG} offen sc1", "g")
        if n == APOLL:
            pollop(23, f"s{SFC}", "fc")
            gs(5)
        if n == APOLL + 2:
            vm.wait("fc")
            a("v_cmp_ne_u32 s[6:7], 1, v23")
            a("s_lshl_b32 s33, s3, 11")
            a(f"s_add_u32 m0, s33, {L2_AT}")
            a("s_nop 1")
            a("s_cmp_lg_u64 s[6:7], 0")
            a(f"s_cselect_b32 s35, 0x7ffffff0, s{SAT}")
            vm.op(f"buffer_load_dwordx4 v{VA0}, {S(SRD_WS)}, s35 offen sc1 lds", "at")
            vm.op(f"buffer_load_dwordx4 v{VA1}, {S(SRD_WS)}, s35 offen offset:1024 sc1 lds", "at")
    assert bok
    gs(6)
    stamp(a, 7)
    a("s_nop 3")
    for mp in range(1, 4):
        for nu in range(4):
            a(f"ds_write_b128 v5, {vr(acc(nu,mp),4)} offset:{(mp-1)*16384+nu*1024}")
    a("s_cmp_eq_u64 s[6:7], 0")
    a("s_cbranch_scc1 L_g2_fc_ok")
    a.spin("L_g2_fc", 0)
    a(f"buffer_load_dword v23, v{VPA}, {S(SRD_WS)}, s32 offen sc1")
    a("s_waitcnt vmcnt(0)")
    a("v_cmp_ne_u32 vcc, 1, v23")
    a("s_cbranch_vccz L_g2_fc2")
    a("s_sleep 6")
    a("s_branch L_g2_fc")
    a.label("L_g2_fc2")
    a(f"buffer_load_dwordx4 v{VA0}, {S(SRD_WS)}, s34 offen sc1 lds")
    a(f"buffer_load_dwordx4 v{VA1}, {S(SRD_WS)}, s34 offen offset:1024 sc1 lds")
    a.label("L_g2_fc_ok")
    a("s_mov_b32 s31, 0xffff0000")
    a("s_waitcnt vmcnt(0) lgkmcnt(0)")
    gs(7)
    a("s_barrier")
    R = 64
    for ww in range(1, 4):
        for nu in range(4):
            a(f"ds_read_b128 {vr(R+16*ww+4*nu,4)}, v{VPR[ww]} offset:{nu*1024}")
    AT = 32
    for nu in range(4):
        a(f"ds_read_b64_tr_b16 {vr(AT+2*nu,2)}, v6 offset:{nu*2048}")
    a("s_waitcnt lgkmcnt(12)")
    for nu in range(4):
        for i in (0, 2):
            a(f"v_pk_add_f32 {vr(R+4*nu+i,2)}, {vr(acc(nu,0)+i,2)}, {vr(R+16+4*nu+i,2)}")
    a("s_waitcnt lgkmcnt(4)")
    for i in range(0, 16, 2):
        a(f"v_pk_add_f32 {vr(R+32+i,2)}, {vr(R+32+i,2)}, {vr(R+48+i,2)}")
    for i in range(0, 16, 2):
        a(f"v_pk_add_f32 {vr(R+i,2)}, {vr(R+i,2)}, {vr(R+32+i,2)}")
    for i in range(0, 16, 2):
        a(f"v_pk_mul_f32 {vr(R+i,2)}, {vr(R+i,2)}, v[14:15] op_sel:[0,1] op_sel_hi:[1,1]")
    a("s_waitcnt lgkmcnt(0)")
    for i in range(8):
        a(f"v_lshlrev_b32 v40, 16, v{AT+i}")
        a(f"v_and_b32 v41, s31, v{AT+i}")
        a(f"v_fmac_f32 v{R+2*i}, v40, v14")
        a(f"v_fmac_f32 v{R+2*i+1}, v41, v14")
    P = 44
    for pr in range(2):
        p = P + 4*pr
        n0, n1 = 2*pr, 2*pr+1
        a(f"v_cvt_pk_bf16_f32 v{p}, v{R+4*n0}, v{R+4*n0+1}")
        a(f"v_cvt_pk_bf16_f32 v{p+1}, v{R+4*n0+2}, v{R+4*n0+3}")
        a(f"v_cvt_pk_bf16_f32 v{p+2}, v{R+4*n1}, v{R+4*n1+1}")
        a(f"v_cvt_pk_bf16_f32 v{p+3}, v{R+4*n1+2}, v{R+4*n1+3}")
        a("s_nop 1")
        a(f"v_permlane32_swap_b32 v{p}, v{p+2}")
        a(f"v_permlane32_swap_b32 v{p+1}, v{p+3}")
        a("s_nop 1")
        a(f"v_permlane16_swap_b32 v{p}, v{p+2}")
        a(f"v_permlane16_swap_b32 v{p+1}, v{p+3}")
        a(f"buffer_store_dwordx4 {vr(p,4)}, v7, {S(SRD_OUT)}, s1 offen offset:{64*pr}")

TRX = 128
GW = 192
def gen_tr_loads(a):
    a("s_sub_u32 s24, s2, 224")
    a("s_lshl_b32 s25, s24, 2")
    a("s_add_u32 s25, s25, s3")
    a("s_lshl_b32 s28, s25, 14")
    a("v_lshlrev_b32 v9, 4, v1")
    for r in range(16):
        a(f"buffer_load_dwordx4 {vr(TRX+4*r,4)}, v9, {S(SRD_X)}, s28 offen offset:{(r%4)*1024}")
        if r % 4 == 3: a("s_add_u32 s28, s28, 4096")
    a(f"global_load_dwordx4 {vr(GW,4)}, v9, {pp(I_GW)}")
    return 17

def gen_transpose(a):
    X = TRX
    a("s_mov_b32 s6, s24")
    a("s_mov_b32 s7, s25")
    srd(a, SRD_OUT, ptr(I_OUT), 2048*512*2)
    a("v_lshrrev_b32 v5, 4, v1")
    a("s_mov_b32 s31, 0xffff0000")
    a("s_waitcnt vmcnt(0)")
    for i in range(4):
        a(f"v_lshlrev_b32 v{20+2*i}, 16, v{GW+i}")
        a(f"v_and_b32 v{21+2*i}, s31, v{GW+i}")
    SS = 64
    def grow(r):
        T = 32 + 8*(r & 1)
        for i in range(4):
            a(f"v_lshlrev_b32 v{T+2*i}, 16, v{X+4*r+i}")
            a(f"v_and_b32 v{T+2*i+1}, s31, v{X+4*r+i}")
        for i in range(4):
            a(f"v_pk_mul_f32 {vr(T+2*i,2)}, {vr(T+2*i,2)}, {vr(20+2*i,2)}")
        for i in range(4):
            a(f"v_cvt_pk_bf16_f32 v{T+2*i}, v{T+2*i}, v{T+2*i+1}")
        for i in range(4):
            a(f"v_and_b32 v{T+2*i+1}, s31, v{T+2*i}")
            a(f"v_lshlrev_b32 v{T+2*i}, 16, v{T+2*i}")
        a(f"v_pk_add_f32 {vr(T,2)}, {vr(T,2)}, {vr(T+2,2)}")
        a(f"v_pk_add_f32 {vr(T+4,2)}, {vr(T+4,2)}, {vr(T+6,2)}")
        a(f"v_pk_add_f32 {vr(T,2)}, {vr(T,2)}, {vr(T+4,2)}")
        a(f"v_add_f32 v{SS+r}, v{T}, v{T+1}")
    for r in range(16): grow(r)
    a("s_nop 1")
    for i in range(8):
        a(f"v_permlane32_swap_b32 v{SS+i}, v{SS+8+i}")
    for i in range(8):
        a(f"v_add_f32 v{SS+i}, v{SS+i}, v{SS+8+i}")
    a("s_nop 1")
    for i in range(4):
        a(f"v_permlane16_swap_b32 v{SS+i}, v{SS+4+i}")
    for i in range(4):
        a(f"v_add_f32 v{SS+i}, v{SS+i}, v{SS+4+i}")
    for sh in (8, 4, 2, 1):
        a("s_nop 0")
        for i in range(4):
            a(f"v_add_f32_dpp v{SS+i}, v{SS+i}, v{SS+i} row_ror:{sh} row_mask:0xf bank_mask:0xf")
    a("v_and_b32 v7, 3, v1")
    for i in range(1, 4):
        a(f"v_cmp_eq_u32 vcc, {i}, v7")
        a("s_nop 1")
        a(f"v_cndmask_b32 v{SS}, v{SS}, v{SS+i}, vcc")
    a(f"v_cvt_pk_bf16_f32 v{SS}, v{SS}, v{SS}")
    a(f"v_and_b32 v{SS}, s31, v{SS}")
    a(f"v_mul_f32 v{SS}, {f2u(-LOG2E)}, v{SS}")
    a(f"v_exp_f32 v{SS}, v{SS}")
    a("s_nop 0")
    a(f"v_add_f32 v{SS}, 1.0, v{SS}")
    a(f"v_rcp_f32 v{SS}, v{SS}")
    a("s_nop 0")
    a(f"v_cvt_pk_bf16_f32 v{SS}, v{SS}, v{SS}")
    a(f"v_and_b32 v{SS}, s31, v{SS}")
    a(f"v_sub_f32 v{SS+1}, 1.0, v{SS}")
    a(f"v_cvt_pk_bf16_f32 v{SS+1}, v{SS+1}, v{SS+1}")
    a(f"v_and_b32 v{SS+1}, s31, v{SS+1}")
    a("v_lshl_add_u32 v7, v5, 2, v7")
    a("v_lshlrev_b32 v7, 3, v7")
    a("s_lshl_b32 s28, s7, 7")
    a(f"s_add_u32 s28, s28, {WS_G}")
    a("s_mov_b32 s34, 0x000f000f")
    a("s_mov_b32 s35, 0x000f000f")
    a("s_mov_b64 exec, s[34:35]")
    a(f"buffer_store_dwordx2 {vr(SS,2)}, v7, {S(SRD_WS)}, s28 offen sc1")
    a("s_mov_b64 exec, -1")
    a("s_waitcnt vmcnt(0)")
    stamp(a, 4)

def gen_kernel(a):
    a.raw(f".globl {KNAME}\n.p2align 8\n.type {KNAME},@function")
    a.label(KNAME)
    a(f"s_load_dwordx16 s[{P0}:{P0+15}], s[0:1], 0")
    a(f"s_load_dwordx16 s[{P0+16}:{P0+31}], s[0:1], 64")
    a(f"s_load_dwordx2 s[{P0+32}:{P0+33}], s[0:1], 128")
    a("s_cmp_ge_u32 s2, 256")
    a("s_cbranch_scc1 L_end")
    if "stamps" in OPT:
        a(f"s_memtime s[{ST0}:{ST0+1}]")
        a(f"s_memrealtime s[{ST0+2}:{ST0+3}]")
    if "nopf" not in OPT:
        if "pfspare" in OPT:
            a("s_cmp_lt_u32 s2, 224")
            a("s_cbranch_scc1 L_nocpf")
        a("s_getpc_b64 s[6:7]")
        a.label("L_pc0")
        a("v_lshlrev_b32 v1, 6, v0")
        a("v_min_u32 v1, L_codeend-L_pc0, v1")
        a("global_load_dword v31, v1, s[6:7]")
        a.label("L_nocpf")
    a("v_lshrrev_b32 v2, 6, v0")
    a("v_and_b32 v1, 63, v0")
    a("v_readfirstlane_b32 s3, v2")
    a("s_and_b32 s6, s2, 7")
    a("s_lshr_b32 s7, s2, 3")
    a("s_and_b32 s4, s6, 1")
    a("s_lshl_b32 s4, s4, 2")
    a("s_and_b32 s30, s7, 3")
    a("s_add_u32 s4, s4, s30")
    a("s_lshr_b32 s5, s6, 1")
    a("s_mul_i32 s5, s5, 7")
    a("s_lshr_b32 s30, s7, 2")
    a("s_add_u32 s5, s5, s30")
    if "local" in OPT:
        a("s_and_b32 s4, s2, 7")
        a("s_lshr_b32 s5, s2, 3")
    def common_srds():
        a("s_mov_b32 s0, 0x100000")
        srd(a, SRD_X, ptr(I_U), 2048*512*2)
        srd(a, SRD_W1, ptr(I_W1), 512*1792*2)
        srd(a, SRD_WS, ptr(I_WS), WS_SIZE)
        srd(a, SRD_W2, ptr(I_W2), 1792*512*2)
        srd(a, SRD_OUT, ptr(I_OUT), 2048*512*2)
    a("s_cmp_lt_u32 s3, 4")
    a("s_cbranch_scc1 L_w03")
    a("s_cmp_ge_u32 s3, 6")
    a("s_cbranch_scc1 L_kfin")
    a("s_cmp_lg_u32 s3, 4")
    a("s_cbranch_scc1 L_noinit")
    a("v_mov_b32 v3, 0")
    a(f"v_mov_b32 v4, {FLB}")
    a("v_lshl_add_u32 v4, v1, 2, v4")
    a("ds_write_b32 v4, v3")
    a.label("L_noinit")
    gen_loader_setup(a)
    a("s_waitcnt lgkmcnt(0)")
    common_srds()
    a("s_barrier")
    a("s_cmp_ge_u32 s2, 224")
    a("s_cbranch_scc1 L_spare45")
    gen_loader(a)
    a.label("L_ph2_loader")
    gen_w2pre(a)
    stamp(a, 2)
    stamp(a, 3)
    a("s_mov_b32 s33, 1")
    a("s_branch L_conv")
    a.label("L_w03")
    gen_ktab_addr(a)
    a("v_lshrrev_b32 v21, 3, v1")
    a(f"v_mul_u32_u24 v21, {64*3584}, v21")
    a("v_and_b32 v22, 7, v1")
    a("v_lshl_add_u32 v21, v22, 7, v21")
    a("s_lshr_b32 s32, s3, 1")
    a("s_mul_i32 s32, s32, 3")
    a("s_add_u32 s32, s32, 2")
    a(f"s_mul_i32 s32, s32, {64*3584}")
    a("s_lshl_b32 s33, s2, 10")
    a("s_add_u32 s32, s32, s33")
    a("s_waitcnt lgkmcnt(0)")
    gen_ktab_loads(a)
    a("s_barrier")
    stamp(a, 1, "kst")
    common_srds()
    a("s_cmp_ge_u32 s2, 224")
    a("s_cbranch_scc1 L_kt")
    gen_g1_setup(a)
    a("s_bitcmp1_b32 s3, 0")
    a(f"s_cselect_b32 s{SRD_W1}, s{ptr(I_W3)}, s{ptr(I_W1)}")
    a(f"s_cselect_b32 s{SRD_W1+1}, s{ptr(I_W3)+1}, s{ptr(I_W1)+1}")
    a(f"s_and_b32 s{SRD_W1+1}, s{SRD_W1+1}, 0xffff")
    if "latewpf" in OPT:
        a("v_mov_b32 v17, v21")
        a("s_mov_b32 s1, s32")
    if "nowpf" in OPT or "latewpf" in OPT: a("s_mov_b32 s32, 0x7ffffff0")
    if "halfwpf" in OPT:
        a("s_cmp_ge_u32 s3, 2")
        a("s_cselect_b32 s32, 0x7ffffff0, s32")
    a("s_mov_b64 exec, 0xffffff")
    a(f"buffer_load_dword v23, v21, {S(SRD_W1)}, s32 offen")
    a("s_mov_b64 exec, -1")
    stamp(a, 2, "kst")
    a.label("L_kt")
    gen_ktab(a, 17)
    a("s_cmp_ge_u32 s2, 224")
    a("s_cbranch_scc1 L_tr_post")
    if "latewpf" in OPT:
        a("s_mov_b64 exec, 0xffffff")
        a(f"buffer_load_dword v23, v17, {S(SRD_W1)}, s1 offen")
        a("s_mov_b64 exec, -1")
    gen_g2_pre(a)
    G1G2[0] = True
    gen_g1(a)
    a.label("L_g2")
    ampx = [o for o in OPT if o.startswith("ampx")]
    if ampx:
        wa = int(ampx[0][5:8])
        a(f"s_cmp_lg_u32 s2, {wa}")
        a("s_cbranch_scc1 L_ampx")
        a("s_cmp_lg_u32 s3, 0")
        a("s_cbranch_scc1 L_ampx")
        a("v_mov_b32 v2, 0")
        a(f"v_mov_b32 v3, s{ST0+2}")
        a(f"global_store_dword v2, v3, {pp(I_DBG)} offset:160 sc1")
        a.label("L_ampx")
    if "wg2" in OPT: a.walk_begin("g2")
    gen_g2(a)
    if "wg2" in OPT: a.walk_end()
    if "stamps" in OPT:
        a("s_waitcnt vmcnt(0)")
        stamp(a, 1)
    G1G2[0] = False
    amp = [o for o in OPT if o.startswith("amp")]
    if amp and amp[0][3] == "x":
        j = int(amp[0][4]); wa = int(amp[0][5:8]); wb = int(amp[0][8:11])
        a(f"s_cmp_lg_u32 s2, {wb}")
        a("s_cbranch_scc1 L_ampskip")
        a("s_cmp_lg_u32 s3, 0")
        a("s_cbranch_scc1 L_ampskip")
        a("v_mov_b32 v1, 0")
        a(f"global_load_dword v2, v1, {pp(I_DBG)} offset:160 sc1")
        a("s_waitcnt vmcnt(0)")
        a("v_readfirstlane_b32 s28, v2")
        a("s_nop 3")
        a(f"s_sub_u32 s28, s{ST0+2+4*j}, s28")
        a("s_add_u32 s28, s28, 200")
        a("s_lshl_b32 s28, s28, 3")
        a("s_min_u32 s28, s28, 100000")
        a.label("L_amp")
        a("s_memrealtime s[30:31]")
        a("s_waitcnt lgkmcnt(0)")
        a(f"s_sub_u32 s29, s30, s{ST0+2+4*1}")
        a("s_cmp_lt_u32 s29, s28")
        a("s_cbranch_scc1 L_amp")
        a.label("L_ampskip")
    elif amp:
        i, j = int(amp[0][3]), int(amp[0][4])
        a("s_cmp_lg_u32 s2, 100")
        a("s_cbranch_scc1 L_ampskip")
        a("s_cmp_lg_u32 s3, 0")
        a("s_cbranch_scc1 L_ampskip")
        a(f"s_sub_u32 s28, s{ST0+2+4*j}, s{ST0+2+4*i}")
        a("s_lshl_b32 s28, s28, 3")
        a("s_min_u32 s28, s28, 100000")
        a.label("L_amp")
        a("s_memrealtime s[30:31]")
        a("s_waitcnt lgkmcnt(0)")
        a(f"s_sub_u32 s29, s30, s{ST0+2+4*1}")
        a("s_cmp_lt_u32 s29, s28")
        a("s_cbranch_scc1 L_amp")
        a.label("L_ampskip")
    else:
        stamp_flush(a, 8)
    a("s_endpgm")
    a.label("L_tr_post")
    gen_tr_loads(a)
    gen_transpose(a)
    lds_wait(a, FL_VALID, 1, 1, "trv", 3, 4, sleep=4)
    a(f"s_mul_i32 s35, s6, {FSTR}")
    a("s_lshl_b32 s28, s3, 2")
    a("s_add_u32 s35, s35, s28")
    a(f"s_add_u32 s35, s35, {WS_FH + 32*FSTR + 112}")
    publish(a, "s35", 3, 4)
    a("s_mov_b32 s35, 0")
    gen_g2_pre(a)
    lds_wait(a, FL_W2, 2, 1, "sw1", 3, 4, sleep=2)
    WHI[0] = False
    for i in range(6):
        for x in g2_tr(a, i, WSET0[i]): a(x)
    rd_flag(a, 7)
    a("s_branch L_g2")
    a.label("L_spare45")
    a("s_sub_u32 s6, s3, 4")
    a("s_cmp_lg_u32 s2, 255")
    a("s_cbranch_scc1 L_sp_bar")
    a("s_cmp_lg_u32 s3, 4")
    a("s_cbranch_scc1 L_sp_bar")
    for i in range(4):
        a(f"v_mov_b32 v{4+i}, 0")
    a("v_lshrrev_b32 v2, 3, v1")
    a(f"v_mul_u32_u24 v2, {FSTR}, v2")
    a("v_and_b32 v3, 7, v1")
    a("v_lshl_add_u32 v2, v3, 4, v2")
    a(f"s_mov_b32 s28, {WS_FH}")
    for i in range(12):
        a(f"buffer_store_dwordx4 v[4:7], v2, {S(SRD_WS)}, s28 offen sc1")
        a(f"s_add_u32 s28, s28, {8*FSTR}")
    a(f"s_mov_b32 s28, {WS_FA}")
    for i in range(4):
        a(f"buffer_store_dwordx4 v[4:7], v2, {S(SRD_WS)}, s28 offen offset:{i*128} sc1")
    a("v_mov_b32 v3, 1")
    a("s_waitcnt vmcnt(0)")
    a("s_mov_b64 exec, 1")
    a(f"global_store_dword v4, v3, {pp(I_DBG)} sc1")
    a("s_mov_b64 exec, -1")
    a.label("L_sp_bar")
    a("s_cmp_eq_u32 s6, 1")
    a(f"s_cselect_b32 s{SRD_W1}, s{ptr(I_W3)}, s{ptr(I_W1)}")
    a(f"s_cselect_b32 s{SRD_W1+1}, s{ptr(I_W3)+1}, s{ptr(I_W1)+1}")
    a(f"s_and_b32 s{SRD_W1+1}, s{SRD_W1+1}, 0xffff")
    a("s_sub_u32 s29, s2, 224")
    a("s_mul_i32 s28, s29, 7168")
    a(f"s_add_u32 s28, s28, {SPPF0*64*3584}")
    a("v_lshlrev_b32 v2, 7, v1")
    a("s_mov_b32 s34, -1")
    a("s_mov_b32 s35, 0xffffff")
    if SPPF0 < 8:
        lds_wait(a, FL_TR, 1, 1, "spun1", 17, 22, sleep=4)
        a("s_mov_b64 exec, s[34:35]")
        for st in range(SPPF0, 8):
            a(f"buffer_load_dword v3, v2, {S(SRD_W1)}, s28 offen")
            a(f"s_add_u32 s28, s28, {64*3584}")
        a("s_mov_b64 exec, -1")
    if "spearly" not in OPT: lds_wait(a, FL_KG, 4, 1, "spring0", 17, 22, sleep=4)
    lds_wait(a, FL_TR, 1, 1, "spun0", 17, 22, sleep=4)
    a("s_mov_b64 exec, s[34:35]")
    a("s_lshl_b32 s29, s29, 1")
    a("s_add_u32 s29, s29, s6")
    a("s_mul_i32 s28, s29, 28672")
    for i in range(4):
        a(f"buffer_load_dword v3, v2, {S(SRD_W2)}, s28 offen")
        a("s_add_u32 s28, s28, 7168")
    a("s_mov_b64 exec, -1")
    a("s_waitcnt vmcnt(0)")
    stamp(a, 1)
    lds_wait(a, FL_KG, 4, 1, "spring", 17, 22, sleep=4)
    lds_wait(a, FL_TR, 1, 1, "spun", 17, 22, sleep=4)
    a("s_branch L_ph2_loader")
    a.label("L_kfin")
    a("s_sub_u32 s6, s3, 6")
    a("s_lshl_b32 s7, s2, 1")
    a("s_add_u32 s7, s7, s6")
    a("s_lshl_b32 s30, s6, 13")
    a(f"s_add_u32 s30, s30, {L_SIDE}")
    a("s_lshl_b32 s28, s7, 1")
    a("v_mov_b32 v16, s28")
    a("s_waitcnt lgkmcnt(0)")
    common_srds()
    a(f"global_load_ushort v{V_DSK}, v16, {pp(I_DSK)}")
    a("s_cmp_eq_u32 s6, 0")
    a("s_cbranch_scc1 L_kf_w6")
    gen_unit_load(a)
    a("s_barrier")
    gen_unit(a)
    lds_set(a, FL_TR, 1, 2, 3)
    a("s_branch L_kf_go")
    a.label("L_walk_ret")
    a(f"s_setpc_b64 s[{RET}:{RET+1}]")
    a.label("L_kf_w6")
    a("s_barrier")
    walk(a, "Lh_epi_0")
    a.label("L_kf_go")
    gen_kfin_addr(a)
    gen_kfin(a)
    stamp(a, 3)
    a("s_mov_b32 s33, 0")
    a.label("L_conv")
    gen_conv(a)
    stamp(a, 7)
    stamp_flush(a, 8)
    a.label("L_end")
    a.label("L_codeend")
    a("s_endpgm")

def kd(name, vgpr, sgpr=102):
    return f""".p2align 6
.amdhsa_kernel {name}
  .amdhsa_next_free_vgpr {vgpr}
  .amdhsa_next_free_sgpr {sgpr}
  .amdhsa_accum_offset {vgpr}
  .amdhsa_group_segment_fixed_size 0
  .amdhsa_kernarg_size 136
  .amdhsa_user_sgpr_count 2
  .amdhsa_user_sgpr_kernarg_segment_ptr 1
  .amdhsa_system_sgpr_workgroup_id_x 1
.end_amdhsa_kernel"""

def main():
    out = sys.argv[1] if len(sys.argv) > 1 else "k.s"
    if len(sys.argv) > 2:
        OPT.update(sys.argv[2].split(","))
    global PFDELAY
    for o in OPT:
        if o.startswith("pfd"): PFDELAY = int(o[3:])
        if o.startswith("sp0"): globals()["SPPF0"] = int(o[3:])
        if o.startswith("c1_"): globals()["C1"] = int(o[3:])
        if o.startswith("cs_"): globals()["CSTEP"] = int(o[3:])
        if o.startswith("wpre"): globals()["WPRE"] = int(o[4:])
        if o.startswith("pah"): globals()["PAH"] = int(o[3:])
        if o.startswith("bchk"): globals()["BCHK"] = int(o[4:])
        if o.startswith("psl"): globals()["PSL"] = int(o[3:])
        if o.startswith("ldp_"): globals()["LDPF"] = int(o[4:])
        if o.startswith("rb"): globals()["RB4"] = int(o[2:])
        if o.startswith("rmid"): globals()["RMID"] = int(o[4:])
        if o.startswith("hmax"): globals()["HMAX"] = int(o[4:])
        if o.startswith("pbn"): globals()["PBN"] = int(o[3:])
        if o.startswith("erd"): globals()["ERD"] = int(o[3:])
        if o.startswith("emix"): globals()["EMIX"] = int(o[4:])
        if o.startswith("spsl"): globals()["SPSL"] = int(o[4:])
        if o.startswith("puba"): globals()["PUBA"] = int(o[4:])
        if o.startswith("pdel"): globals()["PDEL"] = int(o[4:])
        if o.startswith("gsl"): globals()["GSL"] = int(o[3:])
        if o.startswith("apoll"): globals()["APOLL"] = int(o[5:])
        if o.startswith("rpre"): globals()["RPRE"] = int(o[4:])
        if o.startswith("hd"): globals()["HDEPTH"] = int(o[2:])
    OPT.update(["sppf", "now2pf", "splate"])
    if "walk" not in OPT: OPT.add("nowalk")
    WALKCH["g2"] = 9
    for o in OPT:
        if o.startswith("wch"): WALKCH["g2"] = int(o[3:])
        if o.startswith("hop"): globals()["HOP"] = int(o[3:])
    a = Asm()
    a.raw(f"; @launch grid=(256,1,1) block=(512,1,1) lds={LDS_SIZE}")
    a.raw('.amdgcn_target "amdgcn-amd-amdhsa--gfx950"')
    a.raw(".text")
    gen_kernel(a)
    a.raw('.section .rodata,"a"')
    a.raw(kd(KNAME, 256))
    open(out, "w").write(a.text())

if __name__ == "__main__":
    main()
```

```python
import sys, struct, math

KNAME = "gated_mix__ssm_conv_s4__glu_gated_swiglu__prompt_kernel"
OPT = set()

def f2u(x):
    return struct.unpack("<I", struct.pack("<f", x))[0]

import re
def est_size(s):
    m = s.split()[0]
    lit = 0
    for tok in re.findall(r"(?<![\w\[:])(-?(?:0x[0-9a-fA-F]+|\d+))(?![\w\]:.])", s.split(None, 1)[1] if " " in s else ""):
        v = int(tok, 0)
        if not (-16 <= v <= 64): lit = 4
    if m.startswith(("ds_", "buffer_", "global_", "v_mfma", "v_pk_", "s_load", "s_mem")): return 8
    if m.startswith("s_"):
        if m in ("s_waitcnt", "s_nop", "s_sleep", "s_branch", "s_barrier", "s_setprio", "s_endpgm") or m.startswith("s_cbranch"): return 4
        return 4 + lit
    if m in ("v_fma_f32", "v_lshl_add_u32", "v_lshl_or_b32", "v_add3_u32", "v_bfe_u32", "v_min3_u32", "v_cvt_pk_bf16_f32", "v_perm_b32",
             "v_alignbit_b32", "v_and_or_b32", "v_mul_lo_u32") or "dpp" in m or "-v" in s: return 8
    return 4 + lit

HOP = 56
WALKCH = {}
WALKN = {}
class Asm:
    def __init__(self):
        self.L = []
        self.walk = None
    def _hop(self):
        name, k, _ = self.walk
        ch = WALKCH.get(name, 0)
        self.L.append(f"Lh_{name}_{k}:")
        if ch and k % ch == ch - 1:
            self.L.append(f"    s_cbranch_execz L_walk_ret")
        else:
            self.L.append(f"    s_cbranch_execz Lh_{name}_{k+1}")
        self.walk = [name, k+1, 4]
        WALKN[name] = k + 2
    def walk_begin(self, name):
        if "nowalk" in OPT: return
        self.walk = [name, 0, 0]
        self._hop()
    def walk_end(self, to="L_walk_ret"):
        if "nowalk" in OPT: return
        name, k, _ = self.walk
        self.L.append(f"Lh_{name}_{k}:")
        self.L.append(f"    s_cbranch_execz {to}")
        self.walk = None
    def __call__(self, s):
        self.L.append("    " + s)
        if self.walk is not None:
            self.walk[2] += est_size(s)
            if self.walk[2] >= HOP:
                self._hop()
    def label(self, s):
        self.L.append(s + ":")
    def spin(self, s, sleep=0):
        self.L.append(s + ":")
        self("s_sub_u32 s0, s0, 1")
        self("s_cbranch_scc1 L_end")
        if sleep:
            self(f"s_sleep {sleep}")
    def raw(self, s):
        self.L.append(s)
    def text(self):
        return "\n".join(self.L) + "\n"

RET = 46
def walk(a, label):
    if "nowalk" in OPT: return
    a("s_mov_b64 exec, 0")
    a(f"s_call_b64 s[{RET}:{RET+1}], {label}")
    a("s_mov_b64 exec, -1")

def vr(b, n):
    return f"v[{b}:{b+n-1}]" if n > 1 else f"v{b}"

class VM:
    def __init__(self, a):
        self.a = a; self.q = []
    def op(self, s, tag):
        self.a(s); self.q.append(tag)
    def wait(self, tag):
        idx = max(i for i, t in enumerate(self.q) if t == tag) if tag in self.q else -1
        if idx < 0: return
        n = len(self.q) - 1 - idx
        assert n <= 63
        self.a(f"s_waitcnt vmcnt({n})")
        self.q = self.q[idx+1:]

WS_H    = 0x000000
WS_UT   = 0x800000
WS_G    = 0xA00000
WS_A    = 0xB00000
FSTR    = 4352
WS_FH   = 0xE00000
WS_FA   = 0xE80000
WS_FU   = WS_FH + 64*FSTR
WS_STAMP = 0x1300000
WS_SIZE = 0x1400000
LOG2E = 1.4426950408889634

SRD_X, SRD_W1, SRD_W2, SRD_WS, SRD_OUT = 8, 12, 16, 20, 24
P0 = 36
def ptr(i): return P0 + 2*i
def pp(i): return f"s[{ptr(i)}:{ptr(i)+1}]"
(I_U, I_ARE, I_AIM, I_BRE, I_BIM, I_CRE, I_CIM, I_LDT, I_DSK, I_X, I_W1, I_W3, I_W2, I_GW, I_OUT, I_DBG, I_WS) = range(17)
ST0 = 70
def S(d): return f"s[{d}:{d+3}]"

G1G2 = [False]
def stamp(a, idx, grp="main"):
    if "stamps" not in OPT: return
    if ("kst" in OPT) != (grp == "kst") and grp != "any": return
    if ("itst" in OPT or "g2st" in OPT) and G1G2[0] and grp != "any": return
    a(f"s_memtime s[{ST0+4*idx}:{ST0+1+4*idx}]")
    a(f"s_memrealtime s[{ST0+2+4*idx}:{ST0+3+4*idx}]")
    a("s_waitcnt lgkmcnt(0)")
def stamp_flush(a, n):
    if "stamps" not in OPT or any(o.startswith("amp") for o in OPT): return
    a("s_waitcnt lgkmcnt(0)")
    a("s_lshl_b32 s34, s2, 3")
    a("s_add_u32 s34, s34, s3")
    a("s_lshl_b32 s34, s34, 6")
    a(f"s_add_u32 s34, s34, {WS_STAMP}")
    a("v_mov_b32 v1, 0")
    for i in range(n):
        a(f"v_mov_b32 v2, s{ST0+4*i}")
        a(f"v_mov_b32 v3, s{ST0+2+4*i}")
        a(f"buffer_store_dwordx2 v[2:3], v1, {S(SRD_WS)}, s34 offen offset:{8*i}")
        a("s_nop 1")

SLOT = 49152
L_SIDE = 3*SLOT
SIDE_U = 0
SIDE_C = 6144
SIDE_F = 7680
LDS_SIZE = 163840
FLB = L_SIDE + SIDE_F
FL_FULL = FLB + 0
FL_ISS = FLB + 8
FL_VALID = FLB + 12
FL_FREE = FLB + 16
FL_EO = FLB + 32
FL_W2 = FLB + 40
FL_TR = FLB + 48
FL_TR2 = FLB + 64
FL_KG = FLB + 80
FL_X = FLB + 96
L2_XB = 139520
SIDE_XA = 4608
KT_BASE = 0
UN_T1 = 17408
UN_T2 = 25600
KG_RS = 272
L2_W2 = 0
L2_EO = 114688
L2_AT = 131328
EO_O = 4160

def srd(a, d, base, nbytes):
    a(f"s_mov_b32 s{d}, s{base}")
    a(f"s_and_b32 s{d+1}, s{base+1}, 0xffff")
    a(f"s_mov_b32 s{d+2}, {nbytes}")
    a(f"s_mov_b32 s{d+3}, 0x00020000")

def lds_wait(a, addr, n, val, tag, va, vt, sleep=1):
    a(f"v_mov_b32 v{va}, {addr}")
    a.spin(f"L_lw_{tag}", sleep)
    if n == 1:
        a(f"ds_read_b32 v{vt}, v{va}")
        a("s_waitcnt lgkmcnt(0)")
    elif n == 2:
        a(f"ds_read_b64 {vr(vt,2)}, v{va}")
        a("s_waitcnt lgkmcnt(0)")
        a(f"v_min_u32 v{vt}, v{vt}, v{vt+1}")
    else:
        a(f"ds_read_b128 {vr(vt,4)}, v{va}")
        a("s_waitcnt lgkmcnt(0)")
        a(f"v_min_u32 v{vt}, v{vt}, v{vt+1}")
        a(f"v_min3_u32 v{vt}, v{vt}, v{vt+2}, v{vt+3}")
    a(f"v_cmp_gt_u32 vcc, {val}, v{vt}")
    a(f"s_cbranch_vccnz L_lw_{tag}")

BARN = [0]
KW = [0]
def kwalk(a):
    if "wg2" not in OPT or "nowalk" in OPT: return
    ch = WALKCH["g2"]; n = WALKN["g2"]
    c0 = KW[0]; KW[0] += 2
    if c0*ch >= n: return
    a("s_mov_b64 exec, 0")
    a("s_cmp_eq_u32 s6, 0")
    a(f"s_cbranch_scc1 L_kw{c0}")
    if (c0+1)*ch < n:
        a(f"s_call_b64 s[{RET}:{RET+1}], Lh_g2_{(c0+1)*ch}")
    a(f"s_branch L_kw{c0}e")
    a.label(f"L_kw{c0}")
    a(f"s_call_b64 s[{RET}:{RET+1}], Lh_g2_{c0*ch}")
    a.label(f"L_kw{c0}e")
    a("s_mov_b64 exec, -1")

def bar(a):
    BARN[0] += 1
    a("s_cmp_ge_u32 s2, 224")
    a(f"s_cbranch_scc1 L_bar{BARN[0]}")
    a("s_barrier")
    a.label(f"L_bar{BARN[0]}")

def lds_set(a, addr, val, va, vv):
    a(f"v_mov_b32 v{va}, {addr}")
    a(f"v_mov_b32 v{vv}, {val}")
    a(f"ds_write_b32 v{va}, v{vv}")

def publish(a, soff, va, vv, sc=" sc1"):
    a(f"v_mov_b32 v{vv}, 1")
    a(f"v_mov_b32 v{va}, 0")
    a("s_mov_b64 exec, 1")
    a(f"buffer_store_dword v{vv}, v{va}, {S(SRD_WS)}, {soff} offen{sc}")
    a("s_mov_b64 exec, -1")

def arrive(a, tag, va, vv):
    a(f"v_mov_b32 v{va}, 0")
    a(f"v_mov_b32 v{vv}, 1")
    a("s_mov_b64 exec, 1")
    a(f"global_atomic_add v{vv+1}, v{va}, v{vv}, {pp(I_DBG)} offset:128 sc0 sc1")
    a("s_waitcnt vmcnt(0)")
    a(f"v_cmp_eq_u32 vcc, 32, v{vv+1}")
    a(f"s_cbranch_vccz L_arr_{tag}")
    a(f"global_store_dword v{va}, v{vv}, {pp(I_DBG)} sc1")
    a.label(f"L_arr_{tag}")
    a("s_mov_b64 exec, -1")

def cmul(a, d, x, y):
    a(f"v_pk_mul_f32 {vr(d,2)}, {vr(x,2)}, {vr(y,2)} op_sel:[0,0] op_sel_hi:[0,1]")
    a(f"v_pk_fma_f32 {vr(d,2)}, {vr(x,2)}, {vr(y,2)}, {vr(d,2)} op_sel:[1,1,0] op_sel_hi:[1,0,1] neg_lo:[0,1,0]")

KT_U = 64
V_DSK = 20
def gen_ktab_addr(a):
    a("s_lshr_b32 s6, s3, 1")
    a("s_lshl_b32 s7, s2, 1")
    a("s_add_u32 s7, s7, s6")
    a("s_lshl_b32 s28, s7, 8")
    a("s_and_b32 s29, s3, 1")
    a("s_lshl_b32 s29, s29, 7")
    a("s_add_u32 s28, s28, s29")
    a("v_lshl_add_u32 v2, v1, 1, s28")
    a("s_lshl_b32 s29, s7, 1")
    a("v_mov_b32 v3, s29")

def gen_ktab_loads(a):
    for i in range(6):
        a(f"global_load_short_d16_hi v{KT_U+i}, v2, {pp(I_ARE+i)}")
    a(f"global_load_short_d16_hi v{KT_U+6}, v3, {pp(I_LDT)}")

def gen_ktab(a, nyoung):
    U = KT_U
    DT = 72; AP = 74; BP = 75
    W1, W4, W512 = 76, 78, 80
    T0 = 82
    W2, W128, W256, Y32 = 56, 58, 60, 62
    Z = 24
    YF = 64; XF = 80
    VWR, VRD = 21, 22
    a(f"s_mul_i32 s30, s3, 4352")
    a(f"s_add_u32 s30, s30, {KT_BASE}")
    a(f"v_lshl_add_u32 v{VWR}, v1, 4, s30")
    a("v_bfe_u32 v6, v1, 2, 2")
    a("v_lshrrev_b32 v7, 4, v1")
    a("v_lshl_add_u32 v6, v7, 3, v6")
    a(f"v_lshl_add_u32 v{VRD}, v6, 4, s30")
    a("v_and_b32 v6, 1, v1")
    a(f"v_lshl_add_u32 v{VRD}, v6, 3, v{VRD}")
    a("v_bfe_u32 v6, v1, 1, 1")
    a("v_mul_u32_u24 v6, 1088, v6")
    a(f"v_add_u32 v{VRD}, v6, v{VRD}")
    a("s_mov_b32 s31, 0xffff0000")
    a(f"s_mov_b32 s32, {f2u(LOG2E)}")
    L2E_HI = struct.unpack("<f", struct.pack("<f", LOG2E))[0]
    a(f"s_mov_b32 s33, {f2u(LOG2E - L2E_HI)}")
    a(f"s_mov_b32 s34, {f2u(1.0/(2*math.pi))}")
    if "k6pf" in OPT:
        a("s_waitcnt vmcnt(0)")
    else:
        a("s_cmp_lt_u32 s2, 224")
        a("s_cbranch_scc1 L_kt_w1")
        a("s_waitcnt vmcnt(0)")
        a.label("L_kt_w1")
        a("s_waitcnt vmcnt(1)")
    stamp(a, 3, "kst")
    for i in range(7):
        a(f"v_and_b32 v{U+i}, s31, v{U+i}")
    L = U+6
    a(f"v_mul_f32 v{DT}, s32, v{L}")
    a(f"v_fma_f32 v{DT+1}, v{L}, s32, -v{DT}")
    a(f"v_fmac_f32 v{DT+1}, s33, v{L}")
    a(f"v_exp_f32 v{DT}, v{DT}")
    a(f"v_mul_f32 v{DT+1}, {f2u(math.log(2.0))}, v{DT+1}")
    a(f"v_fmac_f32 v{DT}, v{DT}, v{DT+1}")
    a(f"v_cvt_pk_bf16_f32 v{DT}, v{DT}, v{DT}")
    a(f"v_and_b32 v{DT}, s31, v{DT}")
    a(f"v_mul_f32 v{AP}, v{DT}, v{U}")
    a(f"v_mul_f32 v{BP}, v{DT}, v{U+1}")
    a(f"v_mul_f32 v{U+2}, v{DT}, v{U+2}")
    a(f"v_mul_f32 v{U+3}, v{DT}, v{U+3}")
    a(f"v_mul_f32 v{AP}, s32, v{AP}")
    a(f"v_mul_f32 v{BP}, s34, v{BP}")
    z = lambda c: Z + 2*c
    CB = z(4)
    def cmuls(lst):
        for d, x, y in lst:
            a(f"v_pk_mul_f32 {vr(d,2)}, {vr(x,2)}, {vr(y,2)} op_sel:[0,0] op_sel_hi:[0,1]")
        for d, x, y in lst:
            a(f"v_pk_fma_f32 {vr(d,2)}, {vr(x,2)}, {vr(y,2)}, {vr(d,2)} op_sel:[1,1,0] op_sel_hi:[1,0,1] neg_lo:[0,1,0]")
    cmuls([(CB, U+4, U+2)])
    dsts = [(z(1), 8, True), (W1, 1, False), (W128, 128, False)]
    for n, (dst, l, cj) in enumerate(dsts):
        lit = "1.0" if l == 1 else str(f2u(float(l)))
        a(f"v_mul_f32 v{T0+4*n}, {lit}, v{AP}")
        a(f"v_mul_f32 v{T0+4*n+1}, {lit}, v{BP}")
    for n in range(3):
        a(f"v_exp_f32 v{T0+4*n}, v{T0+4*n}")
        a(f"v_fract_f32 v{T0+4*n+1}, v{T0+4*n+1}")
    for n in range(3):
        a(f"v_cos_f32 v{T0+4*n+2}, v{T0+4*n+1}")
        a(f"v_sin_f32 v{T0+4*n+3}, v{T0+4*n+1}")
    a(f"v_mov_b32 v{z(0)}, 1.0")
    for n, (dst, l, cj) in enumerate(dsts):
        a(f"v_mul_f32 v{dst}, v{T0+4*n}, v{T0+4*n+2}")
        a(f"v_mul_f32 v{dst+1}, {'-' if cj else ''}v{T0+4*n}, v{T0+4*n+3}")
    a(f"v_mov_b32 v{z(0)+1}, 0")
    cmuls([(z(2), z(1), z(1)), (W2, W1, W1), (z(5), CB, W1), (z(6), CB, W128), (W256, W128, W128)])
    cmuls([(z(3), z(2), z(1)), (Y32, z(2), z(2)), (z(7), z(6), W1), (W4, W2, W2), (z(8), CB, W256), (z(9), z(6), W256), (W512, W256, W256)])
    cmuls([(z(10), z(8), W256), (T0, W512, W512)])
    cmuls([(z(11), z(10), W4), (z(13), T0, z(6)), (z(12), T0, CB)])
    mult = [Y32]*4 + [W2]*4 + [W2, W2, W128, W128] + [W256, W256]
    stamp(a, 4, "kst")
    SP = 1088
    E = 96
    PKK = 120
    pkn = [0]
    ev = lambda kk, it: E + 6*kk + 2*(it-1)
    def val(c0, kk, it):
        if c0 == 0 and kk == 0 and it == 1: return Y32
        return z(c0+kk) if it == 0 else ev(kk, it)
    def tile(c0, nch, extra=None):
        for it in range(1, 4):
            cmuls([(ev(kk, it), val(c0, kk, it-1), mult[c0+kk]) for kk in range(nch) if not (c0 == 0 and kk == 0 and it == 1)])
        if extra is not None:
            cmuls([(extra, ev(0, 3), mult[c0])])
        for pair in range(2):
            for pl in range(2):
                p = PKK + 4*(pkn[0] % 2); pkn[0] += 1
                if 2*pair >= nch:
                    a(f"v_cvt_pk_bf16_f32 v{p}, v{extra+pl}, v{extra+pl}")
                    a(f"ds_write_b32 v{VWR}, v{p} offset:{(2*pl+pair)*SP}")
                    continue
                for kk in range(2):
                    c = 2*pair + kk
                    a(f"v_cvt_pk_bf16_f32 v{p+2*kk}, v{val(c0,c,0)+pl}, v{val(c0,c,1)+pl}")
                    a(f"v_cvt_pk_bf16_f32 v{p+2*kk+1}, v{val(c0,c,2)+pl}, v{val(c0,c,3)+pl}")
                a(f"ds_write_b128 v{VWR}, {vr(p,4)} offset:{(2*pl+pair)*SP}")
    def readfr(dst):
        for pl in range(2):
            for nh in range(2):
                for h in range(2):
                    a(f"ds_read_b64_tr_b16 {vr(dst+8*pl+4*nh+2*h,2)}, v{VRD} offset:{2*pl*SP + nh*512 + h*64}")
    def mm(dd, xf):
        for kk in range(4):
            c = "0" if kk == 0 else vr(dd, 4)
            a(f"v_mfma_f32_16x16x32_bf16 {vr(dd,4)}, {vr(xf+4*kk,4)}, {vr(YF+4*kk,4)}, {c}")
    D = 24
    tile(0, 4)
    readfr(YF)
    tile(4, 4)
    readfr(XF)
    tile(8, 4)
    a("s_waitcnt lgkmcnt(4)")
    mm(D, XF)
    readfr(XF)
    tile(12, 2, extra=z(8))
    a("s_waitcnt lgkmcnt(4)")
    mm(D+4, XF)
    X2 = 96
    readfr(X2)
    stamp(a, 5, "kst")
    a("s_lshl_b32 s28, s6, 13")
    a("s_and_b32 s29, s3, 1")
    a("s_mul_i32 s29, s29, 3072")
    a("s_add_u32 s28, s28, s29")
    a(f"s_add_u32 s28, s28, {L_SIDE}")
    a("v_lshl_add_u32 v2, v1, 4, s28")
    a("s_lshl_b32 s28, s3, 2")
    a(f"s_add_u32 s28, s28, {FL_KG}")
    a("v_mov_b32 v3, s28")
    a("v_mov_b32 v4, 1")
    a(f"ds_write_b128 v2, {vr(D,4)}")
    a(f"ds_write_b128 v2, {vr(D+4,4)} offset:1024")
    a("s_waitcnt lgkmcnt(2)")
    mm(D+8, X2)
    a("s_nop 7")
    a(f"ds_write_b128 v2, {vr(D+8,4)} offset:2048")
    a("ds_write_b32 v3, v4")
    a("s_waitcnt lgkmcnt(0)")
    stamp(a, 6, "kst")

def gen_unit_load(a):
    w2_voffs(a, 8)
    a("s_lshr_b32 s28, s2, 3")
    a("s_lshl_b32 s28, s28, 16")
    a("s_and_b32 s29, s2, 7")
    a("s_lshl_b32 s29, s29, 7")
    a("s_add_u32 s28, s28, s29")
    for q in range(2):
        a(f"s_mov_b32 m0, {UN_T1 + q*4096}")
        a("s_nop 0")
        for k in range(4):
            a(f"buffer_load_dwordx4 v{8+k}, {S(SRD_X)}, s28 offen offset:{k*1024} lds")
        a("s_add_u32 s28, s28, 32768")

def gen_unit(a):
    a("v_bfe_u32 v2, v1, 2, 2")
    a("v_and_b32 v3, 3, v1")
    a("v_lshrrev_b32 v4, 4, v1")
    a("v_lshl_add_u32 v5, v4, 3, v2")
    a("v_lshlrev_b32 v5, 7, v5")
    a("v_lshl_add_u32 v5, v3, 3, v5")
    a(f"v_add_u32 v5, {UN_T1}, v5")
    a("v_lshrrev_b32 v6, 1, v2")
    TA = 64
    for x in range(4):
        a(f"v_xor_b32 v7, {x}, v6")
        a(f"v_lshl_add_u32 v{TA+x}, v7, 5, v5")
    a("v_and_b32 v6, 15, v1")
    a("v_mul_u32_u24 v6, 144, v6")
    a("v_lshl_add_u32 v6, v4, 4, v6")
    a(f"v_add_u32 v{TA+4}, {UN_T2}, v6")
    a("v_lshrrev_b32 v6, 3, v1")
    a("v_and_b32 v7, 7, v1")
    a("v_mul_u32_u24 v2, 144, v6")
    a("v_lshl_add_u32 v2, v7, 4, v2")
    a(f"v_add_u32 v{TA+5}, {UN_T2}, v2")
    a("s_waitcnt vmcnt(0)")
    O = 72
    n = 0
    for nu in range(4):
        for kh in range(2):
            for h in range(2):
                a(f"ds_read_b64_tr_b16 {vr(O+4*n+2*h,2)}, v{TA + (nu ^ (2*h))} offset:{(32*kh+4*h)*128}")
            n += 1
    n = 0
    for nu in range(4):
        for kh in range(2):
            a(f"s_waitcnt lgkmcnt({min(15, 2*(7-n) + n)})")
            a(f"ds_write_b128 v{TA+4}, {vr(O+4*n,4)} offset:{nu*16*144 + kh*64}")
            n += 1
    O2 = 224
    for n in range(8):
        a(f"ds_read_b128 {vr(O2+4*n,4)}, v{TA+5} offset:{n*8*144}")
    a("s_waitcnt lgkmcnt(0)")

def gen_unit_store(a):
    O2 = 224
    a("v_lshrrev_b32 v24, 3, v1")
    a("v_and_b32 v25, 7, v1")
    a("v_lshlrev_b32 v24, 12, v24")
    a("v_lshl_add_u32 v24, v25, 4, v24")
    a("s_and_b32 s28, s2, 7")
    a("s_lshl_b32 s28, s28, 18")
    a("s_lshr_b32 s34, s2, 3")
    a("s_lshl_b32 s34, s34, 7")
    a("s_add_u32 s28, s28, s34")
    a(f"s_add_u32 s28, s28, {WS_UT}")
    for n in range(8):
        a(f"buffer_store_dwordx4 {vr(O2+4*n,4)}, v24, {S(SRD_WS)}, s28 offen sc1")
        a(f"s_add_u32 s28, s28, {8*4096}")

def gen_unit_pub(a):
    a("s_and_b32 s28, s2, 7")
    a(f"s_mul_i32 s28, s28, {4*FSTR}")
    a("s_lshr_b32 s29, s2, 3")
    a("s_lshl_b32 s29, s29, 2")
    a("s_add_u32 s28, s28, s29")
    a(f"s_add_u32 s28, s28, {WS_FU}")
    a(f"v_mul_u32_u24 v2, {FSTR}, v1")
    a("v_mov_b32 v3, 1")
    lds_wait(a, FL_VALID, 1, 1, "unv", 4, 60, sleep=2)
    a("s_waitcnt vmcnt(0)")
    a("s_mov_b64 exec, 15")
    a(f"buffer_store_dword v3, v2, {S(SRD_WS)}, s28 offen sc1")
    a("s_mov_b64 exec, -1")

WA2 = [16, 17, 18, 10]
VH = 24; VW2 = 28; VPA = 21; VPB = 22
S_TAU, S_DEL, S_H, S_FA, S_FB, S_W6, S_RING = 36, 37, 38, 39, 40, 41, 42
def gen_g2_pre(a):
    a(f"s_bfe_u32 s{S_TAU}, s2, 0x20001")
    a("s_and_b32 s28, s2, 1")
    a("s_xor_b32 s28, s28, 1")
    a("s_lshl_b32 s28, s28, 2")
    a(f"s_add_u32 s{S_TAU}, s{S_TAU}, s28")
    a(f"s_lshl_b32 s{S_TAU}, s{S_TAU}, 2")
    a("s_bfe_u32 s28, s2, 0x20003")
    a(f"s_add_u32 s{S_TAU}, s{S_TAU}, s28")
    a(f"s_lshr_b32 s{S_DEL}, s2, 5")
    a("v_bfe_u32 v2, v1, 2, 2")
    a("v_and_b32 v3, 3, v1")
    a("v_lshrrev_b32 v4, 4, v1")
    a("v_lshl_add_u32 v6, v4, 2, v2")
    a("v_lshlrev_b32 v6, 7, v6")
    a("v_lshl_add_u32 v6, v3, 3, v6")
    a(f"s_lshl_b32 s{S_RING}, s3, 12")
    a(f"s_add_u32 s{S_RING}, s{S_RING}, {L2_W2}")
    a(f"v_add_u32 v6, s{S_RING}, v6")
    a("v_lshrrev_b32 v7, 1, v2")
    a("v_and_b32 v4, 1, v4")
    a("v_lshl_or_b32 v7, v4, 1, v7")
    for nu in range(4):
        a(f"v_xor_b32 v5, {nu}, v7")
        a(f"v_lshl_add_u32 v{WA2[nu]}, v5, 5, v6")
    w2_voffs(a, VW2)
    for mp in range(4):
        a(f"s_add_u32 s33, s3, {mp}")
        a("s_and_b32 s33, s33, 3")
        a("s_mul_i32 s33, s33, 57344")
        a(f"v_lshl_add_u32 v{VH+mp}, v1, 4, s33")
    a(f"s_mul_i32 s{S_H}, s{S_TAU}, {4*57344}")
    a(f"s_mul_i32 s31, s3, {14*1024}")
    a(f"s_add_u32 s{S_H}, s{S_H}, s31")
    a(f"s_mul_i32 s{S_W6}, s3, {14*32768}")
    a(f"s_lshl_b32 s33, s{S_DEL}, 7")
    a(f"s_add_u32 s{S_W6}, s{S_W6}, s33")
    a(f"s_add_u32 s{S_W6}, s{S_W6}, 32768")
    a(f"s_mul_i32 s{S_FA}, s{S_TAU}, {FSTR}")
    a("s_mul_i32 s33, s3, 28")
    a(f"s_add_u32 s{S_FA}, s{S_FA}, s33")
    a(f"s_add_u32 s{S_FA}, s{S_FA}, {WS_FH}")
    a(f"s_add_u32 s{S_FB}, s{S_FA}, {32*FSTR}")
    a(f"v_min_u32 v{VPA}, 6, v1")
    a(f"v_lshlrev_b32 v{VPA}, 2, v{VPA}")
    a("s_mul_i32 s33, s3, 24")
    a("s_sub_u32 s33, 112, s33")
    a(f"v_mov_b32 v{VPB}, s33")
    a("v_cmp_gt_u32 vcc, 7, v1")
    a("s_nop 1")
    a(f"v_cndmask_b32 v{VPB}, v{VPB}, v{VPA}, vcc")
    if "oneflag" in OPT:
        a(f"v_mov_b32 v{VPA}, v{VPB}")
        a(f"s_mov_b32 s{S_FA}, s{S_FB}")
    a("s_lshl_b32 s28, s3, 2")
    a(f"s_add_u32 s28, s28, {FL_FREE}")
    a("v_mov_b32 v19, s28")
    if "htouch" in OPT:
        a(f"s_mul_i32 s28, s{S_DEL}, 28")
        a("v_min_u32 v2, 27, v1")
        a("v_add_u32 v2, s28, v2")
        a("v_lshrrev_b32 v3, 5, v2")
        a("v_lshlrev_b32 v11, 11, v3")
        a("v_bfe_u32 v3, v2, 3, 2")
        a("v_mul_u32_u24 v3, 57344, v3")
        a("v_add_u32 v11, v11, v3")
        a("v_and_b32 v3, 7, v2")
        a("v_lshl_add_u32 v11, v3, 7, v11")
        a(f"s_mov_b32 s43, s{S_H}")

WSET0 = [2, 3, 4, 5, 6, 7, 8]
def g2_rs(k): return 32 + 16*k
WHI = [False]
def g2_tr(a, i, k):
    r = []
    hi = i >= 4
    if hi != WHI[0]:
        for nu in range(4):
            r.append(f"v_add_u32 v{WA2[nu]}, {65536 if hi else (-65536) & 0xffffffff}, v{WA2[nu]}")
        WHI[0] = hi
    for nu in range(4):
        for h in range(2):
            r.append(f"ds_read_b64_tr_b16 {vr(g2_rs(k)+4*nu+2*h,2)}, v{WA2[nu]} offset:{(i%4)*16384+h*2048}")
    return r
def rd_flag(a, val):
    a(f"v_mov_b32 v20, {val}")
    a("s_waitcnt lgkmcnt(0)")
    a("ds_write_b32 v19, v20")

def gen_g1_setup(a):
    ACC = 128
    XF = 32; WF = 64; XA = 8; WA = 12
    a("v_and_b32 v2, 15, v1")
    a("v_lshrrev_b32 v3, 4, v1")
    a("v_bfe_u32 v4, v2, 1, 3")
    a("s_lshl_b32 s28, s3, 13")
    a(f"s_add_u32 s28, s28, {SLOT}")
    a("v_lshlrev_b32 v5, 7, v2")
    a("v_add_u32 v5, s28, v5")
    for sig in range(2):
        a(f"v_add_u32 v6, {4*sig}, v3")
        a("v_xor_b32 v6, v6, v4")
        a(f"v_lshl_add_u32 v{XA+sig}, v6, 4, v5")
    a("v_bfe_u32 v2, v1, 2, 2")
    a("v_and_b32 v3, 3, v1")
    a("v_lshrrev_b32 v4, 4, v1")
    a("v_lshl_add_u32 v6, v4, 3, v2")
    a("v_lshlrev_b32 v6, 7, v6")
    a("v_lshl_add_u32 v6, v3, 3, v6")
    a(f"v_add_u32 v6, {32768+SLOT}, v6")
    a("v_lshrrev_b32 v7, 1, v2")
    a("v_and_b32 v4, 1, v4")
    a("v_lshl_or_b32 v7, v4, 1, v7")
    for nu in range(4):
        a(f"v_xor_b32 v5, {nu}, v7")
        a(f"v_lshl_add_u32 v{WA+nu}, v5, 5, v6")
    for i in range(0, 128, 2):
        a(f"v_pk_mul_f32 {vr(ACC+i,2)}, 0, 0")
    a("s_lshl_b32 s28, s3, 2")
    a(f"s_add_u32 s28, s28, {FL_FREE}")
    a("v_mov_b32 v19, s28")
    a("v_mov_b32 v20, 0")

def gen_g1(a):
    ACC = 128
    XF = 32; WF = 64; XA = 8; WA = 12
    def acc(mat, nu, m): return ACC + 4*((mat*4+nu)*4+m)
    def xf(sig, m): return XF + 16*(sig & 1) + 4*m
    def wf(sig, mat, nu): return WF + 32*(sig & 1) + 4*(mat*4+nu)
    def reads(sig):
        r = []
        for m in range(4):
            r.append(f"ds_read_b128 {vr(xf(sig,m),4)}, v{XA+sig} offset:{m*2048}")
        for mat in range(2):
            for nu in range(4):
                for h in range(2):
                    r.append(f"ds_read_b64_tr_b16 {vr(wf(sig,mat,nu)+2*h,2)}, v{WA+nu} offset:{mat*8192+sig*4096+h*512}")
        return r
    def mfmas(sig):
        r = []
        for mat in range(2):
            for nu in range(4):
                for m in range(4):
                    d = acc(mat, nu, m)
                    r.append(f"v_mfma_f32_16x16x32_bf16 {vr(d,4)}, {vr(wf(sig,mat,nu),4)}, {vr(xf(sig,m),4)}, {vr(d,4)}")
        return r
    a("s_mov_b32 s7, 1")
    a("s_mov_b32 s28, 8")
    a("s_mov_b32 s31, 0")
    a(f"s_mov_b32 s30, {SLOT}")
    a("s_barrier")
    stamp(a, 2)
    for r in reads(0): a(r)
    a.label("L_g1_loop")
    a("s_add_u32 s7, s7, 1")
    a("s_cmp_eq_u32 s7, 3")
    a(f"s_cselect_b32 s29, {(-2*SLOT) & 0xffffffff}, s30")
    a("s_cselect_b32 s7, 0, s7")
    M = mfmas(0); R = reads(1)
    issued = 0
    for i in range(32):
        if i % 4 == 0:
            need = 4 + 2*(i//4 + 1)
            n = (20 - need) + issued
            a(f"s_waitcnt lgkmcnt({min(n,15)})")
        a(M[i])
        if issued < 20 and i >= 2:
            a(R[issued]); issued += 1
        if i == 24:
            a(f"v_add_u32 v{XA}, s29, v{XA}")
            a(f"v_add_u32 v{XA+1}, s29, v{XA+1}")
        if i in (25, 26):
            a(f"v_add_u32 v{WA+2*(i-25)}, s29, v{WA+2*(i-25)}")
            a(f"v_add_u32 v{WA+2*(i-25)+1}, s29, v{WA+2*(i-25)+1}")
        if i == 27:
            a("s_sub_u32 s28, s28, 1")
            a("s_cmp_eq_u32 s28, 0")
    assert issued == 20
    M = mfmas(1); R = reads(0)
    if "itst" in OPT:
        a("s_memtime s[32:33]")
        a("s_mov_b32 m0, s31")
    a("s_waitcnt lgkmcnt(0)")
    a(M[0]); a(M[1])
    if "itst" in OPT:
        a(f"s_movreld_b32 s{ST0}, s32")
    a("s_barrier")
    if "itst" in OPT:
        a("s_memtime s[32:33]")
        a("s_waitcnt lgkmcnt(0)")
        a(f"s_movreld_b32 s{ST0+2}, s32")
        a("s_addk_i32 s31, 4")
        a("s_cmp_eq_u32 s28, 0")
    a("s_cbranch_scc1 L_g1_last")
    issued = 0
    for i in range(2, 32):
        if issued < 20:
            a(R[issued]); issued += 1
        a(M[i])
    a("s_branch L_g1_loop")
    a.label("L_g1_last")
    a.walk_begin("epi")
    for i in range(2, 32):
        a(M[i])
    stamp(a, 3)
    a(f"s_mov_b32 s6, {f2u(-LOG2E)}")
    a(f"s_mov_b32 s7, {f2u(-LOG2E)}")
    a("s_lshl_b32 s28, s4, 4")
    a("s_lshl_b32 s29, s3, 2")
    a("s_add_u32 s28, s28, s29")
    a("s_mul_i32 s28, s28, 56")
    a("s_lshl_b32 s29, s5, 1")
    a("s_add_u32 s28, s28, s29")
    a("s_lshl_b32 s28, s28, 10")
    for m in range(1, 4):
        a(f"s_add_u32 s{28+m}, s28, {m*56*1024}")
    a("v_lshlrev_b32 v2, 4, v1")
    a("s_lshl_b32 s32, s4, 2")
    a("s_add_u32 s32, s32, s3")
    a(f"s_mul_i32 s32, s32, {FSTR}")
    a("s_lshl_b32 s33, s5, 2")
    a("s_add_u32 s32, s32, s33")
    a(f"s_add_u32 s32, s32, {WS_FH}")
    a(f"s_add_u32 s33, s32, {32*FSTR}")
    pend = []
    for i in range(3):
        pend += g2_tr(a, i, WSET0[i])
    a0 = a
    class Mix:
        n = 0
        def __call__(self, x):
            a0(x)
            Mix.n += 1
            if pend and Mix.n % EMIX == 0: a0(pend.pop(0))
        def __getattr__(self, nm): return getattr(a0, nm)
    a = Mix()
    T = 32
    cnt = 0
    for np_ in range(2):
        for m in range(4):
            if cnt == ERD:
                assert not pend
                lds_wait(a0, FL_W2, 2, 1, "ew1", 3, 4, sleep=0)
                for i in range(3, 6):
                    pend += g2_tr(a, i, WSET0[i])
            E = T + 16*(cnt & 1)
            O = E + 8
            gs = [acc(0, 2*np_, m), acc(0, 2*np_, m)+2, acc(0, 2*np_+1, m), acc(0, 2*np_+1, m)+2]
            us = [acc(1, 2*np_, m), acc(1, 2*np_, m)+2, acc(1, 2*np_+1, m), acc(1, 2*np_+1, m)+2]
            for p in range(4):
                a(f"v_pk_mul_f32 {vr(E+2*p,2)}, {vr(gs[p],2)}, s[6:7]")
            for p in range(8):
                a(f"v_exp_f32 v{E+p}, v{E+p}")
            for p in range(4):
                a(f"v_pk_mul_f32 {vr(us[p],2)}, {vr(gs[p],2)}, {vr(us[p],2)}")
            for p in range(4):
                a(f"v_pk_add_f32 {vr(E+2*p,2)}, {vr(E+2*p,2)}, 1.0 op_sel_hi:[1,0]")
            for p in range(8):
                a(f"v_rcp_f32 v{E+p}, v{E+p}")
            a("s_nop 0")
            for p in range(4):
                a(f"v_pk_mul_f32 {vr(us[p],2)}, {vr(us[p],2)}, {vr(E+2*p,2)}")
            for p in range(4):
                a(f"v_cvt_pk_bf16_f32 v{O+p}, v{us[p]}, v{us[p]+1}")
            if cnt == PUBA and "oneflag" not in OPT:
                a0(f"s_waitcnt vmcnt({PUBA-4})")
                publish(a0, "s32", 3, 4)
            a(f"buffer_store_dwordx4 {vr(O,4)}, v2, {S(SRD_WS)}, s{28+m} offen offset:{np_*1024}{'' if 'plainst' in OPT else ' sc1'}")
            cnt += 1
    assert not pend
    a = a0
    a("v_mov_b32 v20, 7")
    a("ds_write_b32 v19, v20")
    stamp(a, 4)
    a("s_mov_b32 s35, s33")
    a.walk_end()

VX = 8; VW = 12
def gen_loader_setup(a):
    a("v_lshrrev_b32 v2, 3, v1")
    a("v_and_b32 v3, 7, v1")
    a("v_lshrrev_b32 v4, 4, v1")
    a("v_xor_b32 v5, v3, v4")
    a("v_xor_b32 v6, 4, v5")
    a("v_lshlrev_b32 v7, 10, v2")
    a(f"v_lshl_add_u32 v{VX}, v5, 4, v7")
    a(f"v_lshl_add_u32 v{VX+1}, v6, 4, v7")
    a(f"v_add_u32 v{VX+2}, {2*7168}, v{VX}")
    a(f"v_add_u32 v{VX+3}, {3*7168}, v{VX+1}")
    a(f"v_add_u32 v{VX+1}, {7168}, v{VX+1}")
    a("v_and_b32 v4, 1, v4")
    a("v_lshlrev_b32 v4, 1, v4")
    a("v_xor_b32 v5, v3, v4")
    a("v_mul_u32_u24 v7, 3584, v2")
    a(f"v_lshl_add_u32 v{VW}, v5, 4, v7")
    a("v_xor_b32 v5, 4, v5")
    a(f"v_lshl_add_u32 v{VW+1}, v5, 4, v7")
    a(f"v_add_u32 v{VW+2}, {2*(28672-1024)}, v{VW}")
    a(f"v_add_u32 v{VW+3}, {3*(28672-1024)}, v{VW+1}")
    a(f"v_add_u32 v{VW+1}, {(28672-1024)}, v{VW+1}")

def gen_loader(a):
    NT1 = " nt" if "nt1" in OPT else ""
    a("s_sub_u32 s6, s3, 4")
    a("s_cmp_eq_u32 s6, 1")
    a(f"s_cselect_b32 s{SRD_W1}, s{ptr(I_W3)}, s{ptr(I_W1)}")
    a(f"s_cselect_b32 s{SRD_W1+1}, s{ptr(I_W3)+1}, s{ptr(I_W1)+1}")
    a(f"s_and_b32 s{SRD_W1+1}, s{SRD_W1+1}, 0xffff")
    a("s_lshl_b32 s28, s4, 18")
    a("s_lshl_b32 s7, s6, 17")
    a("s_add_u32 s28, s28, s7")
    a("s_lshl_b32 s29, s5, 7")
    a("s_lshl_b32 s34, s6, 14")
    a(f"s_add_u32 s34, s34, {SLOT}")
    a("s_lshl_b32 s35, s6, 13")
    a(f"s_add_u32 s35, s35, {SLOT+32768}")
    CK = [48] + [min(24*(k+2), C1 + CSTEP*(k-1)) for k in range(1, 7)]
    CK[6] = 192
    cnt = [0]; nb = [0]
    if "ldpf" in OPT:
        a("v_lshrrev_b32 v16, 3, v1")
        a(f"v_mul_u32_u24 v16, {64*3584}, v16")
        a("v_and_b32 v17, 7, v1")
        a("v_lshl_add_u32 v16, v17, 7, v16")
        a("s_lshl_b32 s32, s2, 10")
        a(f"s_add_u32 s32, s32, {2*64*3584}")
    def dma(x):
        a(x); cnt[0] += 1
        extra = 0
        if "ldpf" in OPT:
            if cnt[0] == LDPF:
                a(f"buffer_load_dword v18, v16, {S(SRD_W1)}, s32 offen")
            if cnt[0] >= LDPF and LDPF >= 24*(nb[0]+1): extra = 1
        if nb[0] < 7 and cnt[0] == CK[nb[0]]:
            a(f"s_waitcnt vmcnt({cnt[0] - 24*(nb[0]+1) + extra})")
            a("s_barrier")
            nb[0] += 1
    for st in range(8):
        so = ((st+1) % 3 - 1) * SLOT
        a(f"s_add_u32 s33, s29, {4*28672}")
        for q in range(2):
            a(f"s_add_u32 m0, s35, {(q*4096 + so) & 0xffffffff}")
            a("s_nop 0")
            for k in range(4):
                dma(f"buffer_load_dwordx4 v{VW+k}, {S(SRD_W1)}, s{29 if q == 0 else 33} offen offset:{k*1024}{' nt' if 'ntw' in OPT else ''} lds")
        a("s_mov_b32 s33, s28")
        for q in range(4):
            a(f"s_add_u32 m0, s34, {(q*4096 + so) & 0xffffffff}")
            a("s_nop 0")
            for k in range(4):
                dma(f"buffer_load_dwordx4 v{VX+k}, {S(SRD_X)}, s33 offen offset:{k*1024}{NT1} lds")
            if q < 3: a("s_add_u32 s33, s33, 32768")
        a("s_add_u32 s28, s28, 128")
        a(f"s_add_u32 s29, s29, {64*3584}")
    assert nb[0] == 7
    stamp(a, 1)

V_EO = 192
VC0, VC1, VC3 = 8, 16, 11
MU, EE, GB = 56, 57, 58
GA = 36
def gen_kfin_addr(a):
    a("v_and_b32 v6, 15, v1")
    a("v_lshrrev_b32 v7, 4, v1")
    a("v_and_b32 v2, 3, v6")
    a("v_lshrrev_b32 v3, 2, v6")
    a("v_lshl_add_u32 v6, v2, 2, v3")
    a("v_lshrrev_b32 v12, 1, v7")
    a("v_and_b32 v13, 1, v7")
    a(f"v_lshlrev_b32 v{VC0}, 8, v12")
    a(f"v_lshl_add_u32 v{VC0}, v13, 1, v{VC0}")
    a(f"v_lshl_add_u32 v{VC0}, v6, 4, v{VC0}")
    a(f"v_add_u32 v{VC0}, s30, v{VC0}")
    a("v_lshlrev_b32 v2, 7, v13")
    a("v_lshl_add_u32 v2, v6, 3, v2")
    a("v_lshlrev_b32 v3, 1, v13")
    a("v_lshl_add_u32 v3, v6, 2, v3")
    a("v_add_u32 v3, 256, v3")
    a("v_cmp_eq_u32 vcc, 0, v12")
    a("v_mul_u32_u24 v14, 62, v12")
    a("v_add_u32 v14, 2, v14")
    a(f"v_cndmask_b32 v{VC1}, v3, v2, vcc")
    a(f"v_add_u32 v{VC1}, s30, v{VC1}")
    for i in range(1, 4):
        a(f"v_add_u32 v{VC1+i}, v{VC1+i-1}, v14")
    a(f"v_lshlrev_b32 v{VC3}, 5, v7")
    a("v_mul_u32_u24 v2, 192, v12")
    a(f"v_add3_u32 v{VC3}, v{VC3}, v2, s30")
    a(f"v_lshl_add_u32 v{VC3}, v6, 1, v{VC3}")
    a(f"v_sub_u32 v{MU}, 63, v1")
    a(f"v_lshrrev_b32 v{EE}, 4, v{MU}")
    a(f"v_min_u32 v{EE}, 2, v{EE}")
    a(f"v_lshlrev_b32 v{GB}, 5, v{MU}")
    a(f"v_lshrrev_b32 v{GB}, v{EE}, v{GB}")
    a(f"v_lshl_add_u32 v{GB}, v{EE}, 8, v{GB}")
    a(f"v_add_u32 v{GB}, s30, v{GB}")
    a(f"v_lshlrev_b32 v{EE}, 3, v{EE}")
    def rne(o, e):
        if e == 0: return o
        return (o + ((1 << (e-1)) - 1) + ((o >> e) & 1)) >> e
    for o in range(17):
        tab = sum((2*rne(o, e)) << (8*e) for e in range(3))
        a(f"s_mov_b32 s35, {tab}")
        a(f"v_bfe_u32 v{GA+o}, s35, v{EE}, 8")
        a(f"v_add_u32 v{GA+o}, v{GA+o}, v{GB}")
    a(f"v_lshl_add_u32 v{MU}, v{MU}, 2, s30")

def gen_kfin(a):
    D = 96
    CP = 64
    E0, O0, E1, O1 = V_EO, V_EO+8, V_EO+16, V_EO+24
    G0 = 72
    a("v_lshl_add_u32 v5, v1, 4, s30")
    a("s_lshr_b32 s29, s7, 6")
    a("s_lshl_b32 s29, s29, 2")
    a("s_and_b32 s28, s2, 3")
    a("s_add_u32 s29, s29, s28")
    a(f"s_mul_i32 s29, s29, {FSTR}")
    a(f"s_add_u32 s35, s29, {WS_FU}")
    a("v_and_b32 v54, 31, v1")
    a("v_lshlrev_b32 v54, 2, v54")
    a("s_lshl_b32 s31, s7, 12")
    a(f"s_add_u32 s31, s31, {WS_UT}")
    a("v_lshlrev_b32 v53, 4, v1")
    a("s_lshl_b32 s28, s6, 3")
    a(f"s_add_u32 s28, s28, {FL_KG}")
    lds_wait(a, "s28", 2, 1, "kf", 2, 60, sleep=1)
    for j in range(6):
        a(f"ds_read_b128 {vr(D+4*j,4)}, v5 offset:{j*1024}")
    a("s_waitcnt lgkmcnt(0)")
    for j in range(12):
        a(f"v_add_f32 v{D+j}, v{D+j}, v{D+12+j}")
    for j in range(6):
        a(f"v_cvt_pk_bf16_f32 v{CP+j}, v{D+2*j}, v{D+2*j+1}")
    for i in range(4):
        hi = "_d16_hi" if i & 1 else ""
        a(f"ds_write_b16{hi} v{VC0}, v{CP+i//2} offset:{SIDE_C+4*i}")
        a(f"ds_write_b16{hi} v{VC1+i}, v{CP+2+i//2} offset:{SIDE_C+512}")
        a(f"ds_write_b16{hi} v{VC3}, v{CP+4+i//2} offset:{SIDE_C+1024+64*i}")
    a("v_mov_b32 v2, 0")
    a("v_mov_b32 v3, 0")
    a("v_lshl_add_u32 v4, v1, 3, s30")
    a(f"ds_write_b64 v4, v[2:3] offset:{SIDE_U}")
    a(f"ds_read_b32 v{G0}, v{MU} offset:{SIDE_C+1024}")
    a(f"ds_read_u16 v{G0+1}, v{MU} offset:{SIDE_C+1024+4}")
    for m in range(8):
        a(f"ds_read_u16 v{E1+m}, v{GA+15-2*m} offset:{SIDE_C}")
        a(f"ds_read_u16 v{O1+m}, v{GA+14-2*m} offset:{SIDE_C}")
    a(f"ds_read_u16 v{G0+2}, v{GA+16} offset:{SIDE_C}")
    stamp(a, 1)
    for i in range(UTB):
        bar(a)
        if i == 0:
            a("s_cmp_lg_u32 s6, 1")
            a("s_cbranch_scc1 L_kf_ns")
            gen_unit_store(a)
            a.label("L_kf_ns")
        if i == 1:
            a("v_mov_b32 v22, 0")
            a("s_cmp_lg_u32 s6, 0")
            a("s_cbranch_scc1 L_kf_nv0")
            a(f"global_load_dword v23, v22, {pp(I_DBG)} sc1")
            a.label("L_kf_nv0")
            a("s_mov_b32 s28, 0x01000100")
            a("s_mov_b32 s29, 0x03020302")
            a("s_mov_b32 s34, 0x01000302")
            a("s_mov_b32 s1, 0x03020504")
            a("s_waitcnt lgkmcnt(0)")
            a(f"v_perm_b32 v{E0}, v{G0+1}, v{G0+1}, s28")
            a(f"v_perm_b32 v{E0+2}, v{G0}, v{G0}, s29")
            a(f"v_perm_b32 v{E0+6}, v{G0}, v{G0}, s28")
            a(f"v_perm_b32 v{E0+5}, v{G0}, v{G0}, s34")
            a(f"v_perm_b32 v{O0+2}, v{G0+1}, v{G0}, s1")
            for d_, s_ in ((E0+1, E0), (E0+3, E0+2), (E0+4, E0+2), (E0+7, E0+6), (O0, E0), (O0+1, E0), (O0+3, E0+2), (O0+4, E0+2),
                           (O0+5, E0+2), (O0+6, E0+6), (O0+7, E0+6)):
                a(f"v_mov_b32 v{d_}, v{s_}")
            for m in range(8):
                a(f"v_lshl_or_b32 v{E1+m}, v{O1+m}, 16, v{E1+m}")
            a(f"v_lshl_or_b32 v{O1}, v{E1}, 16, v{G0+2}")
            for m in range(1, 8):
                a(f"v_alignbit_b32 v{O1+m}, v{E1+m}, v{E1+m-1}, 16")
            a(f"v_lshrrev_b32 v8, 16, v{E1+7}")
            for ii in range(9, 16):
                a(f"v_mov_b32 v{ii}, 0")
            a("s_mul_i32 s29, s6, 8320")
            a(f"s_add_u32 s29, s29, {L2_EO}")
            a("v_lshl_add_u32 v21, v1, 5, s29")
        if i == 2:
            a("s_cmp_lg_u32 s6, 0")
            a("s_cbranch_scc1 L_kf_nv")
            a("s_waitcnt vmcnt(0)")
            a("v_cmp_eq_u32 vcc, 0, v23")
            a("s_cbranch_vccz L_kf_vok")
            a.spin("L_kf_vpoll", 8)
            a(f"global_load_dword v23, v22, {pp(I_DBG)} sc1")
            a("s_waitcnt vmcnt(0)")
            a("v_cmp_eq_u32 vcc, 0, v23")
            a("s_cbranch_vccnz L_kf_vpoll")
            a.label("L_kf_vok")
            lds_set(a, FL_VALID, 1, 2, 3)
            a.label("L_kf_nv")
        if i == 3:
            a("s_cmp_lg_u32 s6, 1")
            a("s_cbranch_scc1 L_kf_np")
            gen_unit_pub(a)
            a.label("L_kf_np")
        if i >= 2: kwalk(a)
        if i == W2PFB and "now2pf" not in OPT:
            a("s_mul_i32 s28, s7, 3584")
            a("v_lshlrev_b32 v2, 7, v1")
            a("s_mov_b64 exec, 0xfffffff")
            a(f"buffer_load_dword v3, v2, {S(SRD_W2)}, s28 offen")
            a("s_mov_b64 exec, -1")
    lds_wait(a, FL_VALID, 1, 1, "kfv", 5, 60, sleep=2)
    a("s_cmp_ge_u32 s2, 224")
    a("s_cselect_b32 s28, 0x7ffffff0, s35")
    a(f"buffer_load_dword v55, v54, {S(SRD_WS)}, s28 offen sc1")
    bar(a)
    a("s_waitcnt vmcnt(0)")
    a("v_cmp_ne_u32 s[32:33], 1, v55")
    a("s_nop 2")
    a("s_cmp_lg_u64 s[32:33], 0")
    a("s_cbranch_scc1 L_kf_late")
    a(f"s_add_u32 m0, s30, {SIDE_U+512}")
    a("s_nop 0")
    for i in range(4):
        a(f"buffer_load_dwordx4 v53, {S(SRD_WS)}, s31 offen offset:{i*1024} sc1 lds")
    a.label("L_kf_late")
    kwalk(a)
    for i in range(UTB+1, 9):
        bar(a)
        if i < 8: kwalk(a)
        if i == 7 and "kl2" in OPT:
            a("s_bfe_u32 s28, s2, 0x20003")
            a(f"s_mul_i32 s28, s28, {7*65536}")
            a("s_lshr_b32 s29, s2, 5")
            a("s_lshl_b32 s29, s29, 7")
            a("s_add_u32 s28, s28, s29")
            a("s_lshl_b32 s29, s6, 18")
            a("s_add_u32 s28, s28, s29")
            a("s_add_u32 s28, s28, 32768")
            a("v_and_b32 v2, 31, v1")
            a("v_lshlrev_b32 v2, 10, v2")
            a("v_lshrrev_b32 v3, 5, v1")
            a("v_lshl_add_u32 v2, v3, 16, v2")
            for q in range(2):
                a(f"buffer_load_dword v5, v2, {S(SRD_W2)}, s28 offen")
                a("s_add_u32 s28, s28, 131072")
    stamp(a, 2)
    for rnd, (E, O) in enumerate(((E0, O0), (E1, O1))):
        for h in range(2):
            a(f"ds_write_b128 v21, {vr(E+4*h,4)} offset:{rnd*2048+16*h}")
            a(f"ds_write_b128 v21, {vr(O+4*h,4)} offset:{EO_O+rnd*2048+16*h}")
    a("s_mov_b32 s28, 0")
    a("s_mov_b32 s29, 0x80000000")
    a("s_mov_b64 exec, s[28:29]")
    a(f"ds_write_b128 v21, v[12:15] offset:{2048+32}")
    a(f"ds_write_b128 v21, v[12:15] offset:{2048+48}")
    a(f"ds_write_b128 v21, v[8:11] offset:{EO_O+2048+32}")
    a(f"ds_write_b128 v21, v[12:15] offset:{EO_O+2048+48}")
    a("s_mov_b64 exec, -1")
    a("s_cmp_eq_u64 s[32:33], 0")
    a("s_cbranch_scc1 L_kf_uok")
    a("s_cmp_lt_u32 s2, 224")
    a("s_cbranch_scc1 L_kf_up0")
    lds_wait(a, FL_FREE, 4, 7, "kfsp", 5, 60, sleep=4)
    a(f"buffer_load_dword v55, v54, {S(SRD_WS)}, s35 offen sc1")
    a("s_waitcnt vmcnt(0)")
    a("v_cmp_ne_u32 vcc, 1, v55")
    a("s_cbranch_vccz L_kf_up3")
    a.label("L_kf_up0")
    a.spin("L_kf_upoll", 8)
    a("s_cmp_lt_u32 s2, 224")
    a("s_cbranch_scc1 L_kf_up2")
    a(f"s_sleep {SPSL}")
    a.label("L_kf_up2")
    a(f"buffer_load_dword v55, v54, {S(SRD_WS)}, s35 offen sc1")
    a("s_waitcnt vmcnt(0)")
    a("v_cmp_ne_u32 vcc, 1, v55")
    a("s_cbranch_vccnz L_kf_upoll")
    a.label("L_kf_up3")
    a(f"s_add_u32 m0, s30, {SIDE_U+512}")
    a("s_nop 0")
    for i in range(4):
        a(f"buffer_load_dwordx4 v53, {S(SRD_WS)}, s31 offen offset:{i*1024} sc1 lds")
    a.label("L_kf_uok")
    a("s_lshl_b32 s28, s6, 2")
    a(f"s_add_u32 s28, s28, {FL_EO}")
    a("s_waitcnt vmcnt(0)")
    lds_set(a, "s28", 1, 16, 17)

def gen_conv(a):
    tag = "cv"
    ACC = 24; FR = 64; AB = 8; UB = 12
    def af(st, aa): return FR + 64*st + 4*aa
    def bf(st, e): return FR + 64*st + 32 + 4*e
    a("v_and_b32 v2, 15, v1")
    a("v_lshrrev_b32 v3, 4, v1")
    a("s_lshl_b32 s32, s33, 8")
    a("s_mul_i32 s29, s6, 8320")
    a(f"s_add_u32 s29, s29, {L2_EO + 4*1016 + EO_O}")
    a("s_sub_u32 s29, s29, s32")
    a("v_add_u32 v4, 1, v2")
    a("v_lshrrev_b32 v4, 1, v4")
    a("v_lshlrev_b32 v5, 2, v3")
    a("v_sub_u32 v5, v5, v4")
    a("v_lshl_add_u32 v5, v5, 2, s29")
    a("v_and_b32 v4, 1, v2")
    a(f"v_mul_u32_u24 v4, {EO_O}, v4")
    a("v_sub_u32 v5, v5, v4")
    for b in range(4):
        a(f"v_subrev_u32 v{AB+b}, {512*(2*b+1)}, v5")
    a("v_lshlrev_b32 v4, 5, v2")
    a("v_lshl_add_u32 v4, v3, 4, v4")
    a(f"s_add_u32 s28, s30, {SIDE_U + 480}")
    a("s_sub_u32 s28, s28, s32")
    a(f"v_add_u32 v{UB}, s28, v4")
    for i in range(32):
        a(f"v_mov_b32 v{ACC+i}, 0")
    def reads(st):
        r = []
        for x in range(8):
            o = 128 if x % 2 == 0 else 0
            r.append(f"ds_read2_b32 {vr(af(st,x),2)}, v{AB+x//2} offset0:{o} offset1:{o+1}")
            r.append(f"ds_read2_b32 {vr(af(st,x)+2,2)}, v{AB+x//2} offset0:{o+2} offset1:{o+3}")
            r.append(f"ds_read_b128 {vr(bf(st,x),4)}, v{UB} offset:{512*x}")
        return r
    def adv():
        r = [f"v_subrev_u32 v{AB+b}, 64, v{AB+b}" for b in range(4)]
        r.append(f"v_subrev_u32 v{UB}, 64, v{UB}")
        return r
    def mf(st):
        r = []
        for aa in range(8):
            for e in range(8 - aa):
                d = ACC + 4*(aa+e)
                r.append(f"v_mfma_f32_16x16x32_bf16 {vr(d,4)}, {vr(af(st,aa),4)}, {vr(bf(st,e),4)}, {vr(d,4)}")
        return r
    for r in reads(0): a(r)
    for r in adv(): a(r)
    if "convearly" not in OPT:
        a("s_lshl_b32 s28, s3, 2")
        a(f"s_add_u32 s28, s28, {FL_FREE - 16}")
        lds_wait(a, "s28", 1, 7, tag+"e", 16, 18, sleep=2)
    stamp(a, 4)
    a("s_mov_b32 s28, 2")
    a.label(f"L_{tag}_loop")
    for st in range(2):
        a("s_waitcnt lgkmcnt(0)")
        M = mf(st); R = reads(1-st) + adv()
        for i, m in enumerate(M):
            a(m)
            if R: a(R.pop(0))
        assert not R
    a("s_sub_u32 s28, s28, 1")
    a("s_cmp_lg_u32 s28, 0")
    a(f"s_cbranch_scc1 L_{tag}_loop")
    stamp(a, 5)
    a(f"s_add_u32 s28, s30, {SIDE_XA}")
    a("s_lshl_b32 s29, s6, 11")
    a(f"s_add_u32 s29, s29, {L2_XB}")
    a("s_cmp_eq_u32 s33, 0")
    a("s_cselect_b32 s34, s28, s29")
    a("s_cselect_b32 s35, s29, s28")
    a("v_lshl_add_u32 v13, v1, 4, s34")
    a("v_lshl_add_u32 v14, v1, 4, s35")
    a("s_lshl_b32 s28, s6, 3")
    a("s_lshl_b32 s29, s33, 2")
    a("s_add_u32 s28, s28, s29")
    a(f"s_add_u32 s28, s28, {FL_X}")
    a("s_xor_b32 s29, s28, 4")
    a("v_lshlrev_b32 v4, 5, v2")
    a("v_lshl_add_u32 v4, v3, 3, v4")
    a("s_lshl_b32 s32, s33, 11")
    a(f"s_add_u32 s34, s30, {SIDE_U + 512}")
    a("s_add_u32 s34, s34, s32")
    a("v_add_u32 v5, s34, v4")
    a("s_waitcnt lgkmcnt(0)")
    UU = 64; PKX = 72; RX = 80
    for ti in range(4):
        a(f"ds_read_b64 {vr(UU+2*ti,2)}, v5 offset:{512*ti}")
    a("s_cmp_eq_u32 s33, 0")
    a("s_cbranch_scc1 L_cv_t0")
    for i in range(8):
        a(f"v_cvt_pk_bf16_f32 v{PKX+i}, v{ACC+2*i}, v{ACC+2*i+1}")
    for i in range(16):
        a(f"v_mov_b32 v{ACC+i}, v{ACC+16+i}")
    a("s_branch L_cv_t1")
    a.label("L_cv_t0")
    for i in range(8):
        a(f"v_cvt_pk_bf16_f32 v{PKX+i}, v{ACC+16+2*i}, v{ACC+16+2*i+1}")
    a.label("L_cv_t1")
    a(f"ds_write_b128 v13, {vr(PKX,4)}")
    a(f"ds_write_b128 v13, {vr(PKX+4,4)} offset:1024")
    lds_set(a, "s28", 1, 16, 17)
    a("s_mov_b32 s31, 0xffff0000")
    a(f"v_lshlrev_b32 v{V_DSK}, 16, v{V_DSK}")
    a("v_lshlrev_b32 v6, 5, v2")
    a("v_lshrrev_b32 v7, 1, v3")
    a("v_lshl_add_u32 v6, v7, 4, v6")
    a("v_and_b32 v7, 1, v3")
    a("v_lshl_add_u32 v6, v7, 9, v6")
    a("s_waitcnt lgkmcnt(3)")
    X = 90
    for ti in range(4):
        for h in range(2):
            a(f"v_lshlrev_b32 v{X}, 16, v{UU+2*ti+h}")
            a(f"v_and_b32 v{X+1}, s31, v{UU+2*ti+h}")
            a(f"v_fmac_f32 v{ACC+4*ti+2*h}, v{X}, v{V_DSK}")
            a(f"v_fmac_f32 v{ACC+4*ti+2*h+1}, v{X+1}, v{V_DSK}")
    lds_wait(a, "s29", 1, 1, "cvx", 16, 18, sleep=0)
    a(f"ds_read_b128 {vr(RX,4)}, v14")
    a(f"ds_read_b128 {vr(RX+4,4)}, v14 offset:1024")
    a("s_lshl_b32 s28, s7, 12")
    a("s_add_u32 s28, s28, s32")
    a(f"s_add_u32 s28, s28, {WS_A}")
    a("s_waitcnt lgkmcnt(0)")
    for i in range(8):
        a(f"v_lshlrev_b32 v{X}, 16, v{RX+i}")
        a(f"v_and_b32 v{X+1}, s31, v{RX+i}")
        a(f"v_add_f32 v{ACC+2*i}, v{ACC+2*i}, v{X}")
        a(f"v_add_f32 v{ACC+2*i+1}, v{ACC+2*i+1}, v{X+1}")
    P = 96
    for pr in range(2):
        t1, t2 = 2*pr, 2*pr+1
        p = P + 4*pr
        a(f"v_cvt_pk_bf16_f32 v{p}, v{ACC+4*t1}, v{ACC+4*t1+1}")
        a(f"v_cvt_pk_bf16_f32 v{p+1}, v{ACC+4*t1+2}, v{ACC+4*t1+3}")
        a(f"v_cvt_pk_bf16_f32 v{p+2}, v{ACC+4*t2}, v{ACC+4*t2+1}")
        a(f"v_cvt_pk_bf16_f32 v{p+3}, v{ACC+4*t2+2}, v{ACC+4*t2+3}")
        a("s_nop 1")
        a(f"v_permlane16_swap_b32 v{p}, v{p+2}")
        a(f"v_permlane16_swap_b32 v{p+1}, v{p+3}")
        a(f"buffer_store_dwordx4 {vr(p,4)}, v6, {S(SRD_WS)}, s28 offen offset:{1024*pr} sc1")
    stamp(a, 6)
    a("s_lshr_b32 s28, s7, 6")
    a(f"s_mul_i32 s28, s28, {FSTR}")
    a("s_and_b32 s29, s7, 63")
    a("s_lshl_b32 s29, s29, 2")
    a("s_add_u32 s28, s28, s29")
    a("s_lshl_b32 s29, s33, 8")
    a("s_add_u32 s28, s28, s29")
    a(f"s_add_u32 s28, s28, {WS_FA}")
    a("s_waitcnt vmcnt(0)")
    publish(a, "s28", 3, 4)

def w2_voffs(a, V):
    a("v_lshrrev_b32 v2, 3, v1")
    a("v_and_b32 v3, 7, v1")
    a("v_bfe_u32 v4, v1, 4, 2")
    a("v_lshlrev_b32 v4, 1, v4")
    a("v_xor_b32 v3, v3, v4")
    a("v_lshlrev_b32 v2, 10, v2")
    a(f"v_lshl_add_u32 v{V}, v3, 4, v2")
    for k in range(1, 4):
        a(f"v_add_u32 v{V+k}, {k*7168}, v{V}")

def g2_map(a):
    a("s_bfe_u32 s4, s2, 0x20001")
    a("s_and_b32 s28, s2, 1")
    a("s_xor_b32 s28, s28, 1")
    a("s_lshl_b32 s28, s28, 2")
    a("s_add_u32 s4, s4, s28")
    if "local" in OPT: a("s_and_b32 s4, s2, 7")
    a("s_lshl_b32 s4, s4, 2")
    a("s_lshr_b32 s5, s2, 3")
    a("s_and_b32 s28, s5, 3")
    a("s_add_u32 s4, s4, s28")
    a("s_lshr_b32 s5, s5, 2")

def gen_w2pre(a):
    V = 8
    a("s_lshl_b32 s7, s2, 1")
    a("s_add_u32 s7, s7, s6")
    a("s_lshl_b32 s28, s7, 1")
    a("v_mov_b32 v3, s28")
    a(f"global_load_ushort v{V_DSK}, v3, {pp(I_DSK)}")
    w2_voffs(a, V)
    a("s_lshr_b32 s5, s2, 5")
    a(f"s_mul_i32 s24, s6, {14*32768}")
    a("s_lshl_b32 s25, s5, 7")
    a("s_add_u32 s24, s24, s25")
    a("s_lshl_b32 s26, s6, 12")
    a(f"s_add_u32 s26, s26, {L2_W2}")
    a("s_lshl_b32 s28, s6, 2")
    a(f"s_add_u32 s28, s28, {FL_W2}")
    a("v_mov_b32 v21, s28")
    def steps(i0, n, np_):
        for i in range(i0, i0+n):
            for wv in range(2):
                a(f"s_add_u32 m0, s26, {(4*i + 2*wv)*4096}")
                a(f"s_add_u32 s28, s24, {i*65536 + np_*32768 + wv*28*32768}")
                for k in range(4):
                    a(f"buffer_load_dwordx4 v{V+k}, {S(SRD_W2)}, s28 offen offset:{k*1024} lds")
    def flag(v, cnt):
        a(f"v_mov_b32 v22, {v}")
        a(f"s_waitcnt vmcnt({cnt})")
        a("ds_write_b32 v21, v22")
    steps(0, 3, 0)
    a("s_waitcnt vmcnt(24)")
    bar(a)
    steps(3, 3, 0)
    a("s_waitcnt vmcnt(24)")
    bar(a)
    steps(6, 1, 0)
    flag(1, 0)
    if "l2w2" in OPT:
        a("s_cmp_lt_u32 s2, 224")
        a("s_cbranch_scc1 L_l2w2_skip")
        a("s_sub_u32 s28, s2, 224")
        a("s_lshr_b32 s28, s28, 3")
        a("s_lshl_b32 s28, s28, 1")
        a("s_add_u32 s28, s28, s6")
        a("s_lshl_b32 s28, s28, 16")
        a("s_add_u32 s28, s28, 32768")
        a("v_lshlrev_b32 v2, 7, v1")
        for gi in range(4):
            for q in range(4):
                a(f"buffer_load_dword v3, v2, {S(SRD_W2)}, s28 offen")
                a(f"s_add_u32 s28, s28, {8192 if q < 3 else 8*65536 - 3*8192}")
        a("s_waitcnt vmcnt(0)")
        a.label("L_l2w2_skip")
    a("s_lshl_b32 s28, s6, 2")
    a(f"s_add_u32 s28, s28, {FL_EO}")
    a("s_lshl_b32 s30, s6, 13")
    a(f"s_add_u32 s30, s30, {L_SIDE}")
    lds_wait(a, "s28", 1, 1, "w2eo", 17, 24, sleep=2)
W2P1 = 5
RPRE = 4
RB4 = 3
RMID = 7
K6D = 0
PEARLY = -1
GSL = 12
PDEL = 0
PUBA = 6
SPSL = 48
ERD = 4
EMIX = 3
PBN = -1
PFDELAY = 0
W2PFB = 3
UTB = 6
LDPF = 48
HMAX = 2
PSL = 2
WPRE = 7
PAH = 3
HDEPTH = 5
BCHK = 2
C1 = 60
CSTEP = 27
SPPF0 = 8
APOLL = 11
VSLEEP = 32

def gen_g2(a):
    ACC = 192
    HSC = "" if "nosc1ld" in OPT else " sc1"
    def acc(nu, m): return ACC + 4*(nu*4+m)
    def gs(i):
        if "g2st" in OPT:
            stamp(a, i, "any")
            a(f"s_mov_b32 s{ST0+2+4*i}, s0")
    rs = g2_rs
    wset = {i: WSET0[i] for i in range(7)}; hset = {}
    free = [0, 1, 9]
    vm = VM(a)
    vm.q = ["st"]
    def pollop(reg, soff, tag):
        va = VPB if tag == "fb" else VPA
        vm.op(f"buffer_load_dword v{reg}, v{va}, {S(SRD_WS)}, {soff} offen sc1", tag)
    def pollchk(reg, soff, tag, sleep):
        va = VPB if tag == "fb" else VPA
        vm.wait(tag)
        a(f"v_cmp_ne_u32 vcc, 1, v{reg}")
        a(f"s_cbranch_vccz L_g2_{tag}_ok")
        a.spin(f"L_g2_{tag}", sleep)
        a(f"buffer_load_dword v{reg}, v{va}, {S(SRD_WS)}, {soff} offen sc1")
        a("s_waitcnt vmcnt(0)")
        a(f"v_cmp_ne_u32 vcc, 1, v{reg}")
        a(f"s_cbranch_vccnz L_g2_{tag}")
        a.label(f"L_g2_{tag}_ok")
    def hload_ops(n):
        k = free.pop(0)
        hset[n] = k
        ops = []
        for m in range(4):
            ops.append(lambda m=m: vm.op(f"buffer_load_dwordx4 {vr(rs(k)+4*m,4)}, v{VH+m}, {S(SRD_WS)}, s{S_H} offen{HSC}", f"h_{n}"))
        last = ops[3]
        if n == 6: ops[3] = lambda: (last(), a(f"s_sub_u32 s{S_H}, s{S_H}, {6*2048 - 1024}"))
        else: ops[3] = lambda: (last(), a(f"s_add_u32 s{S_H}, s{S_H}, 2048"))
        return ops
    def refill(i):
        a(f"s_add_u32 m0, s{S_RING}, {i*16384}")
        a("s_nop 0")
        for k in range(4):
            vm.op(f"buffer_load_dwordx4 v{VW2+k}, {S(SRD_W2)}, s{S_W6} offen offset:{k*1024} lds", f"w_{i+7}")
        a(f"s_add_u32 s{S_W6}, s{S_W6}, 65536")
    gs(0)
    if "pollfirst" in OPT: pollop(23, f"s{S_FA}", "fa")
    a("s_waitcnt lgkmcnt(1)")
    for x in g2_tr(a, 6, WSET0[6]): a(x)
    a("s_cmp_eq_u32 s35, 0")
    a("s_cselect_b32 s35, 0x7ffffff0, s35")
    a("v_mov_b32 v4, 1")
    a("v_mov_b32 v3, 0")
    for i in range(RB4):
        if i == PEARLY: pollop(23, f"s{S_FA}", "fa")
        refill(i)
    if PEARLY == RB4: pollop(23, f"s{S_FA}", "fa")
    vm.wait("st")
    a("s_mov_b64 exec, 1")
    vm.op(f"buffer_store_dword v4, v3, {S(SRD_WS)}, s35 offen sc1", "pub")
    a("s_mov_b64 exec, -1")
    stamp(a, 5)
    gs(1)
    for i in range(RB4, RPRE):
        if i == RB4 + PDEL and PEARLY < 0: pollop(23, f"s{S_FA}", "fa")
        refill(i)
    nref = RPRE
    a("s_cmp_lt_u32 s2, 224")
    a("s_cbranch_scc1 L_g2_gate")
    a("s_cmp_lg_u32 s3, 0")
    a("s_cbranch_scc1 L_g2_gw")
    a("v_min_u32 v2, 27, v1")
    a("v_lshlrev_b32 v2, 2, v2")
    a.spin("L_g2_gp", GSL)
    a(f"buffer_load_dword v3, v2, {S(SRD_WS)}, s{S_FA} offen sc1")
    a("s_waitcnt vmcnt(0)")
    if "gateall" in OPT:
        a("v_cmp_ne_u32 vcc, 1, v3")
        a("s_cbranch_vccnz L_g2_gp")
    else:
        a("v_cmp_eq_u32 vcc, 1, v3")
        a("s_cbranch_vccz L_g2_gp")
    lds_set(a, FL_TR2, 1, 2, 3)
    a.label("L_g2_gw")
    lds_wait(a, FL_TR2, 1, 1, "g2g", 2, 4, sleep=2)
    if "gateall" in OPT:
        a("s_waitcnt vmcnt(0)")
        a("v_mov_b32 v23, 1")
    a.label("L_g2_gate")
    pollchk(23, f"s{S_FA}", "fa", PSL)
    stamp(a, 6)
    gs(2)
    nh = 0
    if "htouch" in OPT:
        a("s_mov_b64 exec, 0xfffffff")
        vm.op(f"buffer_load_dword v14, v11, {S(SRD_WS)}, s43 offen sc1", "t0")
        a("s_mov_b64 exec, -1")
    while len(free) > 0 and nh < 7:
        for op in hload_ops(nh): op()
        nh += 1
    a("s_waitcnt lgkmcnt(0)")
    while nref < RMID:
        refill(nref); nref += 1
    if PBN < 0: pollop(15, f"s{S_FB}", "fb")
    SFC, SAT, SG = 32, 34, 31
    VA0, VA1, VG = 8, 9, 12
    VPR = [0, 13, 19, 20]
    a("s_lshl_b32 s33, s3, 6")
    a(f"s_mul_i32 s{SFC}, s{S_DEL}, {FSTR}")
    a(f"s_add_u32 s{SFC}, s{SFC}, s33")
    a(f"s_lshr_b32 s33, s{S_TAU}, 4")
    a("s_lshl_b32 s33, s33, 8")
    a(f"s_add_u32 s{SFC}, s{SFC}, s33")
    a(f"s_add_u32 s{SFC}, s{SFC}, {WS_FA}")
    a("v_lshrrev_b32 v2, 3, v1")
    a("v_and_b32 v3, 7, v1")
    a("v_bfe_u32 v4, v1, 4, 2")
    a("v_lshlrev_b32 v4, 1, v4")
    a("v_xor_b32 v3, v3, v4")
    a("v_lshlrev_b32 v2, 12, v2")
    a(f"v_lshl_add_u32 v{VA0}, v3, 4, v2")
    a(f"v_add_u32 v{VA1}, {8*4096-1024}, v{VA0}")
    a(f"v_and_b32 v{VG}, 15, v1")
    a(f"v_lshlrev_b32 v{VPA}, 2, v{VG}")
    a(f"v_lshlrev_b32 v{VG}, 3, v{VG}")
    a(f"s_lshl_b32 s{SAT}, s{S_DEL}, 18")
    a("s_lshl_b32 s33, s3, 16")
    a(f"s_add_u32 s{SAT}, s{SAT}, s33")
    a(f"s_lshl_b32 s33, s{S_TAU}, 7")
    a(f"s_add_u32 s{SAT}, s{SAT}, s33")
    a(f"s_add_u32 s{SAT}, s{SAT}, {WS_A}")
    a(f"s_lshl_b32 s{SG}, s{S_TAU}, 9")
    a("s_lshl_b32 s33, s3, 7")
    a(f"s_add_u32 s{SG}, s{SG}, s33")
    a(f"s_add_u32 s{SG}, s{SG}, {WS_G}")
    a(f"v_lshl_add_u32 v5, v1, 4, s{S_RING}")
    for ww in range(1, 4):
        a(f"s_sub_u32 s33, s3, {ww}")
        a("s_and_b32 s33, s33, 3")
        a("s_lshl_b32 s33, s33, 12")
        a(f"s_add_u32 s33, s33, {L2_W2 + (ww-1)*16384}")
        a(f"v_lshl_add_u32 v{VPR[ww]}, v1, 4, s33")
    a("v_bfe_u32 v2, v1, 2, 2")
    a("v_and_b32 v3, 3, v1")
    a("v_lshrrev_b32 v4, 4, v1")
    a("v_lshl_add_u32 v6, v4, 2, v2")
    a("v_lshlrev_b32 v6, 7, v6")
    a("v_lshl_add_u32 v6, v3, 3, v6")
    a("v_lshrrev_b32 v7, 1, v2")
    a("v_and_b32 v4, 1, v4")
    a("v_lshl_or_b32 v7, v4, 1, v7")
    a("v_xor_b32 v7, s3, v7")
    a("v_lshl_add_u32 v6, v7, 5, v6")
    a(f"v_add_u32 v6, {L2_AT}, v6")
    a("v_and_b32 v2, 15, v1")
    a("v_lshlrev_b32 v2, 10, v2")
    a("v_lshrrev_b32 v3, 4, v1")
    a("v_lshl_add_u32 v7, v3, 4, v2")
    a(f"s_lshl_b32 s1, s{S_TAU}, 16")
    a("s_lshl_b32 s33, s3, 14")
    a("s_add_u32 s1, s1, s33")
    a(f"s_lshl_b32 s33, s{S_DEL}, 7")
    a("s_add_u32 s1, s1, s33")
    bok = "oneflag" in OPT
    merged = "merge" in OPT
    for n in range(14):
        nxt = n + 1
        if merged and n == 12:
            vm.wait("w_13")
            k = free.pop(); wset[13] = k
            for x in g2_tr(a, 6, k): a(x)
            vm.wait("h_13")
            a("s_waitcnt lgkmcnt(0)")
            wr = []
            for mp in (1, 2, 3, 0):
                i = 0
                for nn in (12, 13):
                    for nu in range(4):
                        d = acc(nu, mp)
                        a(f"v_mfma_f32_16x16x32_bf16 {vr(d,4)}, {vr(rs(wset[nn])+4*nu,4)}, {vr(rs(hset[nn])+4*mp,4)}, {vr(d,4)}")
                        if wr and i >= 4: a(wr.pop(0))
                        i += 1
                assert not wr
                if mp: wr = [f"ds_write_b128 v5, {vr(acc(nu,mp),4)} offset:{(mp-1)*16384+nu*1024}" for nu in range(4)]
                if mp == 2:
                    vm.wait("fc")
                    a("v_cmp_ne_u32 s[6:7], 1, v23")
                    a("s_lshl_b32 s33, s3, 11")
                    a(f"s_add_u32 m0, s33, {L2_AT}")
                    a("s_nop 1")
                    a("s_cmp_lg_u64 s[6:7], 0")
                    a(f"s_cselect_b32 s35, 0x7ffffff0, s{SAT}")
                    vm.op(f"buffer_load_dwordx4 v{VA0}, {S(SRD_WS)}, s35 offen sc1 lds", "at")
                    vm.op(f"buffer_load_dwordx4 v{VA1}, {S(SRD_WS)}, s35 offen offset:1024 sc1 lds", "at")
            break
        if 7 <= nxt < 14: vm.wait(f"w_{nxt}")
        vm.wait(f"h_{n}")
        if n >= 7 or n == 0:
            a("s_waitcnt lgkmcnt(0)")
        trs = []
        if 7 <= nxt < 14:
            k = free.pop(); wset[nxt] = k
            trs = g2_tr(a, nxt - 7, k)
        lds_ = []
        cnt = 0
        if "htouch" in OPT and n == BCHK and not bok:
            pollchk(15, f"s{S_FB}", "fb", max(1, PSL//2))
            bok = True
            a("s_mov_b64 exec, 0xfffffff")
            vm.op(f"buffer_load_dword v14, v11, {S(SRD_WS)}, s43 offen offset:1024 sc1", "t1")
            a("s_mov_b64 exec, -1")
        while nh < 14 and free and nh - n <= HDEPTH and cnt < HMAX:
            if nh >= 7 and not bok:
                if n < BCHK: break
                pollchk(15, f"s{S_FB}", "fb", max(1, PSL//2))
                vm.op(f"buffer_load_dwordx2 v[14:15], v{VG}, {S(SRD_WS)}, s{SG} offen sc1", "g") if False else None
                bok = True
            lds_ += hload_ops(nh); nh += 1; cnt += 1
        every = 16 // len(lds_) if lds_ else 99
        i = 0
        for nu in range(4):
            for m in range(4):
                d = acc(nu, m)
                c = "0" if n == 0 else vr(d, 4)
                a(f"v_mfma_f32_16x16x32_bf16 {vr(d,4)}, {vr(rs(wset[n])+4*nu,4)}, {vr(rs(hset[n])+4*m,4)}, {c}")
                if trs and i >= 1: a(trs.pop(0))
                if lds_ and i % every == 0: lds_.pop(0)()
                i += 1
        assert not trs and not lds_
        free.append(wset[n]); free.insert(0, hset[n])
        if nref < 7:
            refill(nref); nref += 1
        if n == PBN and "oneflag" not in OPT: pollop(15, f"s{S_FB}", "fb")
        if n == 0: gs(3)
        if n == 6: gs(4)
        if n == 8:
            vm.op(f"buffer_load_dwordx2 v[14:15], v{VG}, {S(SRD_WS)}, s{SG} offen sc1", "g")
        if n == APOLL:
            pollop(23, f"s{SFC}", "fc")
            gs(5)
        if n == APOLL + 2 and not merged:
            vm.wait("fc")
            a("v_cmp_ne_u32 s[6:7], 1, v23")
            a("s_lshl_b32 s33, s3, 11")
            a(f"s_add_u32 m0, s33, {L2_AT}")
            a("s_nop 1")
            a("s_cmp_lg_u64 s[6:7], 0")
            a(f"s_cselect_b32 s35, 0x7ffffff0, s{SAT}")
            vm.op(f"buffer_load_dwordx4 v{VA0}, {S(SRD_WS)}, s35 offen sc1 lds", "at")
            vm.op(f"buffer_load_dwordx4 v{VA1}, {S(SRD_WS)}, s35 offen offset:1024 sc1 lds", "at")
    assert bok
    gs(6)
    stamp(a, 7)
    a("s_nop 3")
    for mp in range(1, 4):
        for nu in range(4):
            if not merged: a(f"ds_write_b128 v5, {vr(acc(nu,mp),4)} offset:{(mp-1)*16384+nu*1024}")
    a("s_cmp_eq_u64 s[6:7], 0")
    a("s_cbranch_scc1 L_g2_fc_ok")
    a.spin("L_g2_fc", 0)
    a(f"buffer_load_dword v23, v{VPA}, {S(SRD_WS)}, s32 offen sc1")
    a("s_waitcnt vmcnt(0)")
    a("v_cmp_ne_u32 vcc, 1, v23")
    a("s_cbranch_vccz L_g2_fc2")
    a("s_sleep 6")
    a("s_branch L_g2_fc")
    a.label("L_g2_fc2")
    a(f"buffer_load_dwordx4 v{VA0}, {S(SRD_WS)}, s34 offen sc1 lds")
    a(f"buffer_load_dwordx4 v{VA1}, {S(SRD_WS)}, s34 offen offset:1024 sc1 lds")
    a.label("L_g2_fc_ok")
    a("s_mov_b32 s31, 0xffff0000")
    a("s_waitcnt vmcnt(0) lgkmcnt(0)")
    gs(7)
    a("s_barrier")
    R = 64
    for ww in range(1, 4):
        for nu in range(4):
            a(f"ds_read_b128 {vr(R+16*ww+4*nu,4)}, v{VPR[ww]} offset:{nu*1024}")
    AT = 32
    for nu in range(4):
        a(f"ds_read_b64_tr_b16 {vr(AT+2*nu,2)}, v6 offset:{nu*2048}")
    a("s_waitcnt lgkmcnt(12)")
    for nu in range(4):
        for i in (0, 2):
            a(f"v_pk_add_f32 {vr(R+4*nu+i,2)}, {vr(acc(nu,0)+i,2)}, {vr(R+16+4*nu+i,2)}")
    a("s_waitcnt lgkmcnt(4)")
    for i in range(0, 16, 2):
        a(f"v_pk_add_f32 {vr(R+32+i,2)}, {vr(R+32+i,2)}, {vr(R+48+i,2)}")
    for i in range(0, 16, 2):
        a(f"v_pk_add_f32 {vr(R+i,2)}, {vr(R+i,2)}, {vr(R+32+i,2)}")
    for i in range(0, 16, 2):
        a(f"v_pk_mul_f32 {vr(R+i,2)}, {vr(R+i,2)}, v[14:15] op_sel:[0,1] op_sel_hi:[1,1]")
    a("s_waitcnt lgkmcnt(0)")
    for i in range(8):
        a(f"v_lshlrev_b32 v40, 16, v{AT+i}")
        a(f"v_and_b32 v41, s31, v{AT+i}")
        a(f"v_fmac_f32 v{R+2*i}, v40, v14")
        a(f"v_fmac_f32 v{R+2*i+1}, v41, v14")
    P = 44
    for pr in range(2):
        p = P + 4*pr
        n0, n1 = 2*pr, 2*pr+1
        a(f"v_cvt_pk_bf16_f32 v{p}, v{R+4*n0}, v{R+4*n0+1}")
        a(f"v_cvt_pk_bf16_f32 v{p+1}, v{R+4*n0+2}, v{R+4*n0+3}")
        a(f"v_cvt_pk_bf16_f32 v{p+2}, v{R+4*n1}, v{R+4*n1+1}")
        a(f"v_cvt_pk_bf16_f32 v{p+3}, v{R+4*n1+2}, v{R+4*n1+3}")
        a("s_nop 1")
        a(f"v_permlane32_swap_b32 v{p}, v{p+2}")
        a(f"v_permlane32_swap_b32 v{p+1}, v{p+3}")
        a("s_nop 1")
        a(f"v_permlane16_swap_b32 v{p}, v{p+2}")
        a(f"v_permlane16_swap_b32 v{p+1}, v{p+3}")
        a(f"buffer_store_dwordx4 {vr(p,4)}, v7, {S(SRD_OUT)}, s1 offen offset:{64*pr}")

TRX = 128
GW = 192
def gen_tr_loads(a):
    a("s_sub_u32 s24, s2, 224")
    a("s_lshl_b32 s25, s24, 2")
    a("s_add_u32 s25, s25, s3")
    a("s_lshl_b32 s28, s25, 14")
    a("v_lshlrev_b32 v9, 4, v1")
    for r in range(16):
        a(f"buffer_load_dwordx4 {vr(TRX+4*r,4)}, v9, {S(SRD_X)}, s28 offen offset:{(r%4)*1024}")
        if r % 4 == 3: a("s_add_u32 s28, s28, 4096")
    a(f"global_load_dwordx4 {vr(GW,4)}, v9, {pp(I_GW)}")
    return 17

def gen_transpose(a):
    X = TRX
    a("s_mov_b32 s6, s24")
    a("s_mov_b32 s7, s25")
    srd(a, SRD_OUT, ptr(I_OUT), 2048*512*2)
    a("v_lshrrev_b32 v5, 4, v1")
    a("s_mov_b32 s31, 0xffff0000")
    a("s_waitcnt vmcnt(0)")
    for i in range(4):
        a(f"v_lshlrev_b32 v{20+2*i}, 16, v{GW+i}")
        a(f"v_and_b32 v{21+2*i}, s31, v{GW+i}")
    SS = 64
    def grow(r):
        T = 32 + 8*(r & 1)
        for i in range(4):
            a(f"v_lshlrev_b32 v{T+2*i}, 16, v{X+4*r+i}")
            a(f"v_and_b32 v{T+2*i+1}, s31, v{X+4*r+i}")
        for i in range(4):
            a(f"v_pk_mul_f32 {vr(T+2*i,2)}, {vr(T+2*i,2)}, {vr(20+2*i,2)}")
        for i in range(4):
            a(f"v_cvt_pk_bf16_f32 v{T+2*i}, v{T+2*i}, v{T+2*i+1}")
        for i in range(4):
            a(f"v_and_b32 v{T+2*i+1}, s31, v{T+2*i}")
            a(f"v_lshlrev_b32 v{T+2*i}, 16, v{T+2*i}")
        a(f"v_pk_add_f32 {vr(T,2)}, {vr(T,2)}, {vr(T+2,2)}")
        a(f"v_pk_add_f32 {vr(T+4,2)}, {vr(T+4,2)}, {vr(T+6,2)}")
        a(f"v_pk_add_f32 {vr(T,2)}, {vr(T,2)}, {vr(T+4,2)}")
        a(f"v_add_f32 v{SS+r}, v{T}, v{T+1}")
    for r in range(16): grow(r)
    a("s_nop 1")
    for i in range(8):
        a(f"v_permlane32_swap_b32 v{SS+i}, v{SS+8+i}")
    for i in range(8):
        a(f"v_add_f32 v{SS+i}, v{SS+i}, v{SS+8+i}")
    a("s_nop 1")
    for i in range(4):
        a(f"v_permlane16_swap_b32 v{SS+i}, v{SS+4+i}")
    for i in range(4):
        a(f"v_add_f32 v{SS+i}, v{SS+i}, v{SS+4+i}")
    for sh in (8, 4, 2, 1):
        a("s_nop 0")
        for i in range(4):
            a(f"v_add_f32_dpp v{SS+i}, v{SS+i}, v{SS+i} row_ror:{sh} row_mask:0xf bank_mask:0xf")
    a("v_and_b32 v7, 3, v1")
    for i in range(1, 4):
        a(f"v_cmp_eq_u32 vcc, {i}, v7")
        a("s_nop 1")
        a(f"v_cndmask_b32 v{SS}, v{SS}, v{SS+i}, vcc")
    a(f"v_cvt_pk_bf16_f32 v{SS}, v{SS}, v{SS}")
    a(f"v_and_b32 v{SS}, s31, v{SS}")
    a(f"v_mul_f32 v{SS}, {f2u(-LOG2E)}, v{SS}")
    a(f"v_exp_f32 v{SS}, v{SS}")
    a("s_nop 0")
    a(f"v_add_f32 v{SS}, 1.0, v{SS}")
    a(f"v_rcp_f32 v{SS}, v{SS}")
    a("s_nop 0")
    a(f"v_cvt_pk_bf16_f32 v{SS}, v{SS}, v{SS}")
    a(f"v_and_b32 v{SS}, s31, v{SS}")
    a(f"v_sub_f32 v{SS+1}, 1.0, v{SS}")
    a(f"v_cvt_pk_bf16_f32 v{SS+1}, v{SS+1}, v{SS+1}")
    a(f"v_and_b32 v{SS+1}, s31, v{SS+1}")
    a("v_lshl_add_u32 v7, v5, 2, v7")
    a("v_lshlrev_b32 v7, 3, v7")
    a("s_lshl_b32 s28, s7, 7")
    a(f"s_add_u32 s28, s28, {WS_G}")
    a("s_mov_b32 s34, 0x000f000f")
    a("s_mov_b32 s35, 0x000f000f")
    a("s_mov_b64 exec, s[34:35]")
    a(f"buffer_store_dwordx2 {vr(SS,2)}, v7, {S(SRD_WS)}, s28 offen sc1")
    a("s_mov_b64 exec, -1")
    a("s_waitcnt vmcnt(0)")
    stamp(a, 4)

def gen_kernel(a):
    a.raw(f".globl {KNAME}\n.p2align 8\n.type {KNAME},@function")
    a.label(KNAME)
    a(f"s_load_dwordx16 s[{P0}:{P0+15}], s[0:1], 0")
    a(f"s_load_dwordx16 s[{P0+16}:{P0+31}], s[0:1], 64")
    a(f"s_load_dwordx2 s[{P0+32}:{P0+33}], s[0:1], 128")
    a("s_cmp_ge_u32 s2, 256")
    a("s_cbranch_scc1 L_end")
    if "stamps" in OPT:
        a(f"s_memtime s[{ST0}:{ST0+1}]")
        a(f"s_memrealtime s[{ST0+2}:{ST0+3}]")
    if "nopf" not in OPT:
        if "pfspare" in OPT:
            a("s_cmp_lt_u32 s2, 224")
            a("s_cbranch_scc1 L_nocpf")
        a("s_getpc_b64 s[6:7]")
        a.label("L_pc0")
        a("v_lshlrev_b32 v1, 6, v0")
        a("v_min_u32 v1, L_codeend-L_pc0, v1")
        a("global_load_dword v31, v1, s[6:7]")
        a.label("L_nocpf")
    a("v_lshrrev_b32 v2, 6, v0")
    a("v_and_b32 v1, 63, v0")
    a("v_readfirstlane_b32 s3, v2")
    a("s_and_b32 s6, s2, 7")
    a("s_lshr_b32 s7, s2, 3")
    a("s_and_b32 s4, s6, 1")
    a("s_lshl_b32 s4, s4, 2")
    a("s_and_b32 s30, s7, 3")
    a("s_add_u32 s4, s4, s30")
    a("s_lshr_b32 s5, s6, 1")
    a("s_mul_i32 s5, s5, 7")
    a("s_lshr_b32 s30, s7, 2")
    a("s_add_u32 s5, s5, s30")
    if "ftmap" in OPT:
        a("s_mul_i32 s5, s6, 28")
        a("s_add_u32 s5, s5, s7")
        a("s_and_b32 s4, s5, 7")
        a("s_lshr_b32 s5, s5, 3")
    def common_srds():
        a("s_mov_b32 s0, 0x100000")
        srd(a, SRD_X, ptr(I_U), 2048*512*2)
        srd(a, SRD_W1, ptr(I_W1), 512*1792*2)
        srd(a, SRD_WS, ptr(I_WS), WS_SIZE)
        if "wsend" in OPT:
            a(f"s_add_u32 s{SRD_WS}, s{SRD_WS}, {268435456 - WS_SIZE}")
            a(f"s_addc_u32 s{SRD_WS+1}, s{SRD_WS+1}, 0")
        srd(a, SRD_W2, ptr(I_W2), 1792*512*2)
        srd(a, SRD_OUT, ptr(I_OUT), 2048*512*2)
    a("s_cmp_lt_u32 s3, 4")
    a("s_cbranch_scc1 L_w03")
    a("s_cmp_ge_u32 s3, 6")
    a("s_cbranch_scc1 L_kfin")
    a("s_cmp_lg_u32 s3, 4")
    a("s_cbranch_scc1 L_noinit")
    a("v_mov_b32 v3, 0")
    a(f"v_mov_b32 v4, {FLB}")
    a("v_lshl_add_u32 v4, v1, 2, v4")
    a("ds_write_b32 v4, v3")
    a.label("L_noinit")
    gen_loader_setup(a)
    a("s_waitcnt lgkmcnt(0)")
    common_srds()
    a("s_barrier")
    a("s_cmp_ge_u32 s2, 224")
    a("s_cbranch_scc1 L_spare45")
    gen_loader(a)
    a.label("L_ph2_loader")
    gen_w2pre(a)
    stamp(a, 2)
    stamp(a, 3)
    a("s_mov_b32 s33, 1")
    a("s_branch L_conv")
    a.label("L_w03")
    gen_ktab_addr(a)
    a("v_lshrrev_b32 v21, 3, v1")
    a(f"v_mul_u32_u24 v21, {64*3584}, v21")
    a("v_and_b32 v22, 7, v1")
    if "ftmap" in OPT:
        a("v_mul_u32_u24 v22, 3584, v22")
        a("v_add_u32 v21, v22, v21")
    else:
        a("v_lshl_add_u32 v21, v22, 7, v21")
    a("s_lshr_b32 s32, s3, 1")
    a("s_mul_i32 s32, s32, 3")
    a("s_add_u32 s32, s32, 2")
    a(f"s_mul_i32 s32, s32, {64*3584}")
    if "ftmap" in OPT:
        a(f"s_mul_i32 s33, s4, {8*3584}")
        a("s_add_u32 s32, s32, s33")
        a("s_lshl_b32 s33, s5, 7")
    else:
        a("s_lshl_b32 s33, s2, 10")
    a("s_add_u32 s32, s32, s33")
    a("s_waitcnt lgkmcnt(0)")
    gen_ktab_loads(a)
    a("s_barrier")
    stamp(a, 1, "kst")
    common_srds()
    a("s_cmp_ge_u32 s2, 224")
    a("s_cbranch_scc1 L_kt")
    gen_g1_setup(a)
    a("s_bitcmp1_b32 s3, 0")
    a(f"s_cselect_b32 s{SRD_W1}, s{ptr(I_W3)}, s{ptr(I_W1)}")
    a(f"s_cselect_b32 s{SRD_W1+1}, s{ptr(I_W3)+1}, s{ptr(I_W1)+1}")
    a(f"s_and_b32 s{SRD_W1+1}, s{SRD_W1+1}, 0xffff")
    if "latewpf" in OPT:
        a("v_mov_b32 v17, v21")
        a("s_mov_b32 s1, s32")
    if "nowpf" in OPT or "latewpf" in OPT: a("s_mov_b32 s32, 0x7ffffff0")
    if "halfwpf" in OPT:
        a("s_cmp_ge_u32 s3, 2")
        a("s_cselect_b32 s32, 0x7ffffff0, s32")
    if "k6pf" not in OPT:
        a("s_mov_b64 exec, 0xffffff")
        a(f"buffer_load_dword v23, v21, {S(SRD_W1)}, s32 offen{' nt' if 'ntw' in OPT else ''}")
        a("s_mov_b64 exec, -1")
    stamp(a, 2, "kst")
    a.label("L_kt")
    gen_ktab(a, 17)
    a("s_cmp_ge_u32 s2, 224")
    a("s_cbranch_scc1 L_tr_post")
    if "latewpf" in OPT:
        a("s_mov_b64 exec, 0xffffff")
        a(f"buffer_load_dword v23, v17, {S(SRD_W1)}, s1 offen")
        a("s_mov_b64 exec, -1")
    gen_g2_pre(a)
    G1G2[0] = True
    gen_g1(a)
    a.label("L_g2")
    ampx = [o for o in OPT if o.startswith("ampx")]
    if ampx:
        wa = int(ampx[0][5:8])
        a(f"s_cmp_lg_u32 s2, {wa}")
        a("s_cbranch_scc1 L_ampx")
        a("s_cmp_lg_u32 s3, 0")
        a("s_cbranch_scc1 L_ampx")
        a("v_mov_b32 v2, 0")
        a(f"v_mov_b32 v3, s{ST0+2}")
        a(f"global_store_dword v2, v3, {pp(I_DBG)} offset:160 sc1")
        a.label("L_ampx")
    if "wg2" in OPT: a.walk_begin("g2")
    gen_g2(a)
    if "wg2" in OPT: a.walk_end()
    if "stamps" in OPT:
        a("s_waitcnt vmcnt(0)")
        stamp(a, 1)
    G1G2[0] = False
    amp = [o for o in OPT if o.startswith("amp")]
    if amp and amp[0][3] == "x":
        j = int(amp[0][4]); wa = int(amp[0][5:8]); wb = int(amp[0][8:11])
        a(f"s_cmp_lg_u32 s2, {wb}")
        a("s_cbranch_scc1 L_ampskip")
        a("s_cmp_lg_u32 s3, 0")
        a("s_cbranch_scc1 L_ampskip")
        a("v_mov_b32 v1, 0")
        a(f"global_load_dword v2, v1, {pp(I_DBG)} offset:160 sc1")
        a("s_waitcnt vmcnt(0)")
        a("v_readfirstlane_b32 s28, v2")
        a("s_nop 3")
        a(f"s_sub_u32 s28, s{ST0+2+4*j}, s28")
        a("s_add_u32 s28, s28, 200")
        a("s_lshl_b32 s28, s28, 3")
        a("s_min_u32 s28, s28, 100000")
        a.label("L_amp")
        a("s_memrealtime s[30:31]")
        a("s_waitcnt lgkmcnt(0)")
        a(f"s_sub_u32 s29, s30, s{ST0+2+4*1}")
        a("s_cmp_lt_u32 s29, s28")
        a("s_cbranch_scc1 L_amp")
        a.label("L_ampskip")
    elif amp:
        i, j = int(amp[0][3]), int(amp[0][4])
        a("s_cmp_lg_u32 s2, 100")
        a("s_cbranch_scc1 L_ampskip")
        a("s_cmp_lg_u32 s3, 0")
        a("s_cbranch_scc1 L_ampskip")
        a(f"s_sub_u32 s28, s{ST0+2+4*j}, s{ST0+2+4*i}")
        a("s_lshl_b32 s28, s28, 3")
        a("s_min_u32 s28, s28, 100000")
        a.label("L_amp")
        a("s_memrealtime s[30:31]")
        a("s_waitcnt lgkmcnt(0)")
        a(f"s_sub_u32 s29, s30, s{ST0+2+4*1}")
        a("s_cmp_lt_u32 s29, s28")
        a("s_cbranch_scc1 L_amp")
        a.label("L_ampskip")
    else:
        stamp_flush(a, 8)
    a("s_endpgm")
    a.label("L_tr_post")
    gen_tr_loads(a)
    gen_transpose(a)
    lds_wait(a, FL_VALID, 1, 1, "trv", 3, 4, sleep=4)
    a(f"s_mul_i32 s35, s6, {FSTR}")
    a("s_lshl_b32 s28, s3, 2")
    a("s_add_u32 s35, s35, s28")
    a(f"s_add_u32 s35, s35, {WS_FH + 32*FSTR + 112}")
    publish(a, "s35", 3, 4)
    a("s_mov_b32 s35, 0")
    gen_g2_pre(a)
    lds_wait(a, FL_W2, 2, 1, "sw1", 3, 4, sleep=2)
    WHI[0] = False
    for i in range(6):
        for x in g2_tr(a, i, WSET0[i]): a(x)
    rd_flag(a, 7)
    a("s_branch L_g2")
    a.label("L_spare45")
    a("s_sub_u32 s6, s3, 4")
    a("s_cmp_lg_u32 s2, 255")
    a("s_cbranch_scc1 L_sp_bar")
    a("s_cmp_lg_u32 s3, 4")
    a("s_cbranch_scc1 L_sp_bar")
    for i in range(4):
        a(f"v_mov_b32 v{4+i}, 0")
    a("v_lshrrev_b32 v2, 3, v1")
    a(f"v_mul_u32_u24 v2, {FSTR}, v2")
    a("v_and_b32 v3, 7, v1")
    a("v_lshl_add_u32 v2, v3, 4, v2")
    a(f"s_mov_b32 s28, {WS_FH}")
    for i in range(12):
        a(f"buffer_store_dwordx4 v[4:7], v2, {S(SRD_WS)}, s28 offen sc1")
        a(f"s_add_u32 s28, s28, {8*FSTR}")
    a(f"s_mov_b32 s28, {WS_FA}")
    for i in range(4):
        a(f"buffer_store_dwordx4 v[4:7], v2, {S(SRD_WS)}, s28 offen offset:{i*128} sc1")
    a("v_mov_b32 v3, 1")
    a("s_waitcnt vmcnt(0)")
    a("s_mov_b64 exec, 1")
    a(f"global_store_dword v4, v3, {pp(I_DBG)} sc1")
    a("s_mov_b64 exec, -1")
    a.label("L_sp_bar")
    a("s_cmp_eq_u32 s6, 1")
    a(f"s_cselect_b32 s{SRD_W1}, s{ptr(I_W3)}, s{ptr(I_W1)}")
    a(f"s_cselect_b32 s{SRD_W1+1}, s{ptr(I_W3)+1}, s{ptr(I_W1)+1}")
    a(f"s_and_b32 s{SRD_W1+1}, s{SRD_W1+1}, 0xffff")
    a("s_sub_u32 s29, s2, 224")
    a("s_mul_i32 s28, s29, 7168")
    a(f"s_add_u32 s28, s28, {SPPF0*64*3584}")
    a("v_lshlrev_b32 v2, 7, v1")
    a("s_mov_b32 s34, -1")
    a("s_mov_b32 s35, 0xffffff")
    if SPPF0 < 8:
        lds_wait(a, FL_TR, 1, 1, "spun1", 17, 22, sleep=4)
        a("s_mov_b64 exec, s[34:35]")
        for st in range(SPPF0, 8):
            a(f"buffer_load_dword v3, v2, {S(SRD_W1)}, s28 offen")
            a(f"s_add_u32 s28, s28, {64*3584}")
        a("s_mov_b64 exec, -1")
    if "spearly" not in OPT: lds_wait(a, FL_KG, 4, 1, "spring0", 17, 22, sleep=4)
    lds_wait(a, FL_TR, 1, 1, "spun0", 17, 22, sleep=4)
    a("s_mov_b64 exec, s[34:35]")
    a("s_lshl_b32 s29, s29, 1")
    a("s_add_u32 s29, s29, s6")
    a("s_mul_i32 s28, s29, 28672")
    for i in range(4):
        a(f"buffer_load_dword v3, v2, {S(SRD_W2)}, s28 offen")
        a("s_add_u32 s28, s28, 7168")
    a("s_mov_b64 exec, -1")
    a("s_waitcnt vmcnt(0)")
    stamp(a, 1)
    lds_wait(a, FL_KG, 4, 1, "spring", 17, 22, sleep=4)
    lds_wait(a, FL_TR, 1, 1, "spun", 17, 22, sleep=4)
    a("s_branch L_ph2_loader")
    a.label("L_kfin")
    a("s_sub_u32 s6, s3, 6")
    a("s_lshl_b32 s7, s2, 1")
    a("s_add_u32 s7, s7, s6")
    a("s_lshl_b32 s30, s6, 13")
    a(f"s_add_u32 s30, s30, {L_SIDE}")
    a("s_lshl_b32 s28, s7, 1")
    a("v_mov_b32 v16, s28")
    a("s_waitcnt lgkmcnt(0)")
    common_srds()
    a(f"global_load_ushort v{V_DSK}, v16, {pp(I_DSK)}")
    a("s_cmp_eq_u32 s6, 0")
    a("s_cbranch_scc1 L_kf_w6")
    gen_unit_load(a)
    a("s_barrier")
    gen_unit(a)
    lds_set(a, FL_TR, 1, 2, 3)
    a("s_branch L_kf_go")
    a.label("L_walk_ret")
    a(f"s_setpc_b64 s[{RET}:{RET+1}]")
    a.label("L_kf_w6")
    a("s_barrier")
    if "k6pf" in OPT:
        a("v_lshrrev_b32 v2, 3, v1")
        a(f"v_mul_u32_u24 v2, {64*3584}, v2")
        a("v_and_b32 v3, 7, v1")
        a("v_lshl_add_u32 v2, v3, 7, v2")
        a("s_lshl_b32 s28, s2, 10")
        a(f"s_add_u32 s28, s28, {2*64*3584}")
        a("s_cmp_ge_u32 s2, 224")
        a("s_cselect_b32 s28, 0x7ffffff0, s28")
        if K6D: a(f"s_sleep {K6D}")
        a(f"buffer_load_dword v59, v2, {S(SRD_W1)}, s28 offen")
        srd(a, SRD_OUT, ptr(I_W3), 512*1792*2)
        a(f"buffer_load_dword v59, v2, {S(SRD_OUT)}, s28 offen")
    walk(a, "Lh_epi_0")
    a.label("L_kf_go")
    gen_kfin_addr(a)
    gen_kfin(a)
    stamp(a, 3)
    a("s_mov_b32 s33, 0")
    a.label("L_conv")
    gen_conv(a)
    stamp(a, 7)
    stamp_flush(a, 8)
    a.label("L_end")
    a.label("L_codeend")
    a("s_endpgm")

def kd(name, vgpr, sgpr=102):
    return f""".p2align 6
.amdhsa_kernel {name}
  .amdhsa_next_free_vgpr {vgpr}
  .amdhsa_next_free_sgpr {sgpr}
  .amdhsa_accum_offset {vgpr}
  .amdhsa_group_segment_fixed_size 0
  .amdhsa_kernarg_size 136
  .amdhsa_user_sgpr_count 2
  .amdhsa_user_sgpr_kernarg_segment_ptr 1
  .amdhsa_system_sgpr_workgroup_id_x 1
.end_amdhsa_kernel"""

def main():
    out = sys.argv[1] if len(sys.argv) > 1 else "k.s"
    if len(sys.argv) > 2:
        OPT.update(sys.argv[2].split(","))
    global PFDELAY
    for o in OPT:
        if o.startswith("pfd"): PFDELAY = int(o[3:])
        if o.startswith("sp0"): globals()["SPPF0"] = int(o[3:])
        if o.startswith("c1_"): globals()["C1"] = int(o[3:])
        if o.startswith("cs_"): globals()["CSTEP"] = int(o[3:])
        if o.startswith("wpre"): globals()["WPRE"] = int(o[4:])
        if o.startswith("pah"): globals()["PAH"] = int(o[3:])
        if o.startswith("bchk"): globals()["BCHK"] = int(o[4:])
        if o.startswith("psl"): globals()["PSL"] = int(o[3:])
        if o.startswith("ldp_"): globals()["LDPF"] = int(o[4:])
        if o.startswith("rb"): globals()["RB4"] = int(o[2:])
        if o.startswith("rmid"): globals()["RMID"] = int(o[4:])
        if o.startswith("hmax"): globals()["HMAX"] = int(o[4:])
        if o.startswith("pbn"): globals()["PBN"] = int(o[3:])
        if o.startswith("erd"): globals()["ERD"] = int(o[3:])
        if o.startswith("emix"): globals()["EMIX"] = int(o[4:])
        if o.startswith("spsl"): globals()["SPSL"] = int(o[4:])
        if o.startswith("puba"): globals()["PUBA"] = int(o[4:])
        if o.startswith("pdel"): globals()["PDEL"] = int(o[4:])
        if o.startswith("gsl"): globals()["GSL"] = int(o[3:])
        if o.startswith("pe"): globals()["PEARLY"] = int(o[2:])
        if o.startswith("k6d"): globals()["K6D"] = int(o[3:])
        if o.startswith("apoll"): globals()["APOLL"] = int(o[5:])
        if o.startswith("rpre"): globals()["RPRE"] = int(o[4:])
        if o.startswith("hd"): globals()["HDEPTH"] = int(o[2:])
    OPT.update(["sppf", "now2pf", "splate"])
    if "walk" not in OPT: OPT.add("nowalk")
    WALKCH["g2"] = 9
    for o in OPT:
        if o.startswith("wch"): WALKCH["g2"] = int(o[3:])
        if o.startswith("hop"): globals()["HOP"] = int(o[3:])
    a = Asm()
    a.raw(f"; @launch grid=(256,1,1) block=(512,1,1) lds={LDS_SIZE}")
    a.raw('.amdgcn_target "amdgcn-amd-amdhsa--gfx950"')
    a.raw(".text")
    gen_kernel(a)
    a.raw('.section .rodata,"a"')
    a.raw(kd(KNAME, 256))
    open(out, "w").write(a.text())

if __name__ == "__main__":
    main()
```
